```python
import torch

def _softmax(x, axis=-1):
    return torch.softmax(x, dim=axis)
def _gelu(x):
    return torch.nn.functional.gelu(x, approximate="tanh")
def _silu(x):
    return torch.nn.functional.silu(x)
def _sigmoid(x):
    return torch.sigmoid(x)
def _layernorm(x, axis=-1, eps=1e-5):
    m = x.mean(dim=axis, keepdim=True)
    v = x.var(dim=axis, keepdim=True, unbiased=False)
    return (x - m) / torch.sqrt(v + eps)
def _scatter_add(tgt, idx, src, axis=0):
    return tgt.clone().index_add_(axis, idx, src)
def _segment_sum(src, seg, n):
    out = torch.zeros((n,) + src.shape[1:], dtype=src.dtype)
    return out.index_add_(0, seg, src)
def _pad(x, pw):
    flat = tuple(v for pair in reversed(pw) for v in pair)
    return torch.nn.functional.pad(x, flat)

kernel_name = 'parallel_sum__gqa_block_cached__swiglu_ffn__decode'

def setup_inputs():

    _w = (lambda a: (lambda t: t.to(torch.bfloat16) if t.is_floating_point() else t)(torch.as_tensor(a)))
    def _A_setup():
        B, Sq, D = 2, 1, 1024
        Hq, Hkv, Sk, Dh = 32, 4, 32768, 128
        assert Hq % Hkv == 0, (Hq, Hkv)
        return {
            "x": _w((lambda *s: torch.randn(*s, dtype=torch.bfloat16) * 0.05)(B, Sq, D)),
            "k_cache": _w((lambda *s: torch.randn(*s, dtype=torch.bfloat16) * 3.2)(B, Hkv, Sk, Dh)),
            "v_cache": _w((lambda *s: torch.randn(*s, dtype=torch.bfloat16) * 1.6)(B, Hkv, Sk, Dh)),
            "wq": _w((lambda *s: torch.randn(*s, dtype=torch.bfloat16) * 3.2)(D, Hq * Dh) * (D ** -0.5)),
            "wo": _w((lambda *s: torch.randn(*s, dtype=torch.bfloat16) * 1.6)(Hq * Dh, D) * ((Hq * Dh) ** -0.5)),
        }
    _A_in = _A_setup()

    def _B_setup():
        B, S, D, F = 2, 1, 1024, 3584
        return {
            "x": _w((lambda *s: torch.randn(*s, dtype=torch.bfloat16) * 0.05)(B, S, D)),
            "w_gate": _w((lambda *s: torch.randn(*s, dtype=torch.bfloat16) * 0.05)(D, F)),
            "w_up": _w((lambda *s: torch.randn(*s, dtype=torch.bfloat16) * 0.05)(D, F)),
            "w_down": _w((lambda *s: torch.randn(*s, dtype=torch.bfloat16) * 0.05)(F, D)),
        }
    _B_in = _B_setup()

    return {
        "A_x": _A_in["x"],
        "A_k_cache": _A_in["k_cache"],
        "A_v_cache": _A_in["v_cache"],
        "A_wq": _A_in["wq"],
        "A_wo": _A_in["wo"],
        "B_x": _B_in["x"],
        "B_w_gate": _B_in["w_gate"],
        "B_w_up": _B_in["w_up"],
        "B_w_down": _B_in["w_down"],
    }

def reference(A_x, A_k_cache, A_v_cache, A_wq, A_wo, B_x, B_w_gate, B_w_up, B_w_down):
    def _A_ref(x, k_cache, v_cache, wq, wo):
        B, Sq, D = x.shape
        Hq, Dh = 32, 128
        Hkv = k_cache.shape[1]
        rep = Hq // Hkv
        q = (lambda x, *d: x.permute(*d))((x @ wq).reshape(B, Sq, Hq, Dh), 0, 2, 1, 3)
        k = (lambda x, n, axis: torch.repeat_interleave(x, n, dim=axis))(k_cache, rep, axis=1)
        v = (lambda x, n, axis: torch.repeat_interleave(x, n, dim=axis))(v_cache, rep, axis=1)
        scores = torch.einsum("bhqd,bhkd->bhqk", q, k) * (Dh ** -0.5)
        p = _softmax(scores, axis=-1)
        o = torch.einsum("bhqk,bhkd->bhqd", p, v)
        return (lambda x, *d: x.permute(*d))(o, 0, 2, 1, 3).reshape(B, Sq, Hq * Dh) @ wo

    def _B_ref(x, w_gate, w_up, w_down):
        g = _silu(x @ w_gate)
        u = x @ w_up
        return (g * u) @ w_down

    x = A_x
    xn = _layernorm(x, axis=-1)
    return x + _A_ref(xn, A_k_cache, A_v_cache, A_wq, A_wo) + _B_ref(xn, B_w_gate, B_w_up, B_w_down)
```

```python
import re
TRANS = ("v_exp_f32","v_log_f32","v_rcp_f32","v_rsq_f32","v_sqrt_f32","v_sin_f32","v_cos_f32","v_rcp_iflag_f32")
def parse_regs(op):
    op = op.strip()
    m = re.fullmatch(r"-?\|?([vas])(\d+)\|?", op)
    if m: return [(m.group(1), int(m.group(2)))]
    m = re.fullmatch(r"-?([vas])\[(\d+):(\d+)\]", op)
    if m: return [(m.group(1), i) for i in range(int(m.group(2)), int(m.group(3))+1)]
    if op == "vcc": return [("s", "vcc")]
    if op == "exec": return [("s", "exec")]
    if op == "m0": return [("s", "m0")]
    return []
class I:
    def __init__(self, line):
        self.line = line
        t = line.split(";")[0].strip()
        self.is_label = t.endswith(":")
        self.is_dir = t.startswith(".")
        self.empty = (t == "")
        self.mn = ""; self.ops = []; self.mods = ""
        self.w = set(); self.r = set()
        if self.is_label or self.is_dir or self.empty: return
        p = t.split(None, 1)
        self.mn = p[0]
        rest = p[1] if len(p) > 1 else ""
        ops = []; cur = ""; depth = 0
        for ch in rest:
            if ch == "[": depth += 1
            if ch == "]": depth -= 1
            if ch == "," and depth == 0: ops.append(cur.strip()); cur = ""
            else: cur += ch
        if cur.strip(): ops.append(cur.strip())
        if ops:
            last = ops[-1].split(None, 1)
            ops[-1] = last[0]
            self.mods = last[1] if len(last) > 1 else ""
        self.ops = ops
        mn = self.mn
        self.valu = mn.startswith("v_") and not mn.startswith("v_mfma")
        self.mfma = mn.startswith("v_mfma")
        self.vmem = mn.startswith("buffer_") or mn.startswith("global_")
        self.ds = mn.startswith("ds_")
        self.salu = mn.startswith("s_")
        self.dpp = ("_dpp" in mn) or ("row_" in self.mods) or ("quad_perm" in self.mods)
        self.perml = mn.startswith("v_permlane")
        self.trans = any(mn.startswith(x) for x in TRANS)
        R = lambda i: set(parse_regs(ops[i])) if i < len(ops) else set()
        allr = lambda s: set().union(*[R(i) for i in range(s, len(ops))]) if len(ops) > s else set()
        if self.perml or mn.startswith("v_swap"):
            self.w = R(0) | R(1); self.r = R(0) | R(1)
        elif self.mfma:
            self.w = R(0); self.r = allr(1); self.A = R(1); self.B = R(2); self.C = R(3)
        elif mn.startswith("v_cmp"):
            self.w = R(0); self.r = allr(1)
        elif mn.startswith("v_add_co") or mn.startswith("v_sub_co") or mn.startswith("v_addc_co"):
            self.w = R(0) | R(1); self.r = allr(2)
        elif self.valu:
            self.w = R(0); self.r = allr(1)
            if mn.startswith("v_fmac") or mn.startswith("v_dot2c") or mn.startswith("v_writelane"): self.r |= R(0)
            if mn.startswith("v_cndmask") and len(ops) == 3: self.r |= {("s","vcc")}
            if self.dpp: self.r |= R(0)
        elif self.vmem:
            if "load" in mn and "lds" not in self.mods:
                self.w = R(0); self.r = allr(1)
            elif "atomic" in mn and "sc0" in self.mods:
                self.w = R(0); self.r = allr(0)
            else:
                self.r = allr(0)
        elif self.ds:
            if mn.startswith("ds_read") or mn.startswith("ds_bpermute") or mn.startswith("ds_swizzle"):
                self.w = R(0); self.r = allr(1)
            else:
                self.r = allr(0)
        elif self.salu:
            if mn.startswith("s_cmp") or mn.startswith("s_waitcnt") or mn.startswith("s_cbranch") or mn in ("s_nop","s_barrier","s_branch","s_endpgm","s_sleep","s_setprio"):
                self.r = allr(0)
            else:
                self.w = R(0); self.r = allr(1)
                if "saveexec" in mn: self.w |= {("s","exec")}
    def states(self):
        if self.mn == "s_nop": return int(self.ops[0], 0) + 1
        return 1
def isv(s): return {x for x in s if x[0] in "va"}
def iss(s): return {x for x in s if x[0] == "s"}
def need(p, c):
    n = 0
    if p.valu:
        pv = isv(p.w); ps = iss(p.w)
        if pv & c.r:
            if c.valu and c.dpp: n = max(n, 2)
            if c.perml: n = max(n, 2)
            if c.mn.startswith("v_readlane") or c.mn.startswith("v_readfirstlane"): n = max(n, 1)
            if c.mfma: n = max(n, 2)
            if p.trans and c.valu and not c.trans: n = max(n, 1)
            if p.trans and (c.vmem or c.ds): n = max(n, 1)
        if pv & c.w and c.perml: n = max(n, 2)
        if ps & c.r:
            if c.valu: n = max(n, 2)
            if c.vmem: n = max(n, 5)
            if c.mn.startswith("v_readlane") or c.mn.startswith("v_writelane"): n = max(n, 4)
            if c.salu: n = max(n, 2)
            if c.mfma: n = max(n, 2)
    if p.mfma:
        passes = 8 if "32x32" in p.mn else 4
        full = {4: 8, 8: 12}[passes]; part = {4: 6, 8: 10}[passes]; war = {4: 3, 8: 7}[passes]
        if c.mfma:
            if p.w & (c.A | c.B): n = max(n, full)
            if p.w & c.C and c.C != p.w: n = max(n, part)
            if p.w & c.w and c.C != p.w and not (p.w & c.C): n = max(n, full)
        else:
            if p.w & (c.r | c.w) and (c.valu or c.vmem or c.ds): n = max(n, full)
            if c.valu and (p.C & c.w): n = max(n, war)
    if p.vmem and "store" in p.mn and ("x4" in p.mn or "x3" in p.mn):
        data = set(parse_regs(p.ops[0])) if p.mn.startswith("buffer") else set(parse_regs(p.ops[1]))
        if data & c.w: n = max(n, 2 if c.valu else 1)
    if p.ds and p.mn.startswith("ds_write") and ("b128" in p.mn or "b96" in p.mn):
        pass
    if p.salu and ("s","exec") in p.w and c.valu and c.dpp: n = max(n, 1)
    if p.salu and ("s","m0") in p.w and (c.vmem and "lds" in c.mods): n = max(n, 1)
    return n
def fix(text):
    out = []
    hist = []
    nins = 0
    for line in text.split("\n"):
        ins = I(line)
        if ins.empty or ins.is_dir:
            out.append(line); continue
        if ins.is_label:
            out.append(line); continue
        dist = 0; req = 0
        for p in reversed(hist):
            if dist >= 14: break
            k = need(p, ins)
            if k - dist > req: req = k - dist
            dist += p.states()
        while req > 0:
            k = min(req, 16)
            nop = I(f"s_nop {k-1}")
            out.append(f"    s_nop {k-1}"); hist.append(nop); req -= k; nins += 1
        out.append(line); hist.append(ins)
        if len(hist) > 40: hist = hist[-20:]
    return "\n".join(out), nins
```

```python
import sys
from common import *
import hazard

NAME = "parallel_sum__gqa_block_cached__swiglu_ffn__decode_kernel"

class VM:
    def __init__(self, e): self.e = e; self.ops = []
    def issue(self, tag, line, definite=True):
        self.e(line); self.ops.append((tag, definite))
    def wait(self, tag):
        idx = [i for i, (t, d) in enumerate(self.ops) if t == tag]
        if not idx: return
        idx = max(idx)
        n = sum(1 for t, d in self.ops[idx+1:] if d)
        assert n <= 63, (tag, n)
        self.e(f"s_waitcnt vmcnt({n})")
        self.ops = self.ops[idx+1:]
        return n
    def count_after(self, tag):
        idx = max(i for i, (t, d) in enumerate(self.ops) if t == tag)
        return sum(1 for t, d in self.ops[idx+1:] if d)
    def wait_leave(self, n):
        if sum(1 for t, d in self.ops if d) <= n and all(d for t, d in self.ops): return
        self.e(f"s_waitcnt vmcnt({n})")
        while sum(1 for t, d in self.ops if d) > n: self.ops.pop(0)
    def drain(self):
        self.e("s_waitcnt vmcnt(0)"); self.ops = []

def gen(cfg):
    MIMIC = cfg.get("mimic", True)
    STAMPS = cfg.get("stamps", False)
    WIN = cfg.get("win", 16)
    NT = cfg.get("nt", "nt")
    NTW = cfg.get("ntw", "nt")
    SPIN = cfg.get("spin", 200000)
    e = E(); vm = VM(e)
    stamp_regs = [76+2*k for k in range(10)] + [12, 14, 16, 18, 20, 22]
    stamp_n = [0]
    def stamp():
        if not STAMPS: return
        k = stamp_n[0]; stamp_n[0] += 1
        r = stamp_regs[k]
        e(f"s_memrealtime s[{r}:{r+1}]")
        e("s_waitcnt lgkmcnt(0)")
    SX, SWQ, SWG, SWU, SK, SV, SWD, SWO, SWS, SOUT, SDBG = 28, 32, 36, 40, 44, 48, 52, 56, 60, 64, 68
    srd = lambda b: f"s[{b}:{b+3}]"
    S_MASK = 72
    S_T = 73; S_T2 = 74; S_SPIN = 75
    S_SEL0, S_SEL1 = 100, 101
    S_B, S_HKV, S_S, S_CB = 4, 5, 6, 7
    QB, ML, PO, PF = 0, 0x8000, 0x100000, 0x200000
    L_RED = 0
    L_HB = 1536
    L_MX = 1664
    L_LS = 1920
    L_OBC = 2176
    L_FIN = 2304
    L_OB = 2560
    OBW = 8*528
    LDS = L_OB + 4*OBW
    T, T2 = S_T, S_T2

    e(kernel_head(NAME))
    e(f"""
    s_cmp_ge_u32 s2, 256
    s_cbranch_scc1 L_end
    s_load_dwordx16 s[4:19], s[0:1], 0
    s_load_dwordx8 s[20:27], s[0:1], 64
    v_and_b32 v1, 63, v0
    v_lshrrev_b32 v10, 6, v0
    v_readfirstlane_b32 s3, v10
    s_mov_b32 s{S_MASK}, 0xffff0000
    s_mov_b32 s{S_SEL0}, 0x05040100
    s_mov_b32 s{S_SEL1}, 0x07060302
    """)
    e(f"""
    v_lshrrev_b32 v11, 1, v1
    v_lshlrev_b32 v11, 3, v11
    v_lshlrev_b32 v12, 8, v10
    v_add_u32 v11, v11, v12            ; row0
    v_and_b32 v12, 1, v1
    v_lshlrev_b32 v12, 4, v12          ; cc*16
    v_lshlrev_b32 v2, 13, v11
    v_add_u32 v2, v2, v12
    s_movk_i32 s{T}, 7168
    v_mul_lo_u32 v3, v11, s{T}
    v_add_u32 v3, v3, v12
    v_lshlrev_b32 v4, 5, v1
    v_lshlrev_b32 v5, 1, v11
    v_lshlrev_b32 v57, 3, v0
    v_and_b32 v11, 3, v1
    v_lshlrev_b32 v11, 2, v11
    v_bfe_u32 v12, v1, 2, 2
    v_add_u32 v11, v11, v12
    v_lshlrev_b32 v11, 8, v11
    v_lshrrev_b32 v12, 4, v1
    v_lshlrev_b32 v12, 4, v12
    v_add_u32 v11, v11, v12
    v_lshlrev_b32 v12, 16, v10         ; w*65536
    v_add_u32 v6, v11, v12
    v_add_u32 v7, 4096, v6
    v_lshlrev_b32 v11, 4, v1
    v_add_u32 v8, v11, v12
    v_add_u32 v9, 4096, v8
    s_waitcnt lgkmcnt(0)
    """)
    stamp()
    def mk_srd(dst, plo, off_sgpr, size):
        if off_sgpr is None:
            e(f"s_mov_b32 s{dst}, s{plo}")
            e(f"s_and_b32 s{dst+1}, s{plo+1}, 0xffff")
        else:
            e(f"s_add_u32 s{dst}, s{plo}, s{off_sgpr}")
            e(f"s_addc_u32 s{dst+1}, s{plo+1}, 0")
            e(f"s_and_b32 s{dst+1}, s{dst+1}, 0xffff")
        e(f"s_mov_b32 s{dst+2}, {size}")
        e(f"s_mov_b32 s{dst+3}, 0x20000")
    mk_srd(SX, 4, None, 4096)
    for b in range(2):
        for hlf in range(2):
            vm.issue("x", f"buffer_load_dwordx4 v[{16+8*b+4*hlf}:{19+8*b+4*hlf}], v4, {srd(SX)}, 0 offen offset:{b*2048+hlf*16}")
    for b in range(2):
        vm.issue("x", f"buffer_load_dwordx4 v[{32+4*b}:{35+4*b}], v5, {srd(SX)}, 0 offen offset:{b*2048}")
    e(f"""
    s_and_b32 s96, s2, 7
    s_lshr_b32 s97, s2, 3
    s_lshl_b32 s98, s96, 5
    s_add_u32 s98, s98, s97           ; cb
    s_lshl_b32 s{T}, s98, 5
    """)
    mk_srd(SWQ, 10, T, 0)
    e(f"s_sub_u32 s{SWQ+2}, 0x800000, s{T}")
    e(f"s_mov_b32 s{T2}, 0")
    for i in range(8):
        vm.issue("wq", f"buffer_load_dwordx4 v[{128+4*i}:{131+4*i}], v2, {srd(SWQ)}, s{T2} offen {NTW}")
        if i < 7: e(f"s_add_u32 s{T2}, s{T2}, 8192")
    mk_srd(SWS, 26, None, 0x400000)
    e(f"""
    v_mov_b32 v112, -1
    v_mov_b32 v113, -1
    v_mov_b32 v114, -1
    v_mov_b32 v115, -1
    v_lshlrev_b32 v11, 4, v0           ; tid*16
    s_lshl_b32 s{T}, s2, 12
    s_add_u32 s{T}, s{T}, {PO}
    """)
    vm.issue("clr", f"buffer_store_dwordx4 v[112:115], v11, {srd(SWS)}, s{T} offen sc1")
    e(f"""
    s_lshl_b32 s{T}, s2, 13
    s_add_u32 s{T}, s{T}, {PF}
    """)
    vm.issue("clr", f"buffer_store_dwordx4 v[112:115], v11, {srd(SWS)}, s{T} offen sc1")
    e(f"s_add_u32 s{T}, s{T}, 4096")
    vm.issue("clr", f"buffer_store_dwordx4 v[112:115], v11, {srd(SWS)}, s{T} offen sc1")
    e(f"""
    v_lshlrev_b32 v12, 4, v10          ; w*16
    s_lshl_b32 s{T}, s2, 6
    s_add_u32 s{T}, s{T}, {ML}
    s_mov_b64 exec, 1
    """)
    vm.issue("clr", f"buffer_store_dwordx4 v[112:115], v12, {srd(SWS)}, s{T} offen sc1")
    e("s_mov_b64 exec, -1")
    e(f"""
    s_mul_i32 s99, s96, 28
    s_add_u32 s99, s99, s97           ; fb
    s_lshl_b32 s{T}, s99, 5
    """)
    mk_srd(SWG, 16, T, 0)
    mk_srd(SWU, 18, T, 0)
    e(f"""
    s_sub_u32 s{T2}, {7<<20}, s{T}
    s_cmp_lt_u32 s97, 28
    s_cselect_b32 s{SWG+2}, s{T2}, 0
    s_cselect_b32 s{SWU+2}, s{T2}, 0
    s_mov_b32 s{T2}, 0
    """)
    for i in range(8):
        vm.issue("wg", f"buffer_load_dwordx4 v[{160+4*i}:{163+4*i}], v3, {srd(SWG)}, s{T2} offen {NTW}")
        if i < 7: e(f"s_add_u32 s{T2}, s{T2}, 7168")
    e(f"s_mov_b32 s{T2}, 0")
    for i in range(8):
        vm.issue("wu", f"buffer_load_dwordx4 v[{192+4*i}:{195+4*i}], v3, {srd(SWU)}, s{T2} offen {NTW}")
        if i < 7: e(f"s_add_u32 s{T2}, s{T2}, 7168")
    e(f"s_lshl_b32 s{T}, s99, 15")
    mk_srd(SWD, 20, T, 0)
    e(f"""
    s_cmp_lt_u32 s97, 28
    s_cselect_b32 s{SWD+2}, 0x8000, 0
    """)
    WDR = 224
    def load_wd():
        e(f"s_mov_b32 s{T2}, 0")
        for i in range(16):
            vm.issue("wd", f"buffer_load_dwordx2 v[{WDR+2*i}:{WDR+2*i+1}], v57, {srd(SWD)}, s{T2} offen {NT}")
            if i < 15: e(f"s_add_u32 s{T2}, s{T2}, 2048")
    e(f"s_lshl_b32 s{T}, s2, 18")
    mk_srd(SK, 6, T, 0x40000)
    mk_srd(SV, 8, T, 0x40000)
    e(f"""
    s_lshr_b32 s{T}, s2, 3
    s_lshl_b32 s{T}, s{T}, 7
    s_bfe_u32 s{T2}, s2, 0x20001       ; (dq>>1)
    s_lshl_b32 s{T2}, s{T2}, 5
    s_add_u32 s{T}, s{T}, s{T2}
    s_and_b32 s{T2}, s2, 1
    s_lshl_b32 s{T2}, s{T2}, 2
    s_add_u32 s{T}, s{T}, s{T2}
    s_lshl_b32 s{T}, s{T}, 11
    """)
    mk_srd(SWO, 12, T, 28*2048)
    mk_srd(SOUT, 22, None, 4096)
    mk_srd(SDBG, 24, None, 256)
    e(f"""
    s_lshr_b32 s{S_B}, s2, 7
    s_bfe_u32 s{S_HKV}, s2, 0x20005
    s_and_b32 s{S_S}, s2, 31
    s_mov_b32 s{S_CB}, s98
    s_and_b32 s{T}, s2, 127
    s_lshl_b32 s{T}, s{T}, 4
    s_lshl_b32 s{T2}, s{S_B}, 11
    s_add_u32 s9, s{T}, s{T2}
    """)
    vm.wait("x")
    XS = 64
    for b in range(2):
        for q in range(8):
            e(f"v_lshlrev_b32 v{XS+16*b+2*q}, 16, v{16+8*b+q}")
            e(f"v_and_b32 v{XS+16*b+2*q+1}, s{S_MASK}, v{16+8*b+q}")
    def wave_red(regs, op="add", tmp=104, shifts=(8, 4, 2, 1)):
        o = {"add": "v_add_f32", "max": "v_max_f32"}[op]
        for sh in shifts:
            for r in regs: e(f"{o}_dpp v{r}, v{r}, v{r} row_ror:{sh} row_mask:0xf bank_mask:0xf")
        for sw in ("v_permlane16_swap_b32", "v_permlane32_swap_b32"):
            for k, r in enumerate(regs): e(f"v_mov_b32 v{tmp+k}, v{r}")
            for k, r in enumerate(regs): e(f"{sw} v{r}, v{tmp+k}")
            for k, r in enumerate(regs): e(f"{o} v{r}, v{r}, v{tmp+k}")
    for b in range(2):
        e(f"v_add_f32 v{96+b}, v{XS+16*b}, v{XS+16*b+1}")
    for q in range(2, 16):
        for b in range(2):
            e(f"v_add_f32 v{96+b}, v{96+b}, v{XS+16*b+q}")
    wave_red([96, 97])
    def rbf(dst, src):
        e(f"v_cvt_pk_bf16_f32 v{dst}, v{src}, v{src}")
        e(f"v_and_b32 v{dst}, s{S_MASK}, v{dst}")
    for b in range(2): e(f"v_mul_f32 v{96+b}, 0x3a800000, v{96+b}")
    for q in range(16):
        for b in range(2):
            e(f"v_sub_f32 v{XS+16*b+q}, v{XS+16*b+q}, v{96+b}")
    for b in range(2): e(f"v_mul_f32 v{98+b}, v{XS+16*b}, v{XS+16*b}")
    for q in range(1, 16):
        for b in range(2):
            e(f"v_fmac_f32 v{98+b}, v{XS+16*b+q}, v{XS+16*b+q}")
    wave_red([98, 99])
    for b in range(2):
        e(f"v_mul_f32 v{98+b}, 0x3a800000, v{98+b}")
        rbf(98+b, 98+b)
        e(f"v_add_f32 v{98+b}, 0x3727c5ac, v{98+b}")
        rbf(98+b, 98+b)
        e(f"v_sqrt_f32 v{98+b}, v{98+b}")
        rbf(98+b, 98+b)
        rbf(96+b, 96+b)
        e(f"v_rcp_f32 v{100+b}, v{98+b}")
    for b in range(2):
        for q in range(4):
            e(f"v_lshlrev_b32 v{64+8*b+2*q}, 16, v{32+4*b+q}")
            e(f"v_and_b32 v{64+8*b+2*q+1}, s{S_MASK}, v{32+4*b+q}")
    for b in range(2):
        for i in range(8):
            r = 64+8*b+i
            e(f"v_sub_f32 v{r}, v{r}, v{96+b}")
    for b in range(2):
        for i in range(0, 8, 2):
            r = 64+8*b+i
            e(f"v_cvt_pk_bf16_f32 v102, v{r}, v{r+1}")
            e(f"v_lshlrev_b32 v{r}, 16, v102")
            e(f"v_and_b32 v{r+1}, s{S_MASK}, v102")
    for b in range(2):
        for i in range(8):
            r = 64+8*b+i
            e(f"v_mul_f32 v102, v{r}, v{100+b}")
            e(f"v_fma_f32 v103, -v102, v{98+b}, v{r}")
            e(f"v_fma_f32 v{r}, v103, v{100+b}, v102")
    for i in range(0, 8, 2):
        for b in range(2):
            r = 64+8*b+i
            e(f"v_cvt_pk_bf16_f32 v102, v{r}, v{r+1}")
            e(f"v_lshlrev_b32 v{40+2*i+b}, 16, v102")
            e(f"v_and_b32 v{40+2*(i+1)+b}, s{S_MASK}, v102")
    stamp()
    ACC = 96
    def gemv(wbase, m):
        for i in range(8):
            for q in range(4):
                t = 112 + 2*((i*4+q) & 1)
                w = wbase + 4*i + q
                e(f"v_lshlrev_b32 v{t}, 16, v{w}")
                e(f"v_and_b32 v{t+1}, s{S_MASK}, v{w}")
                for p in range(2):
                    a = ACC + 2*(2*q+p)
                    sel = "op_sel:[0,0,0] op_sel_hi:[0,1,1]" if p == 0 else "op_sel:[1,0,0] op_sel_hi:[1,1,1]"
                    if i == 0:
                        sel2 = "op_sel:[0,0] op_sel_hi:[0,1]" if p == 0 else "op_sel:[1,0] op_sel_hi:[1,1]"
                        e(f"v_pk_mul_f32 v[{a}:{a+1}], v[{t}:{t+1}], v[40:41] {sel2}")
                    else:
                        e(f"v_pk_fma_f32 v[{a}:{a+1}], v[{t}:{t+1}], v[{40+2*i}:{41+2*i}], v[{a}:{a+1}] {sel}")
        A = lambda c, b: ACC + 2*c + b
        for c in range(4):
            for b in range(2): e(f"v_permlane32_swap_b32 v{A(c,b)}, v{A(c+4,b)}")
        for c in range(4):
            for b in range(2): e(f"v_add_f32 v{A(c,b)}, v{A(c,b)}, v{A(c+4,b)}")
        for c in range(2):
            for b in range(2): e(f"v_permlane16_swap_b32 v{A(c,b)}, v{A(c+2,b)}")
        for c in range(2):
            for b in range(2): e(f"v_add_f32 v{A(c,b)}, v{A(c,b)}, v{A(c+2,b)}")
        for sh in (2, 4, 8):
            for k in range(4): e(f"v_add_f32_dpp v{ACC+k}, v{ACC+k}, v{ACC+k} row_ror:{sh} row_mask:0xf bank_mask:0xf")
        e(f"v_swap_b32 v{ACC+1}, v{ACC+2}")
        e("s_mov_b32 exec_lo, 0x00030003")
        e("s_mov_b32 exec_hi, 0x00030003")
        e(f"ds_write_b64 v14, v[{ACC}:{ACC+1}] offset:{L_RED+m*512}")
        e(f"ds_write_b64 v14, v[{ACC+2}:{ACC+3}] offset:{L_RED+m*512+64}")
        e("s_mov_b64 exec, -1")
    e(f"""
    v_and_b32 v11, 1, v1
    v_lshlrev_b32 v11, 5, v11
    v_lshrrev_b32 v12, 4, v1
    v_lshlrev_b32 v12, 3, v12
    v_add_u32 v11, v11, v12
    v_lshlrev_b32 v12, 7, v10
    v_add_u32 v14, v11, v12
    """)
    def load_k(t):
        e(f"s_mov_b32 s{T2}, {t*8192}")
        for u in range(2):
            for j in range(4):
                a = 32*t + 16*u + 4*j
                vm.issue(f"k{t}", f"buffer_load_dwordx4 a[{a}:{a+3}], v{6+u}, {srd(SK)}, s{T2} offen offset:{j*64} {NT}")
    def load_v(t):
        e(f"s_mov_b32 s{T2}, {t*8192}")
        for i in range(8):
            r = 128 + 32*(t & 3) + 4*i
            vm.issue(f"v{t}", f"buffer_load_dwordx4 v[{r}:{r+3}], v{8+(i>>2)}, {srd(SV)}, s{T2} offen offset:{(i&3)*1024} {NT}")
    vm.wait("wq")
    stamp()
    gemv(128, 0)
    e("s_waitcnt lgkmcnt(0)")
    e("s_barrier")
    e(f"""
    v_bfe_u32 v11, v1, 3, 1
    v_lshlrev_b32 v11, 6, v11
    v_and_b32 v12, 7, v1
    v_lshlrev_b32 v12, 3, v12
    v_add_u32 v11, v11, v12            ; b*64 + cp*8
    ds_read_b64 v[96:97], v11 offset:{L_RED}
    ds_read_b64 v[98:99], v11 offset:{L_RED+128}
    ds_read_b64 v[100:101], v11 offset:{L_RED+256}
    ds_read_b64 v[102:103], v11 offset:{L_RED+384}
    v_bfe_u32 v12, v1, 3, 1
    v_lshlrev_b32 v12, 13, v12
    v_and_b32 v13, 7, v1
    v_lshlrev_b32 v13, 2, v13
    v_add_u32 v12, v12, v13
    s_lshl_b32 s{T}, s{S_CB}, 5
    s_waitcnt lgkmcnt(0)
    v_pk_add_f32 v[96:97], v[96:97], v[98:99]
    v_pk_add_f32 v[100:101], v[100:101], v[102:103]
    v_pk_add_f32 v[96:97], v[96:97], v[100:101]
    v_cvt_pk_bf16_f32 v13, v96, v97
    s_cmp_lg_u32 s3, 0
    s_cbranch_scc1 L_noqstore
    s_mov_b64 exec, 0xffff
    """)
    vm.issue("qst", f"buffer_store_dword v13, v12, {srd(SWS)}, s{T} offen sc1", definite=False)
    e("s_mov_b64 exec, -1")
    e("L_noqstore:")
    load_wd()
    load_k(0)
    vm.wait("wg")
    gemv(160, 1)
    load_k(1)
    vm.wait("wu")
    stamp()
    gemv(192, 2)
    e("s_waitcnt lgkmcnt(0)")
    e("s_barrier")
    e("s_cmp_lg_u32 s3, 0")
    e("s_cbranch_scc1 L_nosig")
    e(f"s_waitcnt vmcnt({vm.count_after('qst')})")
    e(f"""
    v_mov_b32 v11, 1
    s_and_b32 s{T}, s2, 3
    s_lshl_b32 s{T}, s{T}, 6
    v_mov_b32 v12, s{T}
    s_mov_b64 exec, 1
    """)
    vm.issue("sig", f"buffer_atomic_add v11, v12, {srd(SDBG)}, 0 offen sc1", definite=False)
    e("s_mov_b64 exec, -1")
    e("L_nosig:")
    e(f"""
    v_bfe_u32 v11, v1, 4, 1
    v_lshlrev_b32 v11, 6, v11
    v_and_b32 v12, 15, v1
    v_lshlrev_b32 v13, 2, v12
    v_add_u32 v11, v11, v13             ; b*64+col*4
    """)
    for m in (1, 2):
        for w in range(4):
            e(f"ds_read_b32 v{96+4*(m-1)+w}, v11 offset:{L_RED+m*512+w*128}")
    e(f"""
    v_lshlrev_b32 v12, 3, v12           ; col*8
    v_bfe_u32 v13, v1, 4, 1
    v_lshlrev_b32 v13, 2, v13
    v_add_u32 v12, v12, v13
    s_waitcnt lgkmcnt(0)
    v_add_f32 v96, v96, v97
    v_add_f32 v98, v98, v99
    v_add_f32 v100, v100, v101
    v_add_f32 v102, v102, v103
    v_add_f32 v96, v96, v98
    v_add_f32 v100, v100, v102
    v_cvt_pk_bf16_f32 v97, v96, v100
    v_lshlrev_b32 v96, 16, v97          ; g
    v_and_b32 v100, s{S_MASK}, v97      ; u
    v_mul_f32 v98, 0xbfb8aa3b, v96      ; -g*log2e
    v_exp_f32 v98, v98
    v_add_f32 v98, 1.0, v98
    v_rcp_f32 v99, v98
    v_mul_f32 v101, v96, v99
    v_fma_f32 v102, -v101, v98, v96
    v_fma_f32 v102, v102, v99, v101
    v_cmp_eq_f32 vcc, 0x7f800000, v98
    v_cndmask_b32 v101, v102, v101, vcc
    """)
    rbf(101, 101)
    e("v_mul_f32 v101, v101, v100")
    rbf(101, 101)
    e(f"ds_write_b32 v12, v101 offset:{L_HB}")
    e("v_mov_b32 v11, 0")
    e("s_waitcnt lgkmcnt(0)")
    for k in range(8):
        e(f"ds_read_b128 v[{64+4*k}:{67+4*k}], v11 offset:{L_HB+16*k}")
    stamp()
    def pace(next_n):
        vm.wait_leave(max(WIN - next_n, 0))
    vm.wait("wd")
    load_k(2)
    e("s_waitcnt lgkmcnt(0)")
    F0, F1 = 2, 12
    def rowfma(wreg_pairs, opair, first):
        for b, F in ((0, F0), (1, F1)):
            for hlf in range(2):
                wp = wreg_pairs[hlf]; a = F + 2*hlf
                if first:
                    e(f"v_pk_mul_f32 v[{a}:{a+1}], v[{wp}:{wp+1}], v[{opair}:{opair+1}] op_sel:[0,{b}] op_sel_hi:[1,{b}]")
                else:
                    e(f"v_pk_fma_f32 v[{a}:{a+1}], v[{wp}:{wp+1}], v[{opair}:{opair+1}], v[{a}:{a+1}] op_sel:[0,{b},0] op_sel_hi:[1,{b},1]")
    for i in range(16):
        t = 96 + 4*(i & 1)
        for d in range(2):
            e(f"v_lshlrev_b32 v{t+2*d}, 16, v{WDR+2*i+d}")
            e(f"v_and_b32 v{t+2*d+1}, s{S_MASK}, v{WDR+2*i+d}")
        rowfma((t, t+2), 64+2*i, i == 0)
    pace(8); load_k(3)
    e(f"""
    s_cmp_lg_u32 s3, 0
    s_cbranch_scc1 L_nopoll1
    v_and_b32 v40, 3, v1
    v_lshlrev_b32 v40, 6, v40
    """)
    vm.issue("poll", f"buffer_load_dword v41, v40, {srd(SDBG)}, 0 offen sc1", definite=False)
    e("L_nopoll1:")
    pace(8); load_k(4)
    e("s_cmp_lg_u32 s3, 0")
    e("s_cbranch_scc1 L_qok")
    e(f"s_waitcnt vmcnt({vm.count_after('poll')})")
    e(f"""
    s_mov_b32 s{S_SPIN}, 0
L_qspin:
    v_cmp_eq_u32 vcc, 64, v41
    s_nop 1
    s_cmp_eq_u64 vcc, -1
    s_cbranch_scc1 L_qok
    s_add_u32 s{S_SPIN}, s{S_SPIN}, 1
    s_cmp_gt_u32 s{S_SPIN}, {SPIN}
    s_cbranch_scc1 L_end
    buffer_load_dword v41, v40, {srd(SDBG)}, 0 offen sc1
    s_waitcnt vmcnt(0)
    s_branch L_qspin
L_qok:
    s_barrier
    v_and_b32 v40, 7, v1
    v_lshlrev_b32 v40, 8, v40
    v_lshrrev_b32 v41, 4, v1
    v_lshlrev_b32 v41, 4, v41
    v_add_u32 v40, v40, v41
    s_lshl_b32 s{T}, s{S_B}, 13
    s_lshl_b32 s{T2}, s{S_HKV}, 11
    s_add_u32 s{T}, s{T}, s{T2}
    """)
    for j in range(4):
        vm.issue("q", f"buffer_load_dwordx4 v[{16+4*j}:{19+4*j}], v40, {srd(SWS)}, s{T} offen offset:{j*64} sc1")
    load_k(5)
    vm.wait("q")
    stamp()
    SCALE = 0x3db504f3
    e(f"s_mov_b32 s10, {hex(SCALE)}")
    e(f"s_mov_b32 s11, {hex(SCALE)}")
    def qk(t):
        for j in range(4):
            for u in range(2):
                a = 32*t + 16*u + 4*j; s = 64 + 8*t + 4*u
                c = "0" if j == 0 else f"v[{s}:{s+3}]"
                e(f"v_mfma_f32_16x16x32_bf16 v[{s}:{s+3}], a[{a}:{a+3}], v[{16+4*j}:{19+4*j}], {c}")
    def rnd(t):
        for z in range(4):
            r = 64 + 8*t + 2*z; tmp = 40 + (z & 1)
            if MIMIC:
                e(f"v_cvt_pk_bf16_f32 v{tmp}, v{r}, v{r+1}")
                e(f"v_lshlrev_b32 v{r}, 16, v{tmp}")
                e(f"v_and_b32 v{r+1}, s{S_MASK}, v{tmp}")
                e(f"v_pk_mul_f32 v[{r}:{r+1}], v[{r}:{r+1}], s[10:11]")
                e(f"v_cvt_pk_bf16_f32 v{tmp}, v{r}, v{r+1}")
                e(f"v_lshlrev_b32 v{r}, 16, v{tmp}")
                e(f"v_and_b32 v{r+1}, s{S_MASK}, v{tmp}")
            else:
                e(f"v_pk_mul_f32 v[{r}:{r+1}], v[{r}:{r+1}], s[10:11]")
    qk(0); qk(1); rnd(0); qk(2); rnd(1)
    pace(8); load_k(6)
    qk(3); rnd(2); qk(4); rnd(3)
    pace(8); load_k(7)
    vm.wait("k5"); qk(5); rnd(4)
    pace(8); load_v(0)
    vm.wait("k6"); qk(6); rnd(5)
    pace(8); load_v(1)
    vm.wait("k7"); qk(7); rnd(6)
    pace(8); load_v(2)
    rnd(7)
    stamp()
    e("v_max3_f32 v40, v64, v65, v66")
    e("v_max3_f32 v41, v67, v68, v69")
    k = 70
    while k + 3 < 128:
        e(f"v_max3_f32 v40, v40, v{k}, v{k+1}")
        e(f"v_max3_f32 v41, v41, v{k+2}, v{k+3}")
        k += 4
    e(f"v_max3_f32 v40, v40, v{k}, v{k+1}")
    e("v_max_f32 v40, v40, v41")
    for sw in ("v_permlane16_swap_b32", "v_permlane32_swap_b32"):
        e("v_mov_b32 v41, v40")
        e(f"{sw} v40, v41")
        e("v_max_f32 v40, v40, v41")
    e(f"""
    v_and_b32 v42, 15, v1
    v_lshlrev_b32 v42, 2, v42           ; n*4
    v_lshlrev_b32 v43, 6, v10
    v_add_u32 v43, v43, v42             ; w*64+n*4
    ds_write_b32 v43, v40 offset:{L_MX}
    s_waitcnt lgkmcnt(0)
    s_barrier
    ds_read_b32 v44, v42 offset:{L_MX}
    ds_read_b32 v45, v42 offset:{L_MX+64}
    ds_read_b32 v46, v42 offset:{L_MX+128}
    ds_read_b32 v47, v42 offset:{L_MX+192}
    s_mov_b32 s10, 0x3fb8aa3b
    s_waitcnt lgkmcnt(0)
    v_max3_f32 v44, v44, v45, v46
    v_max_f32 v44, v44, v47
    v_mul_f32 v45, s10, v44             ; M*log2e
    """)
    for r in range(64, 128):
        e(f"v_fma_f32 v{r}, v{r}, s10, -v45")
    for r in range(64, 128):
        e(f"v_exp_f32 v{r}, v{r}")
    e("v_add_f32 v46, v64, v65")
    e("v_add_f32 v47, v66, v67")
    for r in range(68, 128, 2):
        e(f"v_add_f32 v46, v46, v{r}")
        e(f"v_add_f32 v47, v47, v{r+1}")
    e("v_add_f32 v46, v46, v47")
    for z in range(32):
        e(f"v_cvt_pk_bf16_f32 v{64+z}, v{64+2*z}, v{65+2*z}")
    for sw in ("v_permlane16_swap_b32", "v_permlane32_swap_b32"):
        e("v_mov_b32 v47, v46")
        e(f"{sw} v46, v47")
        e("v_add_f32 v46, v46, v47")
    e(f"ds_write_b32 v43, v46 offset:{L_LS}")
    pace(8); load_v(3)
    e(f"""
    s_waitcnt lgkmcnt(0)
    s_barrier
    s_cmp_lg_u32 s3, 0
    s_cbranch_scc1 L_noml
    ds_read_b32 v46, v42 offset:{L_LS}
    ds_read_b32 v47, v42 offset:{L_LS+64}
    ds_read_b32 v48, v42 offset:{L_LS+128}
    ds_read_b32 v49, v42 offset:{L_LS+192}
    v_lshlrev_b32 v50, 7, v42           ; n*512
    s_lshl_b32 s{T}, s{S_HKV}, 12       ; hkv*8*512
    s_lshl_b32 s{T2}, s{S_B}, 8
    s_add_u32 s{T}, s{T}, s{T2}
    s_lshl_b32 s{T2}, s{S_S}, 3
    s_add_u32 s{T}, s{T}, s{T2}
    s_add_u32 s{T}, s{T}, {ML}
    s_waitcnt lgkmcnt(0)
    v_add_f32 v46, v46, v47
    v_add_f32 v48, v48, v49
    v_add_f32 v45, v46, v48
    s_mov_b64 exec, 0xff
    """)
    vm.issue("mlst", f"buffer_store_dwordx2 v[44:45], v50, {srd(SWS)}, s{T} offen sc1", definite=False)
    e("s_mov_b64 exec, -1")
    e("L_noml:")
    stamp()
    def pv(t):
        slot = 128 + 32*(t & 3)
        for j in range(8):
            q, p = j >> 1, j & 1
            T4 = 16 + 4*(j & 3)
            for z in range(4):
                e(f"v_perm_b32 v{T4+z}, v{slot+4*(2*z+1)+q}, v{slot+4*(2*z)+q}, s{S_SEL1 if p else S_SEL0}")
            c = "0" if t == 0 else f"v[{32+4*j}:{35+4*j}]"
            e(f"v_mfma_f32_16x16x32_bf16 v[{32+4*j}:{35+4*j}], v[{T4}:{T4+3}], v[{64+4*t}:{67+4*t}], {c}")
    WOR = 96
    e("v_lshlrev_b32 v11, 3, v0")
    vm.wait("v0"); pv(0)
    pace(8); load_v(4)
    pace(8)
    for i in range(16):
        off = (8*(i & 3) + (i >> 2))*2048
        e(f"s_mov_b32 s{T2}, {off}")
        vm.issue("wo", f"buffer_load_dwordx2 v[{WOR+2*i}:{WOR+2*i+1}], v11, {srd(SWO)}, s{T2} offen {NT}")
    vm.wait("v1"); pv(1)
    pace(8); load_v(5)
    vm.wait("v2"); pv(2)
    e(f"""
    v_lshrrev_b32 v6, 1, v1
    v_lshlrev_b32 v6, 3, v6
    v_lshrrev_b32 v7, 1, v10
    v_lshlrev_b32 v7, 8, v7
    v_add_u32 v6, v6, v7
    s_lshr_b32 s8, s2, 3
    s_lshl_b32 s8, s8, 9
    s_add_u32 s8, s8, {ML}
    """)
    pace(8)
    vm.issue("ml", f"buffer_load_dwordx2 a[0:1], v6, {srd(SWS)}, s8 offen sc1")
    load_v(6)
    vm.wait("v3"); pv(3)
    pace(8); load_v(7)
    vm.wait("v4"); pv(4)
    vm.wait("wo")
    def unpack_wo(i0):
        for i in range(i0, i0+8):
            for d in range(2):
                e(f"v_lshlrev_b32 v{128+4*i+2*d}, 16, v{WOR+2*i+d}")
                e(f"v_and_b32 v{129+4*i+2*d}, s{S_MASK}, v{WOR+2*i+d}")
    unpack_wo(0)
    vm.wait("v5"); pv(5)
    unpack_wo(8)
    vm.wait("ml")
    e(f"""
    v_accvgpr_read_b32 v96, a0
    v_accvgpr_read_b32 v97, a1
    s_mov_b32 s{S_SPIN}, 0
L_mlspin:
    v_max_u32 v98, v96, v97
    v_cmp_eq_u32 vcc, -1, v98
    s_nop 1
    s_cmp_eq_u64 vcc, 0
    s_cbranch_scc1 L_mlok
    s_add_u32 s{S_SPIN}, s{S_SPIN}, 1
    s_cmp_gt_u32 s{S_SPIN}, {SPIN}
    s_cbranch_scc1 L_end
    buffer_load_dwordx2 v[96:97], v6, {srd(SWS)}, s8 offen sc1
    s_waitcnt vmcnt(0)
    s_branch L_mlspin
L_mlok:
    v_mov_b32 v98, v96
    """)
    wave_red([98], op="max", tmp=104, shifts=(8, 4, 2))
    e("v_sub_f32 v98, v96, v98")
    e("v_mul_f32 v98, 0x3fb8aa3b, v98")
    e("v_exp_f32 v98, v98")
    e("v_mul_f32 v99, v98, v97")
    wave_red([99], op="add", tmp=104, shifts=(8, 4, 2))
    e("""
    v_rcp_f32 v100, v99
    v_mul_f32 v101, v98, v100
    v_fma_f32 v102, -v101, v99, v98
    v_fma_f32 v100, v102, v100, v101    ; f = e_s / L
    """)
    e(f"""
    v_and_b32 v96, 15, v1
    v_mul_u32_u24 v96, 528, v96
    v_lshrrev_b32 v97, 4, v1
    v_lshlrev_b32 v97, 7, v97
    v_add_u32 v96, v96, v97
    v_mul_u32_u24 v97, {OBW}, v10
    v_add_u32 v96, v96, v97
    v_lshrrev_b32 v98, 5, v0
    v_mul_u32_u24 v97, 528, v98
    v_and_b32 v99, 31, v0
    v_lshlrev_b32 v101, 4, v99
    v_add_u32 v97, v97, v101
    v_lshlrev_b32 v98, 15, v98
    v_lshrrev_b32 v101, 2, v99
    v_lshlrev_b32 v101, 12, v101
    v_add_u32 v98, v98, v101
    v_and_b32 v101, 3, v99
    v_lshlrev_b32 v101, 4, v101
    v_add_u32 v98, v98, v101
    s_lshl_b32 s10, s{S_HKV}, 18
    s_lshl_b32 s{T}, s{S_B}, 11
    s_add_u32 s10, s10, s{T}
    s_lshl_b32 s{T}, s{S_S}, 6
    s_add_u32 s10, s10, s{T}
    s_add_u32 s10, s10, {PO}
    v_lshrrev_b32 v99, 1, v10
    v_lshlrev_b32 v99, 11, v99
    v_lshrrev_b32 v101, 1, v1
    v_lshlrev_b32 v101, 6, v101
    v_add_u32 v99, v99, v101
    v_and_b32 v101, 1, v10
    v_lshlrev_b32 v101, 5, v101
    v_add_u32 v99, v99, v101
    v_and_b32 v101, 1, v1
    v_lshlrev_b32 v101, 4, v101
    v_add_u32 v99, v99, v101
    s_lshl_b32 s11, s2, 12
    s_add_u32 s11, s11, {PO}
    v_and_b32 v101, 1, v10
    v_lshlrev_b32 v101, 6, v101
    v_and_b32 v102, 1, v1
    v_lshlrev_b32 v102, 5, v102
    v_add_u32 v101, v101, v102
    v_lshrrev_b32 v102, 4, v1
    v_lshlrev_b32 v102, 3, v102
    v_add_u32 v101, v101, v102
    v_lshrrev_b32 v102, 1, v10
    v_lshlrev_b32 v102, 2, v102
    v_add_u32 v101, v101, v102
    v_mov_b32 v102, 0
    v_lshrrev_b32 v103, 1, v0
    v_lshlrev_b32 v103, 13, v103
    v_and_b32 v104, 1, v0
    v_lshlrev_b32 v104, 4, v104
    v_add_u32 v103, v103, v104
    s_lshl_b32 s96, s2, 5
    s_add_u32 s96, s96, {PF}
    s_add_u32 s97, s96, 0x100000
    v_lshlrev_b32 v104, 5, v0
    s_lshl_b32 s98, s2, 13
    s_add_u32 s98, s98, {PF}
    v_lshlrev_b32 v105, 5, v10
    v_lshrrev_b32 v106, 4, v1
    v_lshlrev_b32 v106, 3, v106
    v_add_u32 v105, v105, v106
    v_lshlrev_b32 v106, 3, v1
    v_lshlrev_b32 v107, 2, v1
    v_and_b32 v107, 12, v107
    """)
    vm.issue("res", f"buffer_load_dword v108, v107, {srd(SX)}, s9 offen")
    vm.wait("v6"); pv(6)
    vm.wait("v7")
    vm.wait("res")
    stamp()
    pv(7)
    e("v_lshlrev_b32 v110, 16, v108")
    e(f"v_and_b32 v111, s{S_MASK}, v108")
    e("s_mov_b32 exec_lo, 0x00ff00ff")
    e("s_mov_b32 exec_hi, 0x00ff00ff")
    for j in range(8):
        e(f"ds_write_b128 v96, v[{32+4*j}:{35+4*j}] offset:{L_OB+16*j}")
    e("s_mov_b64 exec, -1")
    e("s_waitcnt lgkmcnt(0)")
    e("s_barrier")
    for w in range(4):
        e(f"ds_read_b128 v[{16+4*w}:{19+4*w}], v97 offset:{L_OB+w*OBW}")
    e("s_waitcnt lgkmcnt(2)")
    e("v_pk_add_f32 v[16:17], v[16:17], v[20:21]")
    e("v_pk_add_f32 v[18:19], v[18:19], v[22:23]")
    e("s_waitcnt lgkmcnt(0)")
    e("v_pk_add_f32 v[24:25], v[24:25], v[28:29]")
    e("v_pk_add_f32 v[26:27], v[26:27], v[30:31]")
    e("v_pk_add_f32 v[16:17], v[16:17], v[24:25]")
    e("v_pk_add_f32 v[18:19], v[18:19], v[26:27]")
    vm.issue("post", f"buffer_store_dwordx4 v[16:19], v98, {srd(SWS)}, s10 offen sc1")
    e(f"""
    s_mov_b32 s{S_SPIN}, 0
L_pospin:
    buffer_load_dwordx4 v[20:23], v99, {srd(SWS)}, s11 offen sc1
    s_add_u32 s{S_SPIN}, s{S_SPIN}, 1
    s_cmp_gt_u32 s{S_SPIN}, {SPIN}
    s_cbranch_scc1 L_end
    s_waitcnt vmcnt(0)
    v_max3_u32 v24, v20, v21, v22
    v_max_u32 v24, v24, v23
    v_cmp_eq_u32 vcc, -1, v24
    s_nop 1
    s_cmp_eq_u64 vcc, 0
    s_cbranch_scc0 L_pospin
    """)
    vm.ops = []
    stamp()
    e("v_pk_mul_f32 v[20:21], v[20:21], v[100:101] op_sel:[0,0] op_sel_hi:[1,0]")
    e("v_pk_mul_f32 v[22:23], v[22:23], v[100:101] op_sel:[0,0] op_sel_hi:[1,0]")
    e("v_permlane32_swap_b32 v20, v22")
    e("v_permlane32_swap_b32 v21, v23")
    e("v_add_f32 v20, v20, v22")
    e("v_add_f32 v21, v21, v23")
    e("v_permlane16_swap_b32 v20, v21")
    e("v_add_f32 v20, v20, v21")
    for sh in (2, 4, 8):
        e(f"v_add_f32_dpp v20, v20, v20 row_ror:{sh} row_mask:0xf bank_mask:0xf")
    rbf(20, 20)
    e("s_mov_b32 exec_lo, 0x00030003")
    e("s_mov_b32 exec_hi, 0x00030003")
    e(f"ds_write_b32 v101, v20 offset:{L_OBC}")
    e("s_mov_b64 exec, -1")
    e("s_waitcnt lgkmcnt(0)")
    e("s_barrier")
    for k in range(8):
        e(f"ds_read_b128 v[{16+4*k}:{19+4*k}], v102 offset:{L_OBC+16*k}")
    for i in range(16):
        if i % 2 == 0: e(f"s_waitcnt lgkmcnt({7 - i//2})")
        rowfma((128+4*i, 130+4*i), 16+2*i, False)
    vm.issue("pfst", f"buffer_store_dwordx4 v[{F0}:{F0+3}], v103, {srd(SWS)}, s96 offen sc1")
    vm.issue("pfst", f"buffer_store_dwordx4 v[{F1}:{F1+3}], v103, {srd(SWS)}, s97 offen sc1")
    e(f"""
    s_mov_b32 s{S_SPIN}, 0
L_pfspin:
    buffer_load_dwordx4 v[20:23], v104, {srd(SWS)}, s98 offen sc1
    buffer_load_dwordx4 v[24:27], v104, {srd(SWS)}, s98 offen offset:16 sc1
    s_add_u32 s{S_SPIN}, s{S_SPIN}, 1
    s_cmp_gt_u32 s{S_SPIN}, {SPIN}
    s_cbranch_scc1 L_end
    s_waitcnt vmcnt(0)
    v_max3_u32 v28, v20, v21, v22
    v_max3_u32 v29, v23, v24, v25
    v_max3_u32 v28, v28, v26, v27
    v_max_u32 v28, v28, v29
    v_cmp_eq_u32 vcc, -1, v28
    s_nop 1
    s_cmp_eq_u64 vcc, 0
    s_cbranch_scc0 L_pfspin
    """)
    vm.ops = []
    stamp()
    for c in range(4): e(f"v_permlane32_swap_b32 v{20+c}, v{24+c}")
    e("v_pk_add_f32 v[20:21], v[20:21], v[24:25]")
    e("v_pk_add_f32 v[22:23], v[22:23], v[26:27]")
    for c in range(2): e(f"v_permlane16_swap_b32 v{20+c}, v{22+c}")
    e("v_pk_add_f32 v[20:21], v[20:21], v[22:23]")
    for sh in (1, 2, 4, 8):
        for k in range(2): e(f"v_add_f32_dpp v{20+k}, v{20+k}, v{20+k} row_ror:{sh} row_mask:0xf bank_mask:0xf")
    e("s_mov_b32 exec_lo, 0x00010001")
    e("s_mov_b32 exec_hi, 0x00010001")
    e(f"ds_write_b64 v105, v[20:21] offset:{L_FIN}")
    e("s_mov_b64 exec, -1")
    e("s_waitcnt lgkmcnt(0)")
    e("s_barrier")
    e("s_cmp_lg_u32 s3, 0")
    e("s_cbranch_scc1 L_end")
    e("s_mov_b64 exec, 15")
    for w in range(4):
        e(f"ds_read_b64 v[{20+2*w}:{21+2*w}], v106 offset:{L_FIN+32*w}")
    e("s_waitcnt lgkmcnt(0)")
    e("v_pk_add_f32 v[20:21], v[20:21], v[22:23]")
    e("v_pk_add_f32 v[24:25], v[24:25], v[26:27]")
    e("v_pk_add_f32 v[20:21], v[20:21], v[24:25]")
    e("v_pk_add_f32 v[20:21], v[20:21], v[110:111]")
    e("v_cvt_pk_bf16_f32 v20, v20, v21")
    e(f"buffer_store_dword v20, v107, {srd(SOUT)}, s9 offen")
    if STAMPS:
        stamp()
        e("s_mov_b64 exec, 1")
        e(f"s_add_u32 s{SX}, s26, {240<<20}")
        e(f"s_addc_u32 s{SX+1}, s27, 0")
        e(f"s_and_b32 s{SX+1}, s{SX+1}, 0xffff")
        e(f"s_mov_b32 s{SX+2}, 0x10000")
        e(f"s_lshl_b32 s{T}, s2, 7")
        e("v_mov_b32 v2, 0")
        for k in range(stamp_n[0]):
            r = stamp_regs[k]
            e(f"v_mov_b32 v4, s{r}")
            e(f"v_mov_b32 v5, s{r+1}")
            e(f"buffer_store_dwordx2 v[4:5], v2, {srd(SX)}, s{T} offen offset:{8*k}")
            e("s_nop 2")
    e("L_end:")
    e("s_endpgm")
    e(kernel_desc(NAME, 512, 102, 256))
    body, n = hazard.fix(e.text())
    hdr = HEADER_COMMENTS + f"; @launch grid=(256,1,1) block=(256,1,1) lds={LDS}\n" + '.amdgcn_target "amdgcn-amd-amdhsa--gfx950"\n.text\n'
    return hdr + body, n, LDS

if __name__ == "__main__":
    import json
    cfg = json.loads(sys.argv[2]) if len(sys.argv) > 2 else {}
    out = sys.argv[1]
    txt, n, lds = gen(cfg)
    open(out, "w").write(txt)
    print("nops inserted", n, "lines", txt.count("\n"), "lds", lds)
```

```python
import sys
from common import *
import hazard

NAME = "parallel_sum__gqa_block_cached__swiglu_ffn__decode_kernel"

class VM:
    def __init__(self, e): self.e = e; self.ops = []
    def issue(self, tag, line, definite=True):
        self.e(line); self.ops.append((tag, definite))
    def wait(self, tag):
        idx = [i for i, (t, d) in enumerate(self.ops) if t == tag]
        if not idx: return
        idx = max(idx)
        n = sum(1 for t, d in self.ops[idx+1:] if d)
        assert n <= 63, (tag, n)
        self.e(f"s_waitcnt vmcnt({n})")
        self.ops = self.ops[idx+1:]
        return n
    def count_after(self, tag):
        idx = max(i for i, (t, d) in enumerate(self.ops) if t == tag)
        return sum(1 for t, d in self.ops[idx+1:] if d)
    def wait_leave(self, n):
        if sum(1 for t, d in self.ops if d) <= n and all(d for t, d in self.ops): return
        self.e(f"s_waitcnt vmcnt({n})")
        while sum(1 for t, d in self.ops if d) > n: self.ops.pop(0)
    def drain(self):
        self.e("s_waitcnt vmcnt(0)"); self.ops = []

def gen(cfg):
    MIMIC = cfg.get("mimic", True)
    STAMPS = cfg.get("stamps", False)
    WIN = cfg.get("win", 16)
    NT = cfg.get("nt", "nt")
    NTW = cfg.get("ntw", "nt")
    SPIN = cfg.get("spin", 200000)
    e = E(); vm = VM(e)
    stamp_regs = [76+2*k for k in range(10)] + [12, 14, 16, 18, 20, 22]
    stamp_n = [0]
    def stamp():
        if not STAMPS: return
        k = stamp_n[0]; stamp_n[0] += 1
        r = stamp_regs[k]
        e(f"s_memrealtime s[{r}:{r+1}]")
        e("s_waitcnt lgkmcnt(0)")
    SX, SWQ, SWG, SWU, SK, SV, SWD, SWO, SWS, SOUT, SDBG = 28, 32, 36, 40, 44, 48, 52, 56, 60, 64, 68
    srd = lambda b: f"s[{b}:{b+3}]"
    S_MASK = 72
    S_T = 73; S_T2 = 74; S_SPIN = 75
    S_SEL0, S_SEL1 = 100, 101
    S_B, S_HKV, S_S, S_CB = 4, 5, 6, 7
    QP, GU, ML, PO, PF = 0, 0x20000, 0x60000, 0x100000, 0x200000
    L_HB = 1536
    L_MX = 1664
    L_LS = 1920
    L_OBC = 2176
    L_FIN = 2304
    L_OB = 2560
    OBW = 8*528
    LDS = L_OB + 4*OBW
    L_RED = L_OB
    L_XN = L_OB + 6144
    L_QS = L_OB + 8192
    T, T2 = S_T, S_T2

    e(kernel_head(NAME))
    e(f"""
    s_cmp_ge_u32 s2, 256
    s_cbranch_scc1 L_end
    s_load_dwordx16 s[4:19], s[0:1], 0
    s_load_dwordx8 s[20:27], s[0:1], 64
    v_and_b32 v1, 63, v0
    v_lshrrev_b32 v10, 6, v0
    v_readfirstlane_b32 s3, v10
    s_mov_b32 s{S_MASK}, 0xffff0000
    s_mov_b32 s{S_SEL0}, 0x05040100
    s_mov_b32 s{S_SEL1}, 0x07060302
    """)
    e(f"""
    s_and_b32 s96, s2, 3               ; rq
    s_lshr_b32 s97, s2, 2              ; cg
    s_lshl_b32 s98, s96, 8             ; rq*256
    v_lshrrev_b32 v11, 3, v1
    v_lshlrev_b32 v12, 6, v10
    v_add_u32 v11, v11, v12
    v_add_u32 v11, s98, v11            ; row0
    v_and_b32 v12, 7, v1
    v_lshlrev_b32 v12, 4, v12          ; cc*16
    v_lshlrev_b32 v2, 13, v11
    v_add_u32 v2, v2, v12
    s_movk_i32 s{T}, 7168
    v_mul_lo_u32 v3, v11, s{T}
    v_add_u32 v3, v3, v12
    v_lshlrev_b32 v4, 5, v1
    v_lshlrev_b32 v5, 6, v10
    v_add_u32 v5, v5, v1
    v_add_u32 v5, s98, v5
    v_lshlrev_b32 v5, 1, v5
    v_lshlrev_b32 v57, 3, v0
    v_and_b32 v11, 3, v1
    v_lshlrev_b32 v11, 2, v11
    v_bfe_u32 v12, v1, 2, 2
    v_add_u32 v11, v11, v12
    v_lshlrev_b32 v11, 8, v11
    v_lshrrev_b32 v12, 4, v1
    v_lshlrev_b32 v12, 4, v12
    v_add_u32 v11, v11, v12
    v_lshlrev_b32 v12, 16, v10         ; w*65536
    v_add_u32 v6, v11, v12
    v_add_u32 v7, 4096, v6
    v_lshlrev_b32 v11, 4, v1
    v_add_u32 v8, v11, v12
    v_add_u32 v9, 4096, v8
    s_waitcnt lgkmcnt(0)
    """)
    stamp()
    def mk_srd(dst, plo, off_sgpr, size):
        if off_sgpr is None:
            e(f"s_mov_b32 s{dst}, s{plo}")
            e(f"s_and_b32 s{dst+1}, s{plo+1}, 0xffff")
        else:
            e(f"s_add_u32 s{dst}, s{plo}, s{off_sgpr}")
            e(f"s_addc_u32 s{dst+1}, s{plo+1}, 0")
            e(f"s_and_b32 s{dst+1}, s{dst+1}, 0xffff")
        e(f"s_mov_b32 s{dst+2}, {size}")
        e(f"s_mov_b32 s{dst+3}, 0x20000")
    mk_srd(SX, 4, None, 4096)
    for b in range(2):
        for hlf in range(2):
            vm.issue("x", f"buffer_load_dwordx4 v[{16+8*b+4*hlf}:{19+8*b+4*hlf}], v4, {srd(SX)}, 0 offen offset:{b*2048+hlf*16}")
    for b in range(2):
        vm.issue("x", f"buffer_load_ushort v{32+b}, v5, {srd(SX)}, 0 offen offset:{b*2048}")
    e(f"s_lshl_b32 s{T}, s97, 7")
    mk_srd(SWQ, 10, T, 0)
    e(f"s_sub_u32 s{SWQ+2}, 0x800000, s{T}")
    e(f"s_mov_b32 s{T2}, 0")
    for i in range(8):
        vm.issue("wq", f"buffer_load_dwordx4 v[{128+4*i}:{131+4*i}], v2, {srd(SWQ)}, s{T2} offen {NTW}")
        if i < 7: e(f"s_add_u32 s{T2}, s{T2}, {8*8192}")
    mk_srd(SWS, 26, None, 0x400000)
    e(f"""
    v_mov_b32 v112, -1
    v_mov_b32 v113, -1
    v_mov_b32 v114, -1
    v_mov_b32 v115, -1
    v_lshlrev_b32 v11, 4, v0           ; tid*16
    s_lshl_b32 s{T}, s2, 12
    s_add_u32 s{T}, s{T}, {PO}
    """)
    vm.issue("clr", f"buffer_store_dwordx4 v[112:115], v11, {srd(SWS)}, s{T} offen sc1")
    e(f"""
    s_lshl_b32 s{T}, s2, 13
    s_add_u32 s{T}, s{T}, {PF}
    """)
    vm.issue("clr", f"buffer_store_dwordx4 v[112:115], v11, {srd(SWS)}, s{T} offen sc1")
    e(f"s_add_u32 s{T}, s{T}, 4096")
    vm.issue("clr", f"buffer_store_dwordx4 v[112:115], v11, {srd(SWS)}, s{T} offen sc1")
    e(f"""
    v_lshlrev_b32 v12, 4, v10          ; w*16
    s_lshl_b32 s{T}, s2, 6
    s_add_u32 s{T}, s{T}, {ML}
    s_mov_b64 exec, 1
    """)
    vm.issue("clr", f"buffer_store_dwordx4 v[112:115], v12, {srd(SWS)}, s{T} offen sc1")
    e("s_mov_b64 exec, -1")
    e(f"s_lshl_b32 s{T}, s97, 7")
    mk_srd(SWG, 16, T, 0)
    mk_srd(SWU, 18, T, 0)
    e(f"""
    s_sub_u32 s{T2}, {7<<20}, s{T}
    s_cmp_lt_u32 s2, 224
    s_cselect_b32 s{SWG+2}, s{T2}, 0
    s_cselect_b32 s{SWU+2}, s{T2}, 0
    s_mov_b32 s{T2}, 0
    """)
    for i in range(8):
        vm.issue("wg", f"buffer_load_dwordx4 v[{160+4*i}:{163+4*i}], v3, {srd(SWG)}, s{T2} offen {NTW}")
        if i < 7: e(f"s_add_u32 s{T2}, s{T2}, {8*7168}")
    e(f"s_mov_b32 s{T2}, 0")
    for i in range(8):
        vm.issue("wu", f"buffer_load_dwordx4 v[{192+4*i}:{195+4*i}], v3, {srd(SWU)}, s{T2} offen {NTW}")
        if i < 7: e(f"s_add_u32 s{T2}, s{T2}, {8*7168}")
    e(f"s_lshl_b32 s{T}, s2, 15")
    mk_srd(SWD, 20, T, 0)
    e(f"""
    s_cmp_lt_u32 s2, 224
    s_cselect_b32 s{SWD+2}, 0x8000, 0
    """)
    WDR = 224
    def load_wd():
        e(f"s_mov_b32 s{T2}, 0")
        for i in range(16):
            vm.issue("wd", f"buffer_load_dwordx2 v[{WDR+2*i}:{WDR+2*i+1}], v57, {srd(SWD)}, s{T2} offen {NT}")
            if i < 15: e(f"s_add_u32 s{T2}, s{T2}, 2048")
    e(f"s_lshl_b32 s{T}, s2, 18")
    mk_srd(SK, 6, T, 0x40000)
    mk_srd(SV, 8, T, 0x40000)
    e(f"""
    s_lshr_b32 s{T}, s2, 3
    s_lshl_b32 s{T}, s{T}, 7
    s_bfe_u32 s{T2}, s2, 0x20001       ; (dq>>1)
    s_lshl_b32 s{T2}, s{T2}, 5
    s_add_u32 s{T}, s{T}, s{T2}
    s_and_b32 s{T2}, s2, 1
    s_lshl_b32 s{T2}, s{T2}, 2
    s_add_u32 s{T}, s{T}, s{T2}
    s_lshl_b32 s{T}, s{T}, 11
    """)
    mk_srd(SWO, 12, T, 28*2048)
    mk_srd(SOUT, 22, None, 4096)
    mk_srd(SDBG, 24, None, 256)
    e(f"""
    s_lshr_b32 s{S_B}, s2, 7
    s_bfe_u32 s{S_HKV}, s2, 0x20005
    s_and_b32 s{S_S}, s2, 31
    s_mov_b32 s{S_CB}, s97           ; cg
    s_mov_b32 s8, s96                 ; rq
    s_and_b32 s{T}, s2, 127
    s_lshl_b32 s{T}, s{T}, 4
    s_lshl_b32 s{T2}, s{S_B}, 11
    s_add_u32 s9, s{T}, s{T2}
    """)
    vm.wait("x")
    XS = 64
    for b in range(2):
        for q in range(8):
            e(f"v_lshlrev_b32 v{XS+16*b+2*q}, 16, v{16+8*b+q}")
            e(f"v_and_b32 v{XS+16*b+2*q+1}, s{S_MASK}, v{16+8*b+q}")
    def wave_red(regs, op="add", tmp=104, shifts=(8, 4, 2, 1)):
        o = {"add": "v_add_f32", "max": "v_max_f32"}[op]
        for sh in shifts:
            for r in regs: e(f"{o}_dpp v{r}, v{r}, v{r} row_ror:{sh} row_mask:0xf bank_mask:0xf")
        for sw in ("v_permlane16_swap_b32", "v_permlane32_swap_b32"):
            for k, r in enumerate(regs): e(f"v_mov_b32 v{tmp+k}, v{r}")
            for k, r in enumerate(regs): e(f"{sw} v{r}, v{tmp+k}")
            for k, r in enumerate(regs): e(f"{o} v{r}, v{r}, v{tmp+k}")
    for b in range(2):
        e(f"v_add_f32 v{96+b}, v{XS+16*b}, v{XS+16*b+1}")
    for q in range(2, 16):
        for b in range(2):
            e(f"v_add_f32 v{96+b}, v{96+b}, v{XS+16*b+q}")
    wave_red([96, 97])
    def rbf(dst, src):
        e(f"v_cvt_pk_bf16_f32 v{dst}, v{src}, v{src}")
        e(f"v_and_b32 v{dst}, s{S_MASK}, v{dst}")
    for b in range(2): e(f"v_mul_f32 v{96+b}, 0x3a800000, v{96+b}")
    for q in range(16):
        for b in range(2):
            e(f"v_sub_f32 v{XS+16*b+q}, v{XS+16*b+q}, v{96+b}")
    for b in range(2): e(f"v_mul_f32 v{98+b}, v{XS+16*b}, v{XS+16*b}")
    for q in range(1, 16):
        for b in range(2):
            e(f"v_fmac_f32 v{98+b}, v{XS+16*b+q}, v{XS+16*b+q}")
    wave_red([98, 99])
    for b in range(2):
        e(f"v_mul_f32 v{98+b}, 0x3a800000, v{98+b}")
        rbf(98+b, 98+b)
        e(f"v_add_f32 v{98+b}, 0x3727c5ac, v{98+b}")
        rbf(98+b, 98+b)
        e(f"v_sqrt_f32 v{98+b}, v{98+b}")
        rbf(98+b, 98+b)
        rbf(96+b, 96+b)
        e(f"v_rcp_f32 v{100+b}, v{98+b}")
    for b in range(2):
        e(f"v_lshlrev_b32 v{64+b}, 16, v{32+b}")
    for b in range(2):
        e(f"v_sub_f32 v{64+b}, v{64+b}, v{96+b}")
    for b in range(2): rbf(64+b, 64+b)
    for b in range(2):
        e(f"v_mul_f32 v102, v{64+b}, v{100+b}")
        e(f"v_fma_f32 v103, -v102, v{98+b}, v{64+b}")
        e(f"v_fma_f32 v{64+b}, v103, v{100+b}, v102")
    for b in range(2): rbf(64+b, 64+b)
    e(f"""
    v_lshlrev_b32 v11, 9, v10
    v_lshlrev_b32 v12, 3, v1
    v_add_u32 v12, v12, v11             ; w*512 + l*8
    ds_write_b64 v12, v[64:65] offset:{L_XN}
    v_lshrrev_b32 v12, 3, v1
    v_lshlrev_b32 v12, 3, v12
    v_add_u32 v12, v12, v11             ; w*512 + (l>>3)*8
    s_waitcnt lgkmcnt(0)
    """)
    for i in range(8):
        e(f"ds_read_b64 v[{40+2*i}:{41+2*i}], v12 offset:{L_XN+64*i}")
    e(f"""
    v_and_b32 v14, 7, v1
    v_lshlrev_b32 v14, 5, v14
    v_lshrrev_b32 v12, 4, v1
    v_lshlrev_b32 v12, 3, v12
    v_add_u32 v14, v14, v12
    v_add_u32 v14, v14, v11
    s_waitcnt lgkmcnt(0)
    """)
    stamp()
    ACC = 96
    def gemv(wbase, m):
        for i in range(8):
            for q in range(4):
                t = 112 + 2*((i*4+q) & 1)
                w = wbase + 4*i + q
                e(f"v_lshlrev_b32 v{t}, 16, v{w}")
                e(f"v_and_b32 v{t+1}, s{S_MASK}, v{w}")
                for p in range(2):
                    a = ACC + 2*(2*q+p)
                    sel = "op_sel:[0,0,0] op_sel_hi:[0,1,1]" if p == 0 else "op_sel:[1,0,0] op_sel_hi:[1,1,1]"
                    if i == 0:
                        sel2 = "op_sel:[0,0] op_sel_hi:[0,1]" if p == 0 else "op_sel:[1,0] op_sel_hi:[1,1]"
                        e(f"v_pk_mul_f32 v[{a}:{a+1}], v[{t}:{t+1}], v[40:41] {sel2}")
                    else:
                        e(f"v_pk_fma_f32 v[{a}:{a+1}], v[{t}:{t+1}], v[{40+2*i}:{41+2*i}], v[{a}:{a+1}] {sel}")
        A = lambda c, b: ACC + 2*c + b
        for c in range(4):
            for b in range(2): e(f"v_permlane32_swap_b32 v{A(c,b)}, v{A(c+4,b)}")
        for c in range(4):
            e(f"v_pk_add_f32 v[{A(c,0)}:{A(c,1)}], v[{A(c,0)}:{A(c,1)}], v[{A(c+4,0)}:{A(c+4,1)}]")
        for c in range(2):
            for b in range(2): e(f"v_permlane16_swap_b32 v{A(c,b)}, v{A(c+2,b)}")
        for c in range(2):
            e(f"v_pk_add_f32 v[{A(c,0)}:{A(c,1)}], v[{A(c,0)}:{A(c,1)}], v[{A(c+2,0)}:{A(c+2,1)}]")
        for k in range(4): e(f"v_add_f32_dpp v{ACC+k}, v{ACC+k}, v{ACC+k} row_ror:8 row_mask:0xf bank_mask:0xf")
        e(f"v_swap_b32 v{ACC+1}, v{ACC+2}")
        e("s_mov_b32 exec_lo, 0x00ff00ff")
        e("s_mov_b32 exec_hi, 0x00ff00ff")
        e(f"ds_write_b64 v14, v[{ACC}:{ACC+1}] offset:{L_RED+m*2048}")
        e(f"ds_write_b64 v14, v[{ACC+2}:{ACC+3}] offset:{L_RED+m*2048+256}")
        e("s_mov_b64 exec, -1")
    def load_k(t):
        e(f"s_mov_b32 s{T2}, {t*8192}")
        for u in range(2):
            for j in range(4):
                a = 32*t + 16*u + 4*j
                vm.issue(f"k{t}", f"buffer_load_dwordx4 a[{a}:{a+3}], v{6+u}, {srd(SK)}, s{T2} offen offset:{j*64} {NT}")
    def load_v(t):
        e(f"s_mov_b32 s{T2}, {t*8192}")
        for i in range(8):
            r = 128 + 32*(t & 3) + 4*i
            vm.issue(f"v{t}", f"buffer_load_dwordx4 v[{r}:{r+3}], v{8+(i>>2)}, {srd(SV)}, s{T2} offen offset:{(i&3)*1024} {NT}")
    def pace(next_n):
        vm.wait_leave(max(WIN - next_n, 0))
    load_k(0)
    vm.wait("wq")
    stamp()
    gemv(128, 0)
    load_k(1)
    vm.wait("wg")
    gemv(160, 1)
    load_wd()
    vm.wait("wu")
    stamp()
    gemv(192, 2)
    e("s_waitcnt lgkmcnt(0)")
    e("s_barrier")
    e(f"""
    s_cmp_lg_u32 s3, 0
    s_cbranch_scc1 L_nopub
    v_lshrrev_b32 v11, 5, v1
    v_lshlrev_b32 v11, 11, v11          ; m*2048
    v_bfe_u32 v12, v1, 4, 1
    v_lshlrev_b32 v13, 8, v12           ; b*256
    v_add_u32 v11, v11, v13
    v_and_b32 v14, 15, v1
    v_lshlrev_b32 v15, 4, v14           ; c4*16
    v_add_u32 v11, v11, v15
    v_and_b32 v58, 0x7ff, v11
    """)
    for w in range(4):
        e(f"ds_read_b128 v[{96+4*w}:{99+4*w}], v11 offset:{L_RED+w*512}")
    for w in range(4):
        e(f"ds_read_b128 v[{64+4*w}:{67+4*w}], v58 offset:{L_RED+4096+w*512}")
    e(f"""
    v_lshlrev_b32 v59, 14, v12
    v_add_u32 v59, v59, v15
    s_lshl_b32 s{T}, s8, 15
    s_lshl_b32 s{T2}, s{S_CB}, 8
    s_add_u32 s{T}, s{T}, s{T2}
    v_add_u32 v59, s{T}, v59
    v_lshrrev_b32 v60, 2, v14
    v_lshlrev_b32 v60, 10, v60
    v_lshlrev_b32 v61, 6, v12
    v_add_u32 v60, v60, v61
    v_and_b32 v61, 3, v14
    v_lshlrev_b32 v61, 4, v61
    v_add_u32 v60, v60, v61
    s_lshl_b32 s{T}, s{S_CB}, 12
    s_lshl_b32 s{T2}, s8, 8
    s_add_u32 s{T}, s{T}, s{T2}
    s_add_u32 s{T}, s{T}, {GU}
    v_add_u32 v60, s{T}, v60
    v_cmp_gt_u32 vcc, 32, v1
    v_cndmask_b32 v59, v60, v59, vcc
    v_add_u32 v60, 128, v60             ; u address
    s_waitcnt lgkmcnt(4)
    v_pk_add_f32 v[96:97], v[96:97], v[100:101]
    v_pk_add_f32 v[98:99], v[98:99], v[102:103]
    v_pk_add_f32 v[104:105], v[104:105], v[108:109]
    v_pk_add_f32 v[106:107], v[106:107], v[110:111]
    v_pk_add_f32 v[96:97], v[96:97], v[104:105]
    v_pk_add_f32 v[98:99], v[98:99], v[106:107]
    """)
    vm.issue("pub", f"buffer_store_dwordx4 v[96:99], v59, {srd(SWS)}, 0 offen sc1", definite=False)
    e(f"""
    s_waitcnt lgkmcnt(0)
    v_pk_add_f32 v[64:65], v[64:65], v[68:69]
    v_pk_add_f32 v[66:67], v[66:67], v[70:71]
    v_pk_add_f32 v[72:73], v[72:73], v[76:77]
    v_pk_add_f32 v[74:75], v[74:75], v[78:79]
    v_pk_add_f32 v[64:65], v[64:65], v[72:73]
    v_pk_add_f32 v[66:67], v[66:67], v[74:75]
    s_mov_b32 exec_hi, 0
    """)
    vm.issue("pub", f"buffer_store_dwordx4 v[64:67], v60, {srd(SWS)}, 0 offen sc1", definite=False)
    e("s_mov_b64 exec, -1")
    e("L_nopub:")
    load_k(2)
    stamp()
    pace(8); load_k(3)
    e("s_cmp_lg_u32 s3, 0")
    e("s_cbranch_scc1 L_nosig")
    e(f"s_waitcnt vmcnt({vm.count_after('pub')})")
    e(f"""
    v_mov_b32 v11, 1
    s_and_b32 s{T}, s2, 3
    s_lshl_b32 s{T}, s{T}, 6
    v_mov_b32 v12, s{T}
    s_mov_b64 exec, 1
    """)
    vm.issue("sig", f"buffer_atomic_add v11, v12, {srd(SDBG)}, 0 offen sc1", definite=False)
    e("s_mov_b64 exec, -1")
    e("L_nosig:")
    POLLK = cfg.get("pollk", 6)
    for t in range(4, POLLK):
        pace(8); load_k(t)
    e(f"""
    s_cmp_lg_u32 s3, 0
    s_cbranch_scc1 L_nopoll1
    v_and_b32 v40, 3, v1
    v_lshlrev_b32 v40, 6, v40
    """)
    vm.issue("poll", f"buffer_load_dword v41, v40, {srd(SDBG)}, 0 offen sc1", definite=False)
    e("L_nopoll1:")
    pace(8); load_k(POLLK)
    e("s_cmp_lg_u32 s3, 0")
    e("s_cbranch_scc1 L_qok")
    e(f"s_waitcnt vmcnt({vm.count_after('poll')})")
    e(f"""
    s_mov_b32 s{S_SPIN}, 0
L_qspin:
    v_cmp_eq_u32 vcc, 64, v41
    s_nop 1
    s_cmp_eq_u64 vcc, -1
    s_cbranch_scc1 L_qok
    s_add_u32 s{S_SPIN}, s{S_SPIN}, 1
    s_cmp_gt_u32 s{S_SPIN}, {SPIN}
    s_cbranch_scc1 L_end
    buffer_load_dword v41, v40, {srd(SDBG)}, 0 offen sc1
    s_waitcnt vmcnt(0)
    s_branch L_qspin
L_qok:
    s_barrier
    v_lshlrev_b32 v40, 4, v0
    s_lshl_b32 s{T}, s{S_B}, 14
    s_lshl_b32 s{T2}, s{S_HKV}, 12
    s_add_u32 s{T}, s{T}, s{T2}
    """)
    for rq in range(4):
        vm.issue("q", f"buffer_load_dwordx4 v[{16+4*rq}:{19+4*rq}], v40, {srd(SWS)}, s{T} offen sc1")
        if rq < 3: e(f"s_add_u32 s{T}, s{T}, 32768")
    e(f"""
    v_lshlrev_b32 v41, 4, v1
    s_lshl_b32 s{T}, s2, 10
    s_add_u32 s{T}, s{T}, {GU}
    """)
    vm.issue("q", f"buffer_load_dwordx4 v[32:35], v41, {srd(SWS)}, s{T} offen sc1")
    for t in range(POLLK+1, 8):
        load_k(t)
    e(f"""
    v_lshrrev_b32 v42, 5, v0
    v_lshlrev_b32 v42, 4, v42           ; (t>>5)*16
    v_lshlrev_b32 v43, 3, v0
    v_add_u32 v42, v42, v43
    v_and_b32 v43, 7, v1
    v_mul_u32_u24 v43, 272, v43
    v_lshrrev_b32 v44, 4, v1
    v_lshlrev_b32 v44, 4, v44
    v_add_u32 v43, v43, v44
    v_and_b32 v44, 3, v1
    v_lshlrev_b32 v44, 5, v44
    v_lshrrev_b32 v45, 4, v1
    v_lshlrev_b32 v45, 3, v45
    v_add_u32 v44, v44, v45
    v_bfe_u32 v45, v1, 2, 1
    v_lshlrev_b32 v45, 2, v45
    v_add_u32 v44, v44, v45
    """)
    vm.wait("q")
    stamp()
    e(f"""
    v_pk_add_f32 v[16:17], v[16:17], v[20:21]
    v_pk_add_f32 v[18:19], v[18:19], v[22:23]
    v_pk_add_f32 v[24:25], v[24:25], v[28:29]
    v_pk_add_f32 v[26:27], v[26:27], v[30:31]
    v_pk_add_f32 v[16:17], v[16:17], v[24:25]
    v_pk_add_f32 v[18:19], v[18:19], v[26:27]
    v_cvt_pk_bf16_f32 v16, v16, v17
    v_cvt_pk_bf16_f32 v17, v18, v19
    ds_write_b64 v42, v[16:17] offset:{L_QS}
    v_permlane32_swap_b32 v32, v34
    v_permlane32_swap_b32 v33, v35
    v_pk_add_f32 v[32:33], v[32:33], v[34:35]
    v_permlane16_swap_b32 v32, v33
    v_add_f32 v96, v32, v33
    """)
    rbf(96, 96)
    e(f"""
    v_mov_b32_dpp v100, v96 row_ror:8 row_mask:0xf bank_mask:0xf     ; u
    v_mul_f32 v98, 0xbfb8aa3b, v96      ; -g*log2e
    v_exp_f32 v98, v98
    v_add_f32 v98, 1.0, v98
    v_rcp_f32 v99, v98
    v_mul_f32 v101, v96, v99
    v_fma_f32 v102, -v101, v98, v96
    v_fma_f32 v102, v102, v99, v101
    v_cmp_eq_f32 vcc, 0x7f800000, v98
    v_cndmask_b32 v101, v102, v101, vcc
    """)
    rbf(101, 101)
    e("v_mul_f32 v101, v101, v100")
    rbf(101, 101)
    e("s_mov_b32 exec_lo, 0x00ff00ff")
    e("s_mov_b32 exec_hi, 0x00ff00ff")
    e(f"ds_write_b32 v44, v101 offset:{L_HB}")
    e("s_mov_b64 exec, -1")
    e("v_mov_b32 v11, 0")
    e("s_waitcnt lgkmcnt(0)")
    e("s_barrier")
    for j in range(4):
        e(f"ds_read_b128 v[{16+4*j}:{19+4*j}], v43 offset:{L_QS+64*j}")
    for k in range(8):
        e(f"ds_read_b128 v[{64+4*k}:{67+4*k}], v11 offset:{L_HB+16*k}")
    load_v(0)
    e("s_waitcnt lgkmcnt(0)")
    F0, F1 = 2, 12
    def rowfma(wreg_pairs, opair, first):
        for b, F in ((0, F0), (1, F1)):
            for hlf in range(2):
                wp = wreg_pairs[hlf]; a = F + 2*hlf
                if first:
                    e(f"v_pk_mul_f32 v[{a}:{a+1}], v[{wp}:{wp+1}], v[{opair}:{opair+1}] op_sel:[0,{b}] op_sel_hi:[1,{b}]")
                else:
                    e(f"v_pk_fma_f32 v[{a}:{a+1}], v[{wp}:{wp+1}], v[{opair}:{opair+1}], v[{a}:{a+1}] op_sel:[0,{b},0] op_sel_hi:[1,{b},1]")
    for i in range(16):
        t = 96 + 4*(i & 1)
        for d in range(2):
            e(f"v_lshlrev_b32 v{t+2*d}, 16, v{WDR+2*i+d}")
            e(f"v_and_b32 v{t+2*d+1}, s{S_MASK}, v{WDR+2*i+d}")
        rowfma((t, t+2), 64+2*i, i == 0)
    pace(8); load_v(1)
    SCALE = 0x3db504f3
    e(f"s_mov_b32 s10, {hex(SCALE)}")
    e(f"s_mov_b32 s11, {hex(SCALE)}")
    def qk(t):
        for j in range(4):
            for u in range(2):
                a = 32*t + 16*u + 4*j; s = 64 + 8*t + 4*u
                c = "0" if j == 0 else f"v[{s}:{s+3}]"
                e(f"v_mfma_f32_16x16x32_bf16 v[{s}:{s+3}], a[{a}:{a+3}], v[{16+4*j}:{19+4*j}], {c}")
    def rnd(t):
        for z in range(4):
            r = 64 + 8*t + 2*z; tmp = 40 + (z & 1)
            if MIMIC:
                e(f"v_cvt_pk_bf16_f32 v{tmp}, v{r}, v{r+1}")
                e(f"v_lshlrev_b32 v{r}, 16, v{tmp}")
                e(f"v_and_b32 v{r+1}, s{S_MASK}, v{tmp}")
                e(f"v_pk_mul_f32 v[{r}:{r+1}], v[{r}:{r+1}], s[10:11]")
                e(f"v_cvt_pk_bf16_f32 v{tmp}, v{r}, v{r+1}")
                e(f"v_lshlrev_b32 v{r}, 16, v{tmp}")
                e(f"v_and_b32 v{r+1}, s{S_MASK}, v{tmp}")
            else:
                e(f"v_pk_mul_f32 v[{r}:{r+1}], v[{r}:{r+1}], s[10:11]")
    vm.wait("k7")
    qk(0); qk(1); rnd(0); qk(2); rnd(1); qk(3); rnd(2)
    load_v(2)
    qk(4); rnd(3); qk(5); rnd(4); qk(6); rnd(5); qk(7); rnd(6)
    load_v(3)
    rnd(7)
    stamp()
    e("v_max3_f32 v40, v64, v65, v66")
    e("v_max3_f32 v41, v67, v68, v69")
    k = 70
    while k + 3 < 128:
        e(f"v_max3_f32 v40, v40, v{k}, v{k+1}")
        e(f"v_max3_f32 v41, v41, v{k+2}, v{k+3}")
        k += 4
    e(f"v_max3_f32 v40, v40, v{k}, v{k+1}")
    e("v_max_f32 v40, v40, v41")
    for sw in ("v_permlane16_swap_b32", "v_permlane32_swap_b32"):
        e("v_mov_b32 v41, v40")
        e(f"{sw} v40, v41")
        e("v_max_f32 v40, v40, v41")
    e(f"""
    v_and_b32 v42, 15, v1
    v_lshlrev_b32 v42, 2, v42           ; n*4
    v_lshlrev_b32 v43, 6, v10
    v_add_u32 v43, v43, v42             ; w*64+n*4
    ds_write_b32 v43, v40 offset:{L_MX}
    s_waitcnt lgkmcnt(0)
    s_barrier
    ds_read_b32 v44, v42 offset:{L_MX}
    ds_read_b32 v45, v42 offset:{L_MX+64}
    ds_read_b32 v46, v42 offset:{L_MX+128}
    ds_read_b32 v47, v42 offset:{L_MX+192}
    s_mov_b32 s10, 0x3fb8aa3b
    s_waitcnt lgkmcnt(0)
    v_max3_f32 v44, v44, v45, v46
    v_max_f32 v44, v44, v47
    v_mul_f32 v45, s10, v44             ; M*log2e
    """)
    for r in range(64, 128):
        e(f"v_fma_f32 v{r}, v{r}, s10, -v45")
    for r in range(64, 128):
        e(f"v_exp_f32 v{r}, v{r}")
    e("v_add_f32 v46, v64, v65")
    e("v_add_f32 v47, v66, v67")
    for r in range(68, 128, 2):
        e(f"v_add_f32 v46, v46, v{r}")
        e(f"v_add_f32 v47, v47, v{r+1}")
    e("v_add_f32 v46, v46, v47")
    for z in range(32):
        e(f"v_cvt_pk_bf16_f32 v{64+z}, v{64+2*z}, v{65+2*z}")
    for sw in ("v_permlane16_swap_b32", "v_permlane32_swap_b32"):
        e("v_mov_b32 v47, v46")
        e(f"{sw} v46, v47")
        e("v_add_f32 v46, v46, v47")
    e(f"ds_write_b32 v43, v46 offset:{L_LS}")
    e(f"""
    s_waitcnt lgkmcnt(0)
    s_barrier
    s_cmp_lg_u32 s3, 0
    s_cbranch_scc1 L_noml
    ds_read_b32 v46, v42 offset:{L_LS}
    ds_read_b32 v47, v42 offset:{L_LS+64}
    ds_read_b32 v48, v42 offset:{L_LS+128}
    ds_read_b32 v49, v42 offset:{L_LS+192}
    v_lshlrev_b32 v50, 7, v42           ; n*512
    s_lshl_b32 s{T}, s{S_HKV}, 12       ; hkv*8*512
    s_lshl_b32 s{T2}, s{S_B}, 8
    s_add_u32 s{T}, s{T}, s{T2}
    s_lshl_b32 s{T2}, s{S_S}, 3
    s_add_u32 s{T}, s{T}, s{T2}
    s_add_u32 s{T}, s{T}, {ML}
    s_waitcnt lgkmcnt(0)
    v_add_f32 v46, v46, v47
    v_add_f32 v48, v48, v49
    v_add_f32 v45, v46, v48
    s_mov_b64 exec, 0xff
    """)
    vm.issue("mlst", f"buffer_store_dwordx2 v[44:45], v50, {srd(SWS)}, s{T} offen sc1", definite=False)
    e("s_mov_b64 exec, -1")
    e("L_noml:")
    stamp()
    def pv(t):
        slot = 128 + 32*(t & 3)
        for j in range(8):
            q, p = j >> 1, j & 1
            T4 = 16 + 4*(j & 3)
            for z in range(4):
                e(f"v_perm_b32 v{T4+z}, v{slot+4*(2*z+1)+q}, v{slot+4*(2*z)+q}, s{S_SEL1 if p else S_SEL0}")
            c = "0" if t == 0 else f"v[{32+4*j}:{35+4*j}]"
            e(f"v_mfma_f32_16x16x32_bf16 v[{32+4*j}:{35+4*j}], v[{T4}:{T4+3}], v[{64+4*t}:{67+4*t}], {c}")
    WOR = 96
    e("v_lshlrev_b32 v11, 3, v0")
    vm.wait("v0"); pv(0)
    pace(8); load_v(4)
    pace(8)
    for i in range(16):
        off = (8*(i & 3) + (i >> 2))*2048
        e(f"s_mov_b32 s{T2}, {off}")
        vm.issue("wo", f"buffer_load_dwordx2 v[{WOR+2*i}:{WOR+2*i+1}], v11, {srd(SWO)}, s{T2} offen {NT}")
    vm.wait("v1"); pv(1)
    pace(8); load_v(5)
    vm.wait("v2"); pv(2)
    e(f"""
    v_lshrrev_b32 v6, 1, v1
    v_lshlrev_b32 v6, 3, v6
    v_lshrrev_b32 v7, 1, v10
    v_lshlrev_b32 v7, 8, v7
    v_add_u32 v6, v6, v7
    s_lshr_b32 s8, s2, 3
    s_lshl_b32 s8, s8, 9
    s_add_u32 s8, s8, {ML}
    """)
    pace(8)
    vm.issue("ml", f"buffer_load_dwordx2 a[0:1], v6, {srd(SWS)}, s8 offen sc1")
    load_v(6)
    vm.wait("v3"); pv(3)
    pace(8); load_v(7)
    vm.wait("v4"); pv(4)
    vm.wait("wo")
    def unpack_wo(i0):
        for i in range(i0, i0+8):
            for d in range(2):
                e(f"v_lshlrev_b32 v{128+4*i+2*d}, 16, v{WOR+2*i+d}")
                e(f"v_and_b32 v{129+4*i+2*d}, s{S_MASK}, v{WOR+2*i+d}")
    unpack_wo(0)
    vm.wait("v5"); pv(5)
    unpack_wo(8)
    vm.wait("ml")
    e(f"""
    v_accvgpr_read_b32 v96, a0
    v_accvgpr_read_b32 v97, a1
    s_mov_b32 s{S_SPIN}, 0
L_mlspin:
    v_max_u32 v98, v96, v97
    v_cmp_eq_u32 vcc, -1, v98
    s_nop 1
    s_cmp_eq_u64 vcc, 0
    s_cbranch_scc1 L_mlok
    s_add_u32 s{S_SPIN}, s{S_SPIN}, 1
    s_cmp_gt_u32 s{S_SPIN}, {SPIN}
    s_cbranch_scc1 L_end
    buffer_load_dwordx2 v[96:97], v6, {srd(SWS)}, s8 offen sc1
    s_waitcnt vmcnt(0)
    s_branch L_mlspin
L_mlok:
    v_mov_b32 v98, v96
    """)
    wave_red([98], op="max", tmp=104, shifts=(8, 4, 2))
    e("v_sub_f32 v98, v96, v98")
    e("v_mul_f32 v98, 0x3fb8aa3b, v98")
    e("v_exp_f32 v98, v98")
    e("v_mul_f32 v99, v98, v97")
    wave_red([99], op="add", tmp=104, shifts=(8, 4, 2))
    e("""
    v_rcp_f32 v100, v99
    v_mul_f32 v101, v98, v100
    v_fma_f32 v102, -v101, v99, v98
    v_fma_f32 v100, v102, v100, v101    ; f = e_s / L
    """)
    e(f"""
    v_and_b32 v96, 15, v1
    v_mul_u32_u24 v96, 528, v96
    v_lshrrev_b32 v97, 4, v1
    v_lshlrev_b32 v97, 7, v97
    v_add_u32 v96, v96, v97
    v_mul_u32_u24 v97, {OBW}, v10
    v_add_u32 v96, v96, v97
    v_lshrrev_b32 v98, 5, v0
    v_mul_u32_u24 v97, 528, v98
    v_and_b32 v99, 31, v0
    v_lshlrev_b32 v101, 4, v99
    v_add_u32 v97, v97, v101
    v_lshlrev_b32 v98, 15, v98
    v_lshrrev_b32 v101, 2, v99
    v_lshlrev_b32 v101, 12, v101
    v_add_u32 v98, v98, v101
    v_and_b32 v101, 3, v99
    v_lshlrev_b32 v101, 4, v101
    v_add_u32 v98, v98, v101
    s_lshl_b32 s10, s{S_HKV}, 18
    s_lshl_b32 s{T}, s{S_B}, 11
    s_add_u32 s10, s10, s{T}
    s_lshl_b32 s{T}, s{S_S}, 6
    s_add_u32 s10, s10, s{T}
    s_add_u32 s10, s10, {PO}
    v_lshrrev_b32 v99, 1, v10
    v_lshlrev_b32 v99, 11, v99
    v_lshrrev_b32 v101, 1, v1
    v_lshlrev_b32 v101, 6, v101
    v_add_u32 v99, v99, v101
    v_and_b32 v101, 1, v10
    v_lshlrev_b32 v101, 5, v101
    v_add_u32 v99, v99, v101
    v_and_b32 v101, 1, v1
    v_lshlrev_b32 v101, 4, v101
    v_add_u32 v99, v99, v101
    s_lshl_b32 s11, s2, 12
    s_add_u32 s11, s11, {PO}
    v_and_b32 v101, 1, v10
    v_lshlrev_b32 v101, 6, v101
    v_and_b32 v102, 1, v1
    v_lshlrev_b32 v102, 5, v102
    v_add_u32 v101, v101, v102
    v_lshrrev_b32 v102, 4, v1
    v_lshlrev_b32 v102, 3, v102
    v_add_u32 v101, v101, v102
    v_lshrrev_b32 v102, 1, v10
    v_lshlrev_b32 v102, 2, v102
    v_add_u32 v101, v101, v102
    v_mov_b32 v102, 0
    v_lshrrev_b32 v103, 1, v0
    v_lshlrev_b32 v103, 13, v103
    v_and_b32 v104, 1, v0
    v_lshlrev_b32 v104, 4, v104
    v_add_u32 v103, v103, v104
    s_lshl_b32 s96, s2, 5
    s_add_u32 s96, s96, {PF}
    s_add_u32 s97, s96, 0x100000
    v_lshlrev_b32 v104, 5, v0
    s_lshl_b32 s98, s2, 13
    s_add_u32 s98, s98, {PF}
    v_lshlrev_b32 v105, 5, v10
    v_lshrrev_b32 v106, 4, v1
    v_lshlrev_b32 v106, 3, v106
    v_add_u32 v105, v105, v106
    v_lshlrev_b32 v106, 3, v1
    v_lshlrev_b32 v107, 2, v1
    v_and_b32 v107, 12, v107
    """)
    vm.issue("res", f"buffer_load_dword v108, v107, {srd(SX)}, s9 offen")
    vm.wait("v6"); pv(6)
    vm.wait("v7")
    vm.wait("res")
    stamp()
    pv(7)
    e("v_lshlrev_b32 v110, 16, v108")
    e(f"v_and_b32 v111, s{S_MASK}, v108")
    e("s_mov_b32 exec_lo, 0x00ff00ff")
    e("s_mov_b32 exec_hi, 0x00ff00ff")
    for j in range(8):
        e(f"ds_write_b128 v96, v[{32+4*j}:{35+4*j}] offset:{L_OB+16*j}")
    e("s_mov_b64 exec, -1")
    e("s_waitcnt lgkmcnt(0)")
    e("s_barrier")
    for w in range(4):
        e(f"ds_read_b128 v[{16+4*w}:{19+4*w}], v97 offset:{L_OB+w*OBW}")
    e("s_waitcnt lgkmcnt(2)")
    e("v_pk_add_f32 v[16:17], v[16:17], v[20:21]")
    e("v_pk_add_f32 v[18:19], v[18:19], v[22:23]")
    e("s_waitcnt lgkmcnt(0)")
    e("v_pk_add_f32 v[24:25], v[24:25], v[28:29]")
    e("v_pk_add_f32 v[26:27], v[26:27], v[30:31]")
    e("v_pk_add_f32 v[16:17], v[16:17], v[24:25]")
    e("v_pk_add_f32 v[18:19], v[18:19], v[26:27]")
    vm.issue("post", f"buffer_store_dwordx4 v[16:19], v98, {srd(SWS)}, s10 offen sc1")
    e(f"""
    s_mov_b32 s{S_SPIN}, 0
L_pospin:
    buffer_load_dwordx4 v[20:23], v99, {srd(SWS)}, s11 offen sc1
    s_add_u32 s{S_SPIN}, s{S_SPIN}, 1
    s_cmp_gt_u32 s{S_SPIN}, {SPIN}
    s_cbranch_scc1 L_end
    s_waitcnt vmcnt(0)
    v_max3_u32 v24, v20, v21, v22
    v_max_u32 v24, v24, v23
    v_cmp_eq_u32 vcc, -1, v24
    s_nop 1
    s_cmp_eq_u64 vcc, 0
    s_cbranch_scc0 L_pospin
    """)
    vm.ops = []
    stamp()
    e("v_pk_mul_f32 v[20:21], v[20:21], v[100:101] op_sel:[0,0] op_sel_hi:[1,0]")
    e("v_pk_mul_f32 v[22:23], v[22:23], v[100:101] op_sel:[0,0] op_sel_hi:[1,0]")
    e("v_permlane32_swap_b32 v20, v22")
    e("v_permlane32_swap_b32 v21, v23")
    e("v_add_f32 v20, v20, v22")
    e("v_add_f32 v21, v21, v23")
    e("v_permlane16_swap_b32 v20, v21")
    e("v_add_f32 v20, v20, v21")
    for sh in (2, 4, 8):
        e(f"v_add_f32_dpp v20, v20, v20 row_ror:{sh} row_mask:0xf bank_mask:0xf")
    rbf(20, 20)
    e("s_mov_b32 exec_lo, 0x00030003")
    e("s_mov_b32 exec_hi, 0x00030003")
    e(f"ds_write_b32 v101, v20 offset:{L_OBC}")
    e("s_mov_b64 exec, -1")
    e("s_waitcnt lgkmcnt(0)")
    e("s_barrier")
    for k in range(8):
        e(f"ds_read_b128 v[{16+4*k}:{19+4*k}], v102 offset:{L_OBC+16*k}")
    for i in range(16):
        if i % 2 == 0: e(f"s_waitcnt lgkmcnt({7 - i//2})")
        rowfma((128+4*i, 130+4*i), 16+2*i, False)
    vm.issue("pfst", f"buffer_store_dwordx4 v[{F0}:{F0+3}], v103, {srd(SWS)}, s96 offen sc1")
    vm.issue("pfst", f"buffer_store_dwordx4 v[{F1}:{F1+3}], v103, {srd(SWS)}, s97 offen sc1")
    e(f"""
    s_mov_b32 s{S_SPIN}, 0
L_pfspin:
    buffer_load_dwordx4 v[20:23], v104, {srd(SWS)}, s98 offen sc1
    buffer_load_dwordx4 v[24:27], v104, {srd(SWS)}, s98 offen offset:16 sc1
    s_add_u32 s{S_SPIN}, s{S_SPIN}, 1
    s_cmp_gt_u32 s{S_SPIN}, {SPIN}
    s_cbranch_scc1 L_end
    s_waitcnt vmcnt(0)
    v_max3_u32 v28, v20, v21, v22
    v_max3_u32 v29, v23, v24, v25
    v_max3_u32 v28, v28, v26, v27
    v_max_u32 v28, v28, v29
    v_cmp_eq_u32 vcc, -1, v28
    s_nop 1
    s_cmp_eq_u64 vcc, 0
    s_cbranch_scc0 L_pfspin
    """)
    vm.ops = []
    stamp()
    for c in range(4): e(f"v_permlane32_swap_b32 v{20+c}, v{24+c}")
    e("v_pk_add_f32 v[20:21], v[20:21], v[24:25]")
    e("v_pk_add_f32 v[22:23], v[22:23], v[26:27]")
    for c in range(2): e(f"v_permlane16_swap_b32 v{20+c}, v{22+c}")
    e("v_pk_add_f32 v[20:21], v[20:21], v[22:23]")
    for sh in (1, 2, 4, 8):
        for k in range(2): e(f"v_add_f32_dpp v{20+k}, v{20+k}, v{20+k} row_ror:{sh} row_mask:0xf bank_mask:0xf")
    e("s_mov_b32 exec_lo, 0x00010001")
    e("s_mov_b32 exec_hi, 0x00010001")
    e(f"ds_write_b64 v105, v[20:21] offset:{L_FIN}")
    e("s_mov_b64 exec, -1")
    e("s_waitcnt lgkmcnt(0)")
    e("s_barrier")
    e("s_cmp_lg_u32 s3, 0")
    e("s_cbranch_scc1 L_end")
    e("s_mov_b64 exec, 15")
    for w in range(4):
        e(f"ds_read_b64 v[{20+2*w}:{21+2*w}], v106 offset:{L_FIN+32*w}")
    e("s_waitcnt lgkmcnt(0)")
    e("v_pk_add_f32 v[20:21], v[20:21], v[22:23]")
    e("v_pk_add_f32 v[24:25], v[24:25], v[26:27]")
    e("v_pk_add_f32 v[20:21], v[20:21], v[24:25]")
    e("v_pk_add_f32 v[20:21], v[20:21], v[110:111]")
    e("v_cvt_pk_bf16_f32 v20, v20, v21")
    e(f"buffer_store_dword v20, v107, {srd(SOUT)}, s9 offen")
    if STAMPS:
        stamp()
        e("s_mov_b64 exec, 1")
        e(f"s_add_u32 s{SX}, s26, {240<<20}")
        e(f"s_addc_u32 s{SX+1}, s27, 0")
        e(f"s_and_b32 s{SX+1}, s{SX+1}, 0xffff")
        e(f"s_mov_b32 s{SX+2}, 0x10000")
        e(f"s_lshl_b32 s{T}, s2, 7")
        e("v_mov_b32 v2, 0")
        for k in range(stamp_n[0]):
            r = stamp_regs[k]
            e(f"v_mov_b32 v4, s{r}")
            e(f"v_mov_b32 v5, s{r+1}")
            e(f"buffer_store_dwordx2 v[4:5], v2, {srd(SX)}, s{T} offen offset:{8*k}")
            e("s_nop 2")
    e("L_end:")
    e("s_endpgm")
    e(kernel_desc(NAME, 512, 102, 256))
    body, n = hazard.fix(e.text())
    hdr = HEADER_COMMENTS + f"; @launch grid=(256,1,1) block=(256,1,1) lds={LDS}\n" + '.amdgcn_target "amdgcn-amd-amdhsa--gfx950"\n.text\n'
    return hdr + body, n, LDS

if __name__ == "__main__":
    import json
    cfg = json.loads(sys.argv[2]) if len(sys.argv) > 2 else {}
    out = sys.argv[1]
    txt, n, lds = gen(cfg)
    open(out, "w").write(txt)
    print("nops inserted", n, "lines", txt.count("\n"), "lds", lds)
```

```python
import sys
from common import *
import hazard

NAME = "parallel_sum__gqa_block_cached__swiglu_ffn__decode_kernel"

class VM:
    def __init__(self, e): self.e = e; self.ops = []
    def issue(self, tag, line, definite=True):
        self.e(line); self.ops.append((tag, definite))
    def wait(self, tag):
        idx = [i for i, (t, d) in enumerate(self.ops) if t == tag]
        if not idx: return
        idx = max(idx)
        n = sum(1 for t, d in self.ops[idx+1:] if d)
        assert n <= 63, (tag, n)
        self.e(f"s_waitcnt vmcnt({n})")
        self.ops = self.ops[idx+1:]
        return n
    def count_after(self, tag):
        idx = max(i for i, (t, d) in enumerate(self.ops) if t == tag)
        return sum(1 for t, d in self.ops[idx+1:] if d)
    def wait_leave(self, n):
        if sum(1 for t, d in self.ops if d) <= n and all(d for t, d in self.ops): return
        self.e(f"s_waitcnt vmcnt({n})")
        while self.ops and sum(1 for t, d in self.ops[1:] if d) >= n: self.ops.pop(0)
    def drain(self):
        self.e("s_waitcnt vmcnt(0)"); self.ops = []

def gen(cfg):
    MIMIC = cfg.get("mimic", True)
    STAMPS = cfg.get("stamps", False)
    WIN = cfg.get("win", 16)
    NT = cfg.get("nt", "nt")
    NTW = cfg.get("ntw", "nt")
    SPIN = cfg.get("spin", 200000)
    e = E(); vm = VM(e)
    stamp_regs = [76+2*k for k in range(10)] + [12, 14, 16, 18, 20, 22]
    stamp_n = [0]
    def stamp():
        if not STAMPS: return
        k = stamp_n[0]; stamp_n[0] += 1
        r = stamp_regs[k]
        e(f"s_memrealtime s[{r}:{r+1}]")
        e("s_waitcnt lgkmcnt(0)")
    SX, SWQ, SWG, SWU, SK, SV, SWD, SWO, SWS, SOUT, SDBG = 28, 32, 36, 40, 44, 48, 52, 56, 60, 64, 68
    srd = lambda b: f"s[{b}:{b+3}]"
    S_MASK = 72
    S_T = 73; S_T2 = 74; S_SPIN = 75
    S_SEL0, S_SEL1 = 100, 101
    S_B, S_HKV, S_S, S_CB = 4, 5, 6, 7
    QP, GU, ML, PO, PF = 0, 0x20000, 0x60000, 0x100000, 0x200000
    L_HB = 1536
    L_MX = 1664
    L_LS = 1920
    L_OBC = 2176
    L_FIN = 2304
    L_OB = 2560
    OBW = 8*528
    LDS = L_OB + 4*OBW
    L_RED = L_OB
    L_XN = L_OB + 6144
    L_QS = L_OB + 8192
    T, T2 = S_T, S_T2

    e(kernel_head(NAME))
    e(f"""
    s_cmp_ge_u32 s2, 256
    s_cbranch_scc1 L_end
    s_load_dwordx16 s[4:19], s[0:1], 0
    s_load_dwordx8 s[20:27], s[0:1], 64
    v_and_b32 v1, 63, v0
    v_lshrrev_b32 v10, 6, v0
    v_readfirstlane_b32 s3, v10
    s_mov_b32 s{S_MASK}, 0xffff0000
    s_mov_b32 s{S_SEL0}, 0x05040100
    s_mov_b32 s{S_SEL1}, 0x07060302
    """)
    e(f"""
    s_and_b32 s96, s2, 3               ; rq
    s_lshr_b32 s97, s2, 2              ; cg
    s_lshl_b32 s98, s96, 8             ; rq*256
    v_lshrrev_b32 v11, 3, v1
    v_lshlrev_b32 v12, 6, v10
    v_add_u32 v11, v11, v12
    v_add_u32 v11, s98, v11            ; row0
    v_and_b32 v12, 7, v1
    v_lshlrev_b32 v12, 4, v12          ; cc*16
    v_lshlrev_b32 v2, 13, v11
    v_add_u32 v2, v2, v12
    s_movk_i32 s{T}, 7168
    v_mul_lo_u32 v3, v11, s{T}
    v_add_u32 v3, v3, v12
    v_lshlrev_b32 v4, 5, v1
    v_lshlrev_b32 v5, 6, v10
    v_add_u32 v5, v5, v1
    v_add_u32 v5, s98, v5
    v_lshlrev_b32 v5, 1, v5
    v_lshlrev_b32 v57, 3, v0
    v_and_b32 v11, 3, v1
    v_lshlrev_b32 v11, 2, v11
    v_bfe_u32 v12, v1, 2, 2
    v_add_u32 v11, v11, v12
    v_lshlrev_b32 v11, 8, v11
    v_lshrrev_b32 v12, 4, v1
    v_lshlrev_b32 v12, 4, v12
    v_add_u32 v11, v11, v12
    v_lshlrev_b32 v12, 16, v10         ; w*65536
    v_add_u32 v6, v11, v12
    v_add_u32 v7, 4096, v6
    v_lshlrev_b32 v11, 4, v1
    v_add_u32 v8, v11, v12
    v_add_u32 v9, 4096, v8
    s_waitcnt lgkmcnt(0)
    """)
    stamp()
    def mk_srd(dst, plo, off_sgpr, size):
        if off_sgpr is None:
            e(f"s_mov_b32 s{dst}, s{plo}")
            e(f"s_and_b32 s{dst+1}, s{plo+1}, 0xffff")
        else:
            e(f"s_add_u32 s{dst}, s{plo}, s{off_sgpr}")
            e(f"s_addc_u32 s{dst+1}, s{plo+1}, 0")
            e(f"s_and_b32 s{dst+1}, s{dst+1}, 0xffff")
        e(f"s_mov_b32 s{dst+2}, {size}")
        e(f"s_mov_b32 s{dst+3}, 0x20000")
    mk_srd(SX, 4, None, 4096)
    for b in range(2):
        for hlf in range(2):
            vm.issue("x", f"buffer_load_dwordx4 v[{16+8*b+4*hlf}:{19+8*b+4*hlf}], v4, {srd(SX)}, 0 offen offset:{b*2048+hlf*16}")
    for b in range(2):
        vm.issue("x", f"buffer_load_ushort v{32+b}, v5, {srd(SX)}, 0 offen offset:{b*2048}")
    e(f"s_lshl_b32 s{T}, s97, 7")
    mk_srd(SWQ, 10, T, 0)
    e(f"s_sub_u32 s{SWQ+2}, 0x800000, s{T}")
    e(f"s_mov_b32 s{T2}, 0")
    for i in range(8):
        vm.issue("wq", f"buffer_load_dwordx4 v[{128+4*i}:{131+4*i}], v2, {srd(SWQ)}, s{T2} offen {NTW}")
        if i < 7: e(f"s_add_u32 s{T2}, s{T2}, {8*8192}")
    e(f"s_lshl_b32 s{T}, s97, 7")
    mk_srd(SWG, 16, T, 0)
    mk_srd(SWU, 18, T, 0)
    e(f"""
    s_sub_u32 s{T2}, {7<<20}, s{T}
    s_cmp_lt_u32 s2, 224
    s_cselect_b32 s{SWG+2}, s{T2}, 0
    s_cselect_b32 s{SWU+2}, s{T2}, 0
    s_mov_b32 s{T2}, 0
    """)
    for i in range(8):
        vm.issue("wg", f"buffer_load_dwordx4 v[{160+4*i}:{163+4*i}], v3, {srd(SWG)}, s{T2} offen {NTW}")
        if i < 7: e(f"s_add_u32 s{T2}, s{T2}, {8*7168}")
    e(f"s_mov_b32 s{T2}, 0")
    for i in range(8):
        vm.issue("wu", f"buffer_load_dwordx4 v[{192+4*i}:{195+4*i}], v3, {srd(SWU)}, s{T2} offen {NTW}")
        if i < 7: e(f"s_add_u32 s{T2}, s{T2}, {8*7168}")
    mk_srd(SWS, 26, None, 0x400000)
    e(f"""
    v_mov_b32 v112, -1
    v_mov_b32 v113, -1
    v_mov_b32 v114, -1
    v_mov_b32 v115, -1
    v_lshlrev_b32 v11, 4, v0           ; tid*16
    s_lshl_b32 s{T}, s2, 12
    s_add_u32 s{T}, s{T}, {PO}
    """)
    vm.issue("clr", f"buffer_store_dwordx4 v[112:115], v11, {srd(SWS)}, s{T} offen sc1")
    e(f"""
    s_lshl_b32 s{T}, s2, 13
    s_add_u32 s{T}, s{T}, {PF}
    """)
    vm.issue("clr", f"buffer_store_dwordx4 v[112:115], v11, {srd(SWS)}, s{T} offen sc1")
    e(f"s_add_u32 s{T}, s{T}, 4096")
    vm.issue("clr", f"buffer_store_dwordx4 v[112:115], v11, {srd(SWS)}, s{T} offen sc1")
    e(f"""
    v_lshlrev_b32 v12, 4, v10          ; w*16
    s_lshl_b32 s{T}, s2, 6
    s_add_u32 s{T}, s{T}, {ML}
    s_mov_b64 exec, 1
    """)
    vm.issue("clr", f"buffer_store_dwordx4 v[112:115], v12, {srd(SWS)}, s{T} offen sc1")
    e("s_mov_b64 exec, -1")
    e(f"s_lshl_b32 s{T}, s2, 15")
    mk_srd(SWD, 20, T, 0)
    e(f"""
    s_cmp_lt_u32 s2, 224
    s_cselect_b32 s{SWD+2}, 0x8000, 0
    """)
    WDR = 224
    def load_wd():
        e(f"s_mov_b32 s{T2}, 0")
        for i in range(16):
            vm.issue("wd", f"buffer_load_dwordx2 v[{WDR+2*i}:{WDR+2*i+1}], v57, {srd(SWD)}, s{T2} offen {NT}")
            if i < 15: e(f"s_add_u32 s{T2}, s{T2}, 2048")
    if cfg.get("xmap", False):
        e(f"""
    s_and_b32 s99, s2, 7
    s_lshl_b32 s99, s99, 5
    s_lshr_b32 s{T}, s2, 3
    s_add_u32 s99, s99, s{T}
    """)
    else:
        e("s_mov_b32 s99, s2")
    e(f"s_lshl_b32 s{T}, s99, 18")
    kvsz = 0 if cfg.get("nokv") else 0x40000
    mk_srd(SK, 6, T, kvsz)
    mk_srd(SV, 8, T, kvsz)
    e(f"""
    s_lshr_b32 s{T}, s2, 3
    s_lshl_b32 s{T}, s{T}, 7
    s_bfe_u32 s{T2}, s2, 0x20001       ; (dq>>1)
    s_lshl_b32 s{T2}, s{T2}, 5
    s_add_u32 s{T}, s{T}, s{T2}
    s_and_b32 s{T2}, s2, 1
    s_lshl_b32 s{T2}, s{T2}, 2
    s_add_u32 s{T}, s{T}, s{T2}
    s_lshl_b32 s{T}, s{T}, 11
    """)
    mk_srd(SWO, 12, T, 28*2048)
    mk_srd(SOUT, 22, None, 4096)
    mk_srd(SDBG, 24, None, 256)
    e(f"""
    s_lshr_b32 s{S_B}, s99, 7
    s_bfe_u32 s{S_HKV}, s99, 0x20005
    s_and_b32 s{S_S}, s99, 31
    s_mov_b32 s{S_CB}, s97           ; cg
    s_mov_b32 s8, s96                 ; rq
    s_and_b32 s{T}, s2, 127
    s_lshl_b32 s{T}, s{T}, 4
    s_lshr_b32 s{T2}, s2, 7
    s_lshl_b32 s{T2}, s{T2}, 11
    s_add_u32 s9, s{T}, s{T2}
    """)
    vm.wait("x")
    XS = 64
    for b in range(2):
        for q in range(8):
            e(f"v_lshlrev_b32 v{XS+16*b+2*q}, 16, v{16+8*b+q}")
            e(f"v_and_b32 v{XS+16*b+2*q+1}, s{S_MASK}, v{16+8*b+q}")
    def wave_red(regs, op="add", tmp=104, shifts=(8, 4, 2, 1)):
        o = {"add": "v_add_f32", "max": "v_max_f32"}[op]
        for sh in shifts:
            for r in regs: e(f"{o}_dpp v{r}, v{r}, v{r} row_ror:{sh} row_mask:0xf bank_mask:0xf")
        for sw in ("v_permlane16_swap_b32", "v_permlane32_swap_b32"):
            for k, r in enumerate(regs): e(f"v_mov_b32 v{tmp+k}, v{r}")
            for k, r in enumerate(regs): e(f"{sw} v{r}, v{tmp+k}")
            for k, r in enumerate(regs): e(f"{o} v{r}, v{r}, v{tmp+k}")
    for b in range(2):
        e(f"v_add_f32 v{96+b}, v{XS+16*b}, v{XS+16*b+1}")
    for q in range(2, 16):
        for b in range(2):
            e(f"v_add_f32 v{96+b}, v{96+b}, v{XS+16*b+q}")
    wave_red([96, 97])
    def rbf(dst, src):
        e(f"v_cvt_pk_bf16_f32 v{dst}, v{src}, v{src}")
        e(f"v_and_b32 v{dst}, s{S_MASK}, v{dst}")
    for b in range(2): e(f"v_mul_f32 v{96+b}, 0x3a800000, v{96+b}")
    for q in range(16):
        for b in range(2):
            e(f"v_sub_f32 v{XS+16*b+q}, v{XS+16*b+q}, v{96+b}")
    for b in range(2): e(f"v_mul_f32 v{98+b}, v{XS+16*b}, v{XS+16*b}")
    for q in range(1, 16):
        for b in range(2):
            e(f"v_fmac_f32 v{98+b}, v{XS+16*b+q}, v{XS+16*b+q}")
    wave_red([98, 99])
    for b in range(2):
        e(f"v_mul_f32 v{98+b}, 0x3a800000, v{98+b}")
        rbf(98+b, 98+b)
        e(f"v_add_f32 v{98+b}, 0x3727c5ac, v{98+b}")
        rbf(98+b, 98+b)
        e(f"v_sqrt_f32 v{98+b}, v{98+b}")
        rbf(98+b, 98+b)
        rbf(96+b, 96+b)
        e(f"v_rcp_f32 v{100+b}, v{98+b}")
    for b in range(2):
        e(f"v_lshlrev_b32 v{64+b}, 16, v{32+b}")
    for b in range(2):
        e(f"v_sub_f32 v{64+b}, v{64+b}, v{96+b}")
    for b in range(2): rbf(64+b, 64+b)
    for b in range(2):
        e(f"v_mul_f32 v102, v{64+b}, v{100+b}")
        e(f"v_fma_f32 v103, -v102, v{98+b}, v{64+b}")
        e(f"v_fma_f32 v{64+b}, v103, v{100+b}, v102")
    for b in range(2): rbf(64+b, 64+b)
    e(f"""
    v_lshlrev_b32 v11, 9, v10
    v_lshlrev_b32 v12, 3, v1
    v_add_u32 v12, v12, v11             ; w*512 + l*8
    ds_write_b64 v12, v[64:65] offset:{L_XN}
    v_lshrrev_b32 v12, 3, v1
    v_lshlrev_b32 v12, 3, v12
    v_add_u32 v12, v12, v11             ; w*512 + (l>>3)*8
    s_waitcnt lgkmcnt(0)
    """)
    for i in range(8):
        e(f"ds_read_b64 v[{40+2*i}:{41+2*i}], v12 offset:{L_XN+64*i}")
    e(f"""
    v_and_b32 v14, 7, v1
    v_lshlrev_b32 v14, 5, v14
    v_lshrrev_b32 v12, 4, v1
    v_lshlrev_b32 v12, 3, v12
    v_add_u32 v14, v14, v12
    v_add_u32 v14, v14, v11
    s_waitcnt lgkmcnt(0)
    """)
    stamp()
    ACC = 96
    def gemv(wbase, m):
        for i in range(8):
            for q in range(4):
                t = 112 + 2*((i*4+q) & 1)
                w = wbase + 4*i + q
                e(f"v_lshlrev_b32 v{t}, 16, v{w}")
                e(f"v_and_b32 v{t+1}, s{S_MASK}, v{w}")
                for p in range(2):
                    a = ACC + 2*(2*q+p)
                    sel = "op_sel:[0,0,0] op_sel_hi:[0,1,1]" if p == 0 else "op_sel:[1,0,0] op_sel_hi:[1,1,1]"
                    if i == 0:
                        sel2 = "op_sel:[0,0] op_sel_hi:[0,1]" if p == 0 else "op_sel:[1,0] op_sel_hi:[1,1]"
                        e(f"v_pk_mul_f32 v[{a}:{a+1}], v[{t}:{t+1}], v[40:41] {sel2}")
                    else:
                        e(f"v_pk_fma_f32 v[{a}:{a+1}], v[{t}:{t+1}], v[{40+2*i}:{41+2*i}], v[{a}:{a+1}] {sel}")
        A = lambda c, b: ACC + 2*c + b
        for c in range(4):
            for b in range(2): e(f"v_permlane32_swap_b32 v{A(c,b)}, v{A(c+4,b)}")
        for c in range(4):
            e(f"v_pk_add_f32 v[{A(c,0)}:{A(c,1)}], v[{A(c,0)}:{A(c,1)}], v[{A(c+4,0)}:{A(c+4,1)}]")
        for c in range(2):
            for b in range(2): e(f"v_permlane16_swap_b32 v{A(c,b)}, v{A(c+2,b)}")
        for c in range(2):
            e(f"v_pk_add_f32 v[{A(c,0)}:{A(c,1)}], v[{A(c,0)}:{A(c,1)}], v[{A(c+2,0)}:{A(c+2,1)}]")
        for k in range(4): e(f"v_add_f32_dpp v{ACC+k}, v{ACC+k}, v{ACC+k} row_ror:8 row_mask:0xf bank_mask:0xf")
        e(f"v_swap_b32 v{ACC+1}, v{ACC+2}")
        e("s_mov_b32 exec_lo, 0x00ff00ff")
        e("s_mov_b32 exec_hi, 0x00ff00ff")
        e(f"ds_write_b64 v14, v[{ACC}:{ACC+1}] offset:{L_RED+m*2048}")
        e(f"ds_write_b64 v14, v[{ACC+2}:{ACC+3}] offset:{L_RED+m*2048+256}")
        e("s_mov_b64 exec, -1")
    def load_k(t):
        e(f"s_mov_b32 s{T2}, {t*8192}")
        for u in range(2):
            for j in range(4):
                a = 32*t + 16*u + 4*j
                vm.issue(f"k{t}", f"buffer_load_dwordx4 a[{a}:{a+3}], v{6+u}, {srd(SK)}, s{T2} offen offset:{j*64} {NT}")
    def load_v(t):
        e(f"s_mov_b32 s{T2}, {t*8192}")
        for i in range(8):
            r = 128 + 32*(t & 3) + 4*i
            vm.issue(f"v{t}", f"buffer_load_dwordx4 v[{r}:{r+3}], v{8+(i>>2)}, {srd(SV)}, s{T2} offen offset:{(i&3)*1024} {NT}")
    def pace(next_n):
        vm.wait_leave(max(WIN - next_n, 0))
    load_k(0)
    vm.wait("wq")
    stamp()
    gemv(128, 0)
    load_k(1)
    vm.wait("wg")
    gemv(160, 1)
    load_wd()
    vm.wait("wu")
    stamp()
    gemv(192, 2)
    e("s_waitcnt lgkmcnt(0)")
    e("s_barrier")
    e(f"""
    s_cmp_lg_u32 s3, 0
    s_cbranch_scc1 L_nopub
    v_lshrrev_b32 v11, 5, v1
    v_lshlrev_b32 v11, 11, v11          ; m*2048
    v_bfe_u32 v12, v1, 4, 1
    v_lshlrev_b32 v13, 8, v12           ; b*256
    v_add_u32 v11, v11, v13
    v_and_b32 v14, 15, v1
    v_lshlrev_b32 v15, 4, v14           ; c4*16
    v_add_u32 v11, v11, v15
    v_and_b32 v58, 0x7ff, v11
    """)
    for w in range(4):
        e(f"ds_read_b128 v[{96+4*w}:{99+4*w}], v11 offset:{L_RED+w*512}")
    for w in range(4):
        e(f"ds_read_b128 v[{64+4*w}:{67+4*w}], v58 offset:{L_RED+4096+w*512}")
    e(f"""
    v_lshlrev_b32 v59, 14, v12
    v_add_u32 v59, v59, v15
    s_lshl_b32 s{T}, s8, 15
    s_lshl_b32 s{T2}, s{S_CB}, 8
    s_add_u32 s{T}, s{T}, s{T2}
    v_add_u32 v59, s{T}, v59
    v_lshrrev_b32 v60, 2, v14
    v_lshlrev_b32 v60, 10, v60
    v_lshlrev_b32 v61, 6, v12
    v_add_u32 v60, v60, v61
    v_and_b32 v61, 3, v14
    v_lshlrev_b32 v61, 4, v61
    v_add_u32 v60, v60, v61
    s_lshl_b32 s{T}, s{S_CB}, 12
    s_lshl_b32 s{T2}, s8, 8
    s_add_u32 s{T}, s{T}, s{T2}
    s_add_u32 s{T}, s{T}, {GU}
    v_add_u32 v60, s{T}, v60
    v_cmp_gt_u32 vcc, 32, v1
    v_cndmask_b32 v59, v60, v59, vcc
    v_add_u32 v60, 128, v60             ; u address
    s_waitcnt lgkmcnt(4)
    v_pk_add_f32 v[96:97], v[96:97], v[100:101]
    v_pk_add_f32 v[98:99], v[98:99], v[102:103]
    v_pk_add_f32 v[104:105], v[104:105], v[108:109]
    v_pk_add_f32 v[106:107], v[106:107], v[110:111]
    v_pk_add_f32 v[96:97], v[96:97], v[104:105]
    v_pk_add_f32 v[98:99], v[98:99], v[106:107]
    """)
    vm.issue("pub", f"buffer_store_dwordx4 v[96:99], v59, {srd(SWS)}, 0 offen sc1", definite=False)
    e(f"""
    s_waitcnt lgkmcnt(0)
    v_pk_add_f32 v[64:65], v[64:65], v[68:69]
    v_pk_add_f32 v[66:67], v[66:67], v[70:71]
    v_pk_add_f32 v[72:73], v[72:73], v[76:77]
    v_pk_add_f32 v[74:75], v[74:75], v[78:79]
    v_pk_add_f32 v[64:65], v[64:65], v[72:73]
    v_pk_add_f32 v[66:67], v[66:67], v[74:75]
    s_mov_b32 exec_hi, 0
    """)
    vm.issue("pub", f"buffer_store_dwordx4 v[64:67], v60, {srd(SWS)}, 0 offen sc1", definite=False)
    e("s_mov_b64 exec, -1")
    e("L_nopub:")
    load_k(2)
    stamp()
    pace(8)
    assert all(t in ("k2",) for t, d in vm.ops), vm.ops
    e("s_barrier")
    e("s_cmp_lg_u32 s3, 0")
    e("s_cbranch_scc1 L_nosig")
    e(f"""
    v_mov_b32 v11, 1
    s_and_b32 s{T}, s2, 3
    s_lshl_b32 s{T}, s{T}, 6
    v_mov_b32 v12, s{T}
    s_mov_b64 exec, 1
    """)
    vm.issue("sig", f"buffer_atomic_add v11, v12, {srd(SDBG)}, 0 offen sc1", definite=False)
    e("s_mov_b64 exec, -1")
    e("L_nosig:")
    load_k(3)
    POLLK = cfg.get("pollk", 6)
    for t in range(4, POLLK):
        pace(8); load_k(t)
    e(f"""
    s_cmp_lg_u32 s3, 0
    s_cbranch_scc1 L_nopoll1
    v_and_b32 v40, 3, v1
    v_lshlrev_b32 v40, 6, v40
    """)
    vm.issue("poll", f"buffer_load_dword v41, v40, {srd(SDBG)}, 0 offen sc1", definite=False)
    e("L_nopoll1:")
    pace(8); load_k(POLLK)
    e("s_cmp_lg_u32 s3, 0")
    e("s_cbranch_scc1 L_qok")
    e(f"s_waitcnt vmcnt({vm.count_after('poll')})")
    e(f"""
    s_mov_b32 s{S_SPIN}, 0
L_qspin:
    v_cmp_eq_u32 vcc, 64, v41
    s_nop 1
    s_cmp_eq_u64 vcc, -1
    s_cbranch_scc1 L_qok
    s_add_u32 s{S_SPIN}, s{S_SPIN}, 1
    s_cmp_gt_u32 s{S_SPIN}, {SPIN}
    s_cbranch_scc1 L_end
    buffer_load_dword v41, v40, {srd(SDBG)}, 0 offen sc1
    s_waitcnt vmcnt(0)
    s_branch L_qspin
L_qok:
    s_barrier
    v_lshlrev_b32 v40, 4, v0
    s_lshl_b32 s{T}, s{S_B}, 14
    s_lshl_b32 s{T2}, s{S_HKV}, 12
    s_add_u32 s{T}, s{T}, s{T2}
    """)
    for rq in range(4):
        vm.issue("q", f"buffer_load_dwordx4 v[{16+4*rq}:{19+4*rq}], v40, {srd(SWS)}, s{T} offen sc1")
        if rq < 3: e(f"s_add_u32 s{T}, s{T}, 32768")
    e(f"""
    v_lshlrev_b32 v41, 4, v1
    s_lshl_b32 s{T}, s2, 10
    s_add_u32 s{T}, s{T}, {GU}
    """)
    vm.issue("q", f"buffer_load_dwordx4 v[32:35], v41, {srd(SWS)}, s{T} offen sc1")
    for t in range(POLLK+1, 8):
        load_k(t)
    e(f"""
    v_lshrrev_b32 v42, 5, v0
    v_lshlrev_b32 v42, 4, v42           ; (t>>5)*16
    v_lshlrev_b32 v43, 3, v0
    v_add_u32 v42, v42, v43
    v_and_b32 v43, 7, v1
    v_mul_u32_u24 v43, 272, v43
    v_lshrrev_b32 v44, 4, v1
    v_lshlrev_b32 v44, 4, v44
    v_add_u32 v43, v43, v44
    v_and_b32 v44, 3, v1
    v_lshlrev_b32 v44, 5, v44
    v_lshrrev_b32 v45, 4, v1
    v_lshlrev_b32 v45, 3, v45
    v_add_u32 v44, v44, v45
    v_bfe_u32 v45, v1, 2, 1
    v_lshlrev_b32 v45, 2, v45
    v_add_u32 v44, v44, v45
    """)
    vm.wait("q")
    stamp()
    e(f"""
    v_pk_add_f32 v[16:17], v[16:17], v[20:21]
    v_pk_add_f32 v[18:19], v[18:19], v[22:23]
    v_pk_add_f32 v[24:25], v[24:25], v[28:29]
    v_pk_add_f32 v[26:27], v[26:27], v[30:31]
    v_pk_add_f32 v[16:17], v[16:17], v[24:25]
    v_pk_add_f32 v[18:19], v[18:19], v[26:27]
    v_cvt_pk_bf16_f32 v16, v16, v17
    v_cvt_pk_bf16_f32 v17, v18, v19
    ds_write_b64 v42, v[16:17] offset:{L_QS}
    v_permlane32_swap_b32 v32, v34
    v_permlane32_swap_b32 v33, v35
    v_pk_add_f32 v[32:33], v[32:33], v[34:35]
    v_permlane16_swap_b32 v32, v33
    v_add_f32 v96, v32, v33
    """)
    rbf(96, 96)
    e(f"""
    v_mov_b32_dpp v100, v96 row_ror:8 row_mask:0xf bank_mask:0xf     ; u
    v_mul_f32 v98, 0xbfb8aa3b, v96      ; -g*log2e
    v_exp_f32 v98, v98
    v_add_f32 v98, 1.0, v98
    v_rcp_f32 v99, v98
    v_mul_f32 v101, v96, v99
    v_fma_f32 v102, -v101, v98, v96
    v_fma_f32 v102, v102, v99, v101
    v_cmp_eq_f32 vcc, 0x7f800000, v98
    v_cndmask_b32 v101, v102, v101, vcc
    """)
    rbf(101, 101)
    e("v_mul_f32 v101, v101, v100")
    rbf(101, 101)
    e("s_mov_b32 exec_lo, 0x00ff00ff")
    e("s_mov_b32 exec_hi, 0x00ff00ff")
    e(f"ds_write_b32 v44, v101 offset:{L_HB}")
    e("s_mov_b64 exec, -1")
    e("v_mov_b32 v11, 0")
    e("s_waitcnt lgkmcnt(0)")
    e("s_barrier")
    for j in range(4):
        e(f"ds_read_b128 v[{16+4*j}:{19+4*j}], v43 offset:{L_QS+64*j}")
    for k in range(8):
        e(f"ds_read_b128 v[{64+4*k}:{67+4*k}], v11 offset:{L_HB+16*k}")
    load_v(0)
    vm.wait("wd")
    e("s_waitcnt lgkmcnt(0)")
    F0, F1 = 2, 12
    def rowfma(wreg_pairs, opair, first):
        for b, F in ((0, F0), (1, F1)):
            for hlf in range(2):
                wp = wreg_pairs[hlf]; a = F + 2*hlf
                if first:
                    e(f"v_pk_mul_f32 v[{a}:{a+1}], v[{wp}:{wp+1}], v[{opair}:{opair+1}] op_sel:[0,{b}] op_sel_hi:[1,{b}]")
                else:
                    e(f"v_pk_fma_f32 v[{a}:{a+1}], v[{wp}:{wp+1}], v[{opair}:{opair+1}], v[{a}:{a+1}] op_sel:[0,{b},0] op_sel_hi:[1,{b},1]")
    for i in range(16):
        t = 96 + 4*(i & 1)
        for d in range(2):
            e(f"v_lshlrev_b32 v{t+2*d}, 16, v{WDR+2*i+d}")
            e(f"v_and_b32 v{t+2*d+1}, s{S_MASK}, v{WDR+2*i+d}")
        rowfma((t, t+2), 64+2*i, i == 0)
    pace(8); load_v(1)
    SCALE = 0x3db504f3
    e(f"s_mov_b32 s10, {hex(SCALE)}")
    e(f"s_mov_b32 s11, {hex(SCALE)}")
    def qk(t):
        for j in range(4):
            for u in range(2):
                a = 32*t + 16*u + 4*j; s = 64 + 8*t + 4*u
                c = "0" if j == 0 else f"v[{s}:{s+3}]"
                e(f"v_mfma_f32_16x16x32_bf16 v[{s}:{s+3}], a[{a}:{a+3}], v[{16+4*j}:{19+4*j}], {c}")
    def rnd(t):
        for z in range(4):
            r = 64 + 8*t + 2*z; tmp = 40 + (z & 1)
            if MIMIC:
                e(f"v_cvt_pk_bf16_f32 v{tmp}, v{r}, v{r+1}")
                e(f"v_lshlrev_b32 v{r}, 16, v{tmp}")
                e(f"v_and_b32 v{r+1}, s{S_MASK}, v{tmp}")
                e(f"v_pk_mul_f32 v[{r}:{r+1}], v[{r}:{r+1}], s[10:11]")
                e(f"v_cvt_pk_bf16_f32 v{tmp}, v{r}, v{r+1}")
                e(f"v_lshlrev_b32 v{r}, 16, v{tmp}")
                e(f"v_and_b32 v{r+1}, s{S_MASK}, v{tmp}")
            else:
                e(f"v_pk_mul_f32 v[{r}:{r+1}], v[{r}:{r+1}], s[10:11]")
    vm.wait("k7")
    qk(0); qk(1); rnd(0); qk(2); rnd(1); qk(3); rnd(2)
    load_v(2)
    qk(4); rnd(3); qk(5); rnd(4); qk(6); rnd(5); qk(7); rnd(6)
    load_v(3)
    rnd(7)
    stamp()
    e("v_max3_f32 v40, v64, v65, v66")
    e("v_max3_f32 v41, v67, v68, v69")
    k = 70
    while k + 3 < 128:
        e(f"v_max3_f32 v40, v40, v{k}, v{k+1}")
        e(f"v_max3_f32 v41, v41, v{k+2}, v{k+3}")
        k += 4
    e(f"v_max3_f32 v40, v40, v{k}, v{k+1}")
    e("v_max_f32 v40, v40, v41")
    for sw in ("v_permlane16_swap_b32", "v_permlane32_swap_b32"):
        e("v_mov_b32 v41, v40")
        e(f"{sw} v40, v41")
        e("v_max_f32 v40, v40, v41")
    e(f"""
    v_and_b32 v42, 15, v1
    v_lshlrev_b32 v42, 2, v42           ; n*4
    v_lshlrev_b32 v43, 6, v10
    v_add_u32 v43, v43, v42             ; w*64+n*4
    ds_write_b32 v43, v40 offset:{L_MX}
    s_waitcnt lgkmcnt(0)
    s_barrier
    ds_read_b32 v44, v42 offset:{L_MX}
    ds_read_b32 v45, v42 offset:{L_MX+64}
    ds_read_b32 v46, v42 offset:{L_MX+128}
    ds_read_b32 v47, v42 offset:{L_MX+192}
    s_mov_b32 s10, 0x3fb8aa3b
    s_waitcnt lgkmcnt(0)
    v_max3_f32 v44, v44, v45, v46
    v_max_f32 v44, v44, v47
    v_mul_f32 v45, s10, v44             ; M*log2e
    """)
    for r in range(64, 128):
        e(f"v_fma_f32 v{r}, v{r}, s10, -v45")
    for r in range(64, 128):
        e(f"v_exp_f32 v{r}, v{r}")
    e("v_add_f32 v46, v64, v65")
    e("v_add_f32 v47, v66, v67")
    for r in range(68, 128, 2):
        e(f"v_add_f32 v46, v46, v{r}")
        e(f"v_add_f32 v47, v47, v{r+1}")
    e("v_add_f32 v46, v46, v47")
    for z in range(32):
        e(f"v_cvt_pk_bf16_f32 v{64+z}, v{64+2*z}, v{65+2*z}")
    for sw in ("v_permlane16_swap_b32", "v_permlane32_swap_b32"):
        e("v_mov_b32 v47, v46")
        e(f"{sw} v46, v47")
        e("v_add_f32 v46, v46, v47")
    e(f"ds_write_b32 v43, v46 offset:{L_LS}")
    e(f"""
    s_waitcnt lgkmcnt(0)
    s_barrier
    s_cmp_lg_u32 s3, 0
    s_cbranch_scc1 L_noml
    ds_read_b32 v46, v42 offset:{L_LS}
    ds_read_b32 v47, v42 offset:{L_LS+64}
    ds_read_b32 v48, v42 offset:{L_LS+128}
    ds_read_b32 v49, v42 offset:{L_LS+192}
    v_lshlrev_b32 v50, 7, v42           ; n*512
    s_lshl_b32 s{T}, s{S_HKV}, 12       ; hkv*8*512
    s_lshl_b32 s{T2}, s{S_B}, 8
    s_add_u32 s{T}, s{T}, s{T2}
    s_lshl_b32 s{T2}, s{S_S}, 3
    s_add_u32 s{T}, s{T}, s{T2}
    s_add_u32 s{T}, s{T}, {ML}
    s_waitcnt lgkmcnt(0)
    v_add_f32 v46, v46, v47
    v_add_f32 v48, v48, v49
    v_add_f32 v45, v46, v48
    s_mov_b64 exec, 0xff
    """)
    vm.issue("mlst", f"buffer_store_dwordx2 v[44:45], v50, {srd(SWS)}, s{T} offen sc1", definite=False)
    e("s_mov_b64 exec, -1")
    e("L_noml:")
    stamp()
    def pv(t):
        slot = 128 + 32*(t & 3)
        for j in range(8):
            q, p = j >> 1, j & 1
            T4 = 16 + 4*(j & 3)
            for z in range(4):
                e(f"v_perm_b32 v{T4+z}, v{slot+4*(2*z+1)+q}, v{slot+4*(2*z)+q}, s{S_SEL1 if p else S_SEL0}")
            c = "0" if t == 0 else f"v[{32+4*j}:{35+4*j}]"
            e(f"v_mfma_f32_16x16x32_bf16 v[{32+4*j}:{35+4*j}], v[{T4}:{T4+3}], v[{64+4*t}:{67+4*t}], {c}")
    WOR = 96
    e("v_lshlrev_b32 v11, 3, v0")
    vm.wait("v0"); pv(0)
    pace(8); load_v(4)
    pace(8)
    for i in range(16):
        off = (8*(i & 3) + (i >> 2))*2048
        e(f"s_mov_b32 s{T2}, {off}")
        vm.issue("wo", f"buffer_load_dwordx2 v[{WOR+2*i}:{WOR+2*i+1}], v11, {srd(SWO)}, s{T2} offen {NT}")
    vm.wait("v1"); pv(1)
    pace(8); load_v(5)
    vm.wait("v2"); pv(2)
    e(f"""
    v_lshrrev_b32 v6, 1, v1
    s_and_b32 s8, s2, 31
    v_xor_b32 v6, s8, v6
    v_lshlrev_b32 v6, 3, v6
    v_lshrrev_b32 v7, 1, v10
    v_lshlrev_b32 v7, 8, v7
    v_add_u32 v6, v6, v7
    s_lshr_b32 s8, s2, 3
    s_lshl_b32 s8, s8, 9
    s_add_u32 s8, s8, {ML}
    """)
    pace(8)
    vm.issue("ml", f"buffer_load_dwordx2 a[0:1], v6, {srd(SWS)}, s8 offen sc1")
    load_v(6)
    vm.wait("v3"); pv(3)
    pace(8); load_v(7)
    vm.wait("v4"); pv(4)
    vm.wait("wo")
    def unpack_wo(i0):
        for i in range(i0, i0+8):
            for d in range(2):
                e(f"v_lshlrev_b32 v{128+4*i+2*d}, 16, v{WOR+2*i+d}")
                e(f"v_and_b32 v{129+4*i+2*d}, s{S_MASK}, v{WOR+2*i+d}")
    unpack_wo(0)
    vm.wait("v5"); pv(5)
    unpack_wo(8)
    vm.wait("ml")
    e(f"""
    v_accvgpr_read_b32 v96, a0
    v_accvgpr_read_b32 v97, a1
    s_mov_b32 s{S_SPIN}, 0
L_mlspin:
    v_max_u32 v98, v96, v97
    v_cmp_eq_u32 vcc, -1, v98
    s_nop 1
    s_cmp_eq_u64 vcc, 0
    s_cbranch_scc1 L_mlok
    s_add_u32 s{S_SPIN}, s{S_SPIN}, 1
    s_cmp_gt_u32 s{S_SPIN}, {SPIN}
    s_cbranch_scc1 L_end
    buffer_load_dwordx2 v[96:97], v6, {srd(SWS)}, s8 offen sc1
    s_waitcnt vmcnt(0)
    s_branch L_mlspin
L_mlok:
    v_mov_b32 v98, v96
    """)
    wave_red([98], op="max", tmp=104, shifts=(8, 4, 2))
    e("v_sub_f32 v98, v96, v98")
    e("v_mul_f32 v98, 0x3fb8aa3b, v98")
    e("v_exp_f32 v98, v98")
    e("v_mul_f32 v99, v98, v97")
    wave_red([99], op="add", tmp=104, shifts=(8, 4, 2))
    e("""
    v_rcp_f32 v100, v99
    v_mul_f32 v101, v98, v100
    v_fma_f32 v102, -v101, v99, v98
    v_fma_f32 v100, v102, v100, v101    ; f = e_s / L
    """)
    e(f"""
    v_and_b32 v96, 15, v1
    v_mul_u32_u24 v96, 528, v96
    v_lshrrev_b32 v97, 4, v1
    v_lshlrev_b32 v97, 7, v97
    v_add_u32 v96, v96, v97
    v_mul_u32_u24 v97, {OBW}, v10
    v_add_u32 v96, v96, v97
    v_lshrrev_b32 v98, 5, v0
    v_mul_u32_u24 v97, 528, v98
    v_and_b32 v99, 31, v0
    v_lshlrev_b32 v101, 4, v99
    v_add_u32 v97, v97, v101
    v_lshlrev_b32 v98, 15, v98
    v_lshrrev_b32 v101, 2, v99
    v_lshlrev_b32 v101, 12, v101
    v_add_u32 v98, v98, v101
    v_and_b32 v101, 3, v99
    v_lshlrev_b32 v101, 4, v101
    v_add_u32 v98, v98, v101
    v_bfe_u32 v101, v0, 2, 5
    v_xor_b32 v101, s{S_S}, v101
    v_lshlrev_b32 v101, 6, v101
    v_add_u32 v98, v98, v101
    s_lshl_b32 s10, s{S_HKV}, 18
    s_lshl_b32 s{T}, s{S_B}, 11
    s_add_u32 s10, s10, s{T}
    s_add_u32 s10, s10, {PO}
    v_lshrrev_b32 v99, 1, v10
    v_lshlrev_b32 v99, 11, v99
    v_lshrrev_b32 v101, 1, v1
    v_lshlrev_b32 v101, 6, v101
    v_add_u32 v99, v99, v101
    v_and_b32 v101, 1, v10
    v_lshlrev_b32 v101, 5, v101
    v_add_u32 v99, v99, v101
    v_and_b32 v101, 1, v1
    v_lshlrev_b32 v101, 4, v101
    v_add_u32 v99, v99, v101
    s_lshl_b32 s11, s2, 12
    s_add_u32 s11, s11, {PO}
    v_and_b32 v101, 1, v10
    v_lshlrev_b32 v101, 6, v101
    v_and_b32 v102, 1, v1
    v_lshlrev_b32 v102, 5, v102
    v_add_u32 v101, v101, v102
    v_lshrrev_b32 v102, 4, v1
    v_lshlrev_b32 v102, 3, v102
    v_add_u32 v101, v101, v102
    v_lshrrev_b32 v102, 1, v10
    v_lshlrev_b32 v102, 2, v102
    v_add_u32 v101, v101, v102
    v_mov_b32 v102, 0
    v_lshrrev_b32 v103, 1, v0
    v_xor_b32 v11, s2, v103
    v_lshlrev_b32 v103, 13, v103
    v_and_b32 v104, 1, v0
    v_lshlrev_b32 v104, 4, v104
    v_add_u32 v103, v103, v104
    v_xor_b32 v109, 0x80, v11
    v_lshlrev_b32 v109, 5, v109
    v_add_u32 v109, v109, v103
    v_lshlrev_b32 v11, 5, v11
    v_add_u32 v103, v103, v11
    s_mov_b32 s96, {PF}
    s_mov_b32 s97, {PF+0x100000}
    v_lshlrev_b32 v104, 5, v0
    s_lshl_b32 s98, s2, 13
    s_add_u32 s98, s98, {PF}
    v_lshlrev_b32 v105, 5, v10
    v_lshrrev_b32 v106, 4, v1
    v_lshlrev_b32 v106, 3, v106
    v_add_u32 v105, v105, v106
    v_lshlrev_b32 v106, 3, v1
    v_lshlrev_b32 v107, 2, v1
    v_and_b32 v107, 12, v107
    """)
    vm.issue("res", f"buffer_load_dword v108, v107, {srd(SX)}, s9 offen")
    vm.wait("v6"); pv(6)
    vm.wait("v7")
    vm.wait("res")
    stamp()
    pv(7)
    e("v_lshlrev_b32 v110, 16, v108")
    e(f"v_and_b32 v111, s{S_MASK}, v108")
    e("s_mov_b32 exec_lo, 0x00ff00ff")
    e("s_mov_b32 exec_hi, 0x00ff00ff")
    for j in range(8):
        e(f"ds_write_b128 v96, v[{32+4*j}:{35+4*j}] offset:{L_OB+16*j}")
    e("s_mov_b64 exec, -1")
    e("s_waitcnt lgkmcnt(0)")
    e("s_barrier")
    for w in range(4):
        e(f"ds_read_b128 v[{16+4*w}:{19+4*w}], v97 offset:{L_OB+w*OBW}")
    e("s_waitcnt lgkmcnt(2)")
    e("v_pk_add_f32 v[16:17], v[16:17], v[20:21]")
    e("v_pk_add_f32 v[18:19], v[18:19], v[22:23]")
    e("s_waitcnt lgkmcnt(0)")
    e("v_pk_add_f32 v[24:25], v[24:25], v[28:29]")
    e("v_pk_add_f32 v[26:27], v[26:27], v[30:31]")
    e("v_pk_add_f32 v[16:17], v[16:17], v[24:25]")
    e("v_pk_add_f32 v[18:19], v[18:19], v[26:27]")
    vm.issue("post", f"buffer_store_dwordx4 v[16:19], v98, {srd(SWS)}, s10 offen sc1")
    if cfg.get("tstamps"): stamp()
    if cfg.get("drainA", True): e("s_waitcnt vmcnt(0)")
    MASKP = cfg.get("maskpoll", True)
    tailchk = """
    s_and_b64 exec, exec, vcc
    s_cbranch_execnz {L}
    s_mov_b64 exec, -1
    """ if MASKP else """
    s_nop 1
    s_cmp_eq_u64 vcc, 0
    s_cbranch_scc0 {L}
    """
    e(f"s_mov_b32 s{S_SPIN}, 0")
    if cfg.get("preA"):
        e(f"""
    s_mov_b64 exec, {cfg['preA']}
L_popre:
    buffer_load_dword v20, v99, {srd(SWS)}, s11 offen sc1
    s_add_u32 s{S_SPIN}, s{S_SPIN}, 1
    s_cmp_gt_u32 s{S_SPIN}, {SPIN}
    s_cbranch_scc1 L_end
    s_waitcnt vmcnt(0)
    v_cmp_eq_u32 vcc, -1, v20
    s_and_b64 exec, exec, vcc
    s_cbranch_execnz L_popre
    s_mov_b64 exec, -1
    """)
    e(f"""
L_pospin:
    buffer_load_dwordx4 v[20:23], v99, {srd(SWS)}, s11 offen sc1
    s_add_u32 s{S_SPIN}, s{S_SPIN}, 1
    s_cmp_gt_u32 s{S_SPIN}, {SPIN}
    s_cbranch_scc1 L_end
    s_waitcnt vmcnt(0)
    v_max3_u32 v24, v20, v21, v22
    v_max_u32 v24, v24, v23
    v_cmp_eq_u32 vcc, -1, v24
    """)
    e(tailchk.format(L="L_pospin"))
    vm.ops = []
    if STAMPS: e(f"s_mov_b32 s24, s{S_SPIN}")
    stamp()
    e("v_pk_mul_f32 v[20:21], v[20:21], v[100:101] op_sel:[0,0] op_sel_hi:[1,0]")
    e("v_pk_mul_f32 v[22:23], v[22:23], v[100:101] op_sel:[0,0] op_sel_hi:[1,0]")
    e("v_permlane32_swap_b32 v20, v22")
    e("v_permlane32_swap_b32 v21, v23")
    e("v_add_f32 v20, v20, v22")
    e("v_add_f32 v21, v21, v23")
    e("v_permlane16_swap_b32 v20, v21")
    e("v_add_f32 v20, v20, v21")
    for sh in (2, 4, 8):
        e(f"v_add_f32_dpp v20, v20, v20 row_ror:{sh} row_mask:0xf bank_mask:0xf")
    rbf(20, 20)
    e("s_mov_b32 exec_lo, 0x00030003")
    e("s_mov_b32 exec_hi, 0x00030003")
    e(f"ds_write_b32 v101, v20 offset:{L_OBC}")
    e("s_mov_b64 exec, -1")
    e("s_waitcnt lgkmcnt(0)")
    e("s_barrier")
    for k in range(8):
        e(f"ds_read_b128 v[{16+4*k}:{19+4*k}], v102 offset:{L_OBC+16*k}")
    for i in range(16):
        if i % 2 == 0: e(f"s_waitcnt lgkmcnt({7 - i//2})")
        rowfma((128+4*i, 130+4*i), 16+2*i, False)
    vm.issue("pfst", f"buffer_store_dwordx4 v[{F0}:{F0+3}], v103, {srd(SWS)}, s96 offen sc1")
    vm.issue("pfst", f"buffer_store_dwordx4 v[{F1}:{F1+3}], v109, {srd(SWS)}, s97 offen sc1")
    if cfg.get("tstamps"): stamp()
    if cfg.get("sleepB"): e(f"s_sleep {cfg['sleepB']}")
    if cfg.get("drainB", True): e("s_waitcnt vmcnt(0)")
    e(f"s_mov_b32 s{S_SPIN}, 0")
    if cfg.get("preB"):
        e(f"""
    s_mov_b64 exec, {cfg['preB']}
L_pfpre:
    buffer_load_dword v20, v104, {srd(SWS)}, s98 offen offset:16 sc1
    s_add_u32 s{S_SPIN}, s{S_SPIN}, 1
    s_cmp_gt_u32 s{S_SPIN}, {SPIN}
    s_cbranch_scc1 L_end
    s_waitcnt vmcnt(0)
    v_cmp_eq_u32 vcc, -1, v20
    s_and_b64 exec, exec, vcc
    s_cbranch_execnz L_pfpre
    s_mov_b64 exec, -1
    """)
    e(f"""
L_pfspin:
    buffer_load_dwordx4 v[20:23], v104, {srd(SWS)}, s98 offen sc1
    buffer_load_dwordx4 v[24:27], v104, {srd(SWS)}, s98 offen offset:16 sc1
    s_add_u32 s{S_SPIN}, s{S_SPIN}, 1
    s_cmp_gt_u32 s{S_SPIN}, {SPIN}
    s_cbranch_scc1 L_end
    s_waitcnt vmcnt(0)
    v_max3_u32 v28, v20, v21, v22
    v_max3_u32 v29, v23, v24, v25
    v_max3_u32 v28, v28, v26, v27
    v_max_u32 v28, v28, v29
    v_cmp_eq_u32 vcc, -1, v28
    """)
    e(tailchk.format(L="L_pfspin"))
    vm.ops = []
    if STAMPS: e(f"s_mov_b32 s25, s{S_SPIN}")
    stamp()
    for c in range(4): e(f"v_permlane32_swap_b32 v{20+c}, v{24+c}")
    e("v_pk_add_f32 v[20:21], v[20:21], v[24:25]")
    e("v_pk_add_f32 v[22:23], v[22:23], v[26:27]")
    for c in range(2): e(f"v_permlane16_swap_b32 v{20+c}, v{22+c}")
    e("v_pk_add_f32 v[20:21], v[20:21], v[22:23]")
    for sh in (1, 2, 4, 8):
        for k in range(2): e(f"v_add_f32_dpp v{20+k}, v{20+k}, v{20+k} row_ror:{sh} row_mask:0xf bank_mask:0xf")
    e("s_mov_b32 exec_lo, 0x00010001")
    e("s_mov_b32 exec_hi, 0x00010001")
    e(f"ds_write_b64 v105, v[20:21] offset:{L_FIN}")
    e("s_mov_b64 exec, -1")
    e("s_waitcnt lgkmcnt(0)")
    e("s_barrier")
    e("s_cmp_lg_u32 s3, 0")
    e("s_cbranch_scc1 L_end")
    e("s_mov_b64 exec, 15")
    for w in range(4):
        e(f"ds_read_b64 v[{20+2*w}:{21+2*w}], v106 offset:{L_FIN+32*w}")
    e("s_waitcnt lgkmcnt(0)")
    e("v_pk_add_f32 v[20:21], v[20:21], v[22:23]")
    e("v_pk_add_f32 v[24:25], v[24:25], v[26:27]")
    e("v_pk_add_f32 v[20:21], v[20:21], v[24:25]")
    e("v_pk_add_f32 v[20:21], v[20:21], v[110:111]")
    e("v_cvt_pk_bf16_f32 v20, v20, v21")
    e(f"buffer_store_dword v20, v107, {srd(SOUT)}, s9 offen")
    if STAMPS:
        stamp()
        e("s_mov_b64 exec, 1")
        e(f"s_add_u32 s{SX}, s26, {240<<20}")
        e(f"s_addc_u32 s{SX+1}, s27, 0")
        e(f"s_and_b32 s{SX+1}, s{SX+1}, 0xffff")
        e(f"s_mov_b32 s{SX+2}, 0x10000")
        e(f"s_lshl_b32 s{T}, s2, 7")
        e("v_mov_b32 v2, 0")
        for k in range(stamp_n[0]):
            r = stamp_regs[k]
            e(f"v_mov_b32 v4, s{r}")
            e(f"v_mov_b32 v5, s{r+1}")
            e(f"buffer_store_dwordx2 v[4:5], v2, {srd(SX)}, s{T} offen offset:{8*k}")
            e("s_nop 2")
        e("v_mov_b32 v4, s24")
        e("v_mov_b32 v5, s25")
        e(f"buffer_store_dwordx2 v[4:5], v2, {srd(SX)}, s{T} offen offset:{8*15}")
    e("L_end:")
    e("s_endpgm")
    e(kernel_desc(NAME, 512, 102, 256))
    body, n = hazard.fix(e.text())
    hdr = HEADER_COMMENTS + f"; @launch grid=(256,1,1) block=(256,1,1) lds={LDS}\n" + '.amdgcn_target "amdgcn-amd-amdhsa--gfx950"\n.text\n'
    return hdr + body, n, LDS

if __name__ == "__main__":
    import json
    cfg = json.loads(sys.argv[2]) if len(sys.argv) > 2 else {}
    out = sys.argv[1]
    txt, n, lds = gen(cfg)
    open(out, "w").write(txt)
    print("nops inserted", n, "lines", txt.count("\n"), "lds", lds)
```

```python
import sys
from common import *
import hazard

NAME = "parallel_sum__gqa_block_cached__swiglu_ffn__decode_kernel"

class VM:
    def __init__(self, e): self.e = e; self.ops = []
    def issue(self, tag, line, definite=True):
        self.e(line); self.ops.append((tag, definite))
    def wait(self, tag):
        idx = [i for i, (t, d) in enumerate(self.ops) if t == tag]
        if not idx: return
        idx = max(idx)
        n = sum(1 for t, d in self.ops[idx+1:] if d)
        assert n <= 63, (tag, n)
        self.e(f"s_waitcnt vmcnt({n})")
        self.ops = self.ops[idx+1:]
        return n
    def count_after(self, tag):
        idx = max(i for i, (t, d) in enumerate(self.ops) if t == tag)
        return sum(1 for t, d in self.ops[idx+1:] if d)
    def wait_leave(self, n):
        if sum(1 for t, d in self.ops if d) <= n and all(d for t, d in self.ops): return
        self.e(f"s_waitcnt vmcnt({n})")
        while self.ops and sum(1 for t, d in self.ops[1:] if d) >= n: self.ops.pop(0)
    def drain(self):
        self.e("s_waitcnt vmcnt(0)"); self.ops = []

def gen(cfg):
    MIMIC = cfg.get("mimic", True)
    STAMPS = cfg.get("stamps", False)
    WIN = cfg.get("win", 16)
    NT = cfg.get("nt", "nt")
    NTW = cfg.get("ntw", "nt")
    SPIN = cfg.get("spin", 200000)
    e = E(); vm = VM(e)
    stamp_regs = [76+2*k for k in range(10)] + [12, 14, 16, 18, 20, 22]
    stamp_n = [0]
    def stamp():
        if not STAMPS: return
        k = stamp_n[0]; stamp_n[0] += 1
        r = stamp_regs[k]
        e(f"s_memrealtime s[{r}:{r+1}]")
        e("s_waitcnt lgkmcnt(0)")
    SX, SWQ, SWG, SWU, SK, SV, SWD, SWO, SWS, SOUT, SDBG = 28, 32, 36, 40, 44, 48, 52, 56, 60, 64, 68
    srd = lambda b: f"s[{b}:{b+3}]"
    S_MASK = 72
    S_T = 73; S_T2 = 74; S_SPIN = 75
    S_SEL0, S_SEL1 = 100, 101
    S_B, S_HKV, S_S, S_CB = 4, 5, 6, 7
    QP, GU, ML, PO, PF = 0, 0x20000, 0x60000, 0x100000, 0x200000
    L_HB = 1536
    L_MX = 1664
    L_LS = 1920
    L_OBC = 2176
    L_FIN = 2304
    L_OB = 2560
    OBW = 8*528
    LDS = L_OB + 4*OBW
    L_RED = L_OB
    L_XN = L_OB + 6144
    L_QS = L_OB + 8192
    T, T2 = S_T, S_T2

    if cfg.get("oddlight", False):
        RROLE = "s_and_b32 s{d}, s2, 1\n    s_lshl_b32 s{d}, s{d}, 7\n    s_lshr_b32 s98, s2, 1\n    s_add_u32 s{d}, s{d}, s98"
    elif cfg.get("ol2"):
        RROLE = ("s_and_b32 s{d}, s2, 1\n    s_lshl_b32 s{d}, s{d}, 5\n    s_sub_u32 s98, s2, 192\n    s_lshr_b32 s98, s98, 1\n"
                 "    s_add_u32 s{d}, s{d}, s98\n    s_add_u32 s{d}, s{d}, 192\n    s_cmp_lt_u32 s2, 192\n    s_cselect_b32 s{d}, s2, s{d}")
    else:
        RROLE = "s_mov_b32 s{d}, s2"
    e(kernel_head(NAME))
    e(f"""
    s_cmp_ge_u32 s2, 256
    s_cbranch_scc1 L_end
    {('s_xor_b32 s2, s2, %d' % cfg['jx']) if cfg.get('jx') else ''}
    {('s_branch L_pad' + chr(10) + ('    s_nop 0' + chr(10)) * (cfg['pad']//4 - 1) + 'L_pad:') if cfg.get('pad') else ''}
    s_load_dwordx16 s[4:19], s[0:1], 0
    s_load_dwordx8 s[20:27], s[0:1], 64
    v_and_b32 v1, 63, v0
    v_lshrrev_b32 v10, 6, v0
    v_readfirstlane_b32 s3, v10
    s_mov_b32 s{S_MASK}, 0xffff0000
    s_mov_b32 s{S_SEL0}, 0x05040100
    s_mov_b32 s{S_SEL1}, 0x07060302
    """)
    e(f"""
    {RROLE.format(d=97)}
    s_and_b32 s96, s97, 3              ; rq
    s_lshr_b32 s97, s97, 2             ; cg
    s_lshl_b32 s98, s96, 8             ; rq*256
    v_lshrrev_b32 v11, 3, v1
    v_lshlrev_b32 v12, 6, v10
    v_add_u32 v11, v11, v12
    v_add_u32 v11, s98, v11            ; row0
    v_and_b32 v12, 7, v1
    v_lshlrev_b32 v12, 4, v12          ; cc*16
    v_lshlrev_b32 v2, 13, v11
    v_add_u32 v2, v2, v12
    s_movk_i32 s{T}, 7168
    v_mul_lo_u32 v3, v11, s{T}
    v_add_u32 v3, v3, v12
    v_lshlrev_b32 v4, 5, v1
    v_lshlrev_b32 v5, 6, v10
    v_add_u32 v5, v5, v1
    v_add_u32 v5, s98, v5
    v_lshlrev_b32 v5, 1, v5
    v_lshlrev_b32 v57, 3, v0
    v_and_b32 v11, 3, v1
    v_lshlrev_b32 v11, 2, v11
    v_bfe_u32 v12, v1, 2, 2
    v_add_u32 v11, v11, v12
    v_lshlrev_b32 v11, 8, v11
    v_lshrrev_b32 v12, 4, v1
    v_lshlrev_b32 v12, 4, v12
    v_add_u32 v11, v11, v12
    v_lshlrev_b32 v12, 16, v10         ; w*65536
    v_add_u32 v6, v11, v12
    v_add_u32 v7, 4096, v6
    v_lshlrev_b32 v11, 4, v1
    v_add_u32 v8, v11, v12
    v_add_u32 v9, 4096, v8
    s_waitcnt lgkmcnt(0)
    s_lshl_b32 s0, s97, 2
    s_add_u32 s0, s0, s96              ; r
    """)
    stamp()
    def mk_srd(dst, plo, off_sgpr, size):
        if off_sgpr is None:
            e(f"s_mov_b32 s{dst}, s{plo}")
            e(f"s_and_b32 s{dst+1}, s{plo+1}, 0xffff")
        else:
            e(f"s_add_u32 s{dst}, s{plo}, s{off_sgpr}")
            e(f"s_addc_u32 s{dst+1}, s{plo+1}, 0")
            e(f"s_and_b32 s{dst+1}, s{dst+1}, 0xffff")
        e(f"s_mov_b32 s{dst+2}, {size}")
        e(f"s_mov_b32 s{dst+3}, 0x20000")
    mk_srd(SX, 4, None, 4096)
    for b in range(2):
        for hlf in range(2):
            vm.issue("x", f"buffer_load_dwordx4 v[{16+8*b+4*hlf}:{19+8*b+4*hlf}], v4, {srd(SX)}, 0 offen offset:{b*2048+hlf*16}")
    for b in range(2):
        vm.issue("x", f"buffer_load_ushort v{32+b}, v5, {srd(SX)}, 0 offen offset:{b*2048}")
    if cfg.get("xq"): e(f"s_xor_b32 s97, s97, {cfg['xq']}")
    e(f"s_lshl_b32 s{T}, s97, 7")
    if cfg.get("xq"): e(f"s_xor_b32 s97, s97, {cfg['xq']}")
    mk_srd(SWQ, 10, T, 0)
    e(f"s_sub_u32 s{SWQ+2}, 0x800000, s{T}")
    e(f"s_mov_b32 s{T2}, 0")
    for i in range(8):
        vm.issue("wq", f"buffer_load_dwordx4 v[{128+4*i}:{131+4*i}], v2, {srd(SWQ)}, s{T2} offen {NTW}")
        if i < 7: e(f"s_add_u32 s{T2}, s{T2}, {8*8192}")
    if cfg.get("xg"): e(f"s_xor_b32 s97, s97, {cfg['xg']}")
    e(f"s_lshl_b32 s{T}, s97, 7")
    if cfg.get("xg"): e(f"s_xor_b32 s97, s97, {cfg['xg']}")
    MM = cfg.get("mm", True)
    XG, XU = (2, 4) if MM else (0, 0)
    if MM: e(f"s_xor_b32 s{T}, s{T}, {XG << 7}")
    mk_srd(SWG, 16, T, 0)
    e(f"s_sub_u32 s99, {7<<20}, s{T}")
    if MM: e(f"s_xor_b32 s{T}, s{T}, {(XG ^ XU) << 7}")
    mk_srd(SWU, 18, T, 0)
    e(f"""
    s_sub_u32 s{T2}, {7<<20}, s{T}
    s_cmp_lt_u32 s0, 224
    s_cselect_b32 s{SWG+2}, s99, 0
    s_cselect_b32 s{SWU+2}, s{T2}, 0
    s_mov_b32 s{T2}, 0
    """)
    for i in range(8):
        vm.issue("wg", f"buffer_load_dwordx4 v[{160+4*i}:{163+4*i}], v3, {srd(SWG)}, s{T2} offen {NTW}")
        if i < 7: e(f"s_add_u32 s{T2}, s{T2}, {8*7168}")
    e(f"s_mov_b32 s{T2}, 0")
    for i in range(8):
        vm.issue("wu", f"buffer_load_dwordx4 v[{192+4*i}:{195+4*i}], v3, {srd(SWU)}, s{T2} offen {NTW}")
        if i < 7: e(f"s_add_u32 s{T2}, s{T2}, {8*7168}")
    mk_srd(SWS, 26, None, 0x400000)
    NOCLR = cfg.get("noclr", False)
    CLRPOS = cfg.get("clrpos", "early")
    def clears():
        e(f"""
        v_mov_b32 v112, -1
        v_mov_b32 v113, -1
        v_mov_b32 v114, -1
        v_mov_b32 v115, -1
        v_lshlrev_b32 v11, 4, v0           ; tid*16
        s_lshl_b32 s{T}, s2, 12
        s_add_u32 s{T}, s{T}, {PO}
        """)
        if not NOCLR: vm.issue("clr", f"buffer_store_dwordx4 v[112:115], v11, {srd(SWS)}, s{T} offen sc1")
        e(f"""
        s_lshl_b32 s{T}, s2, 13
        s_add_u32 s{T}, s{T}, {PF}
        """)
        if not NOCLR: vm.issue("clr", f"buffer_store_dwordx4 v[112:115], v11, {srd(SWS)}, s{T} offen sc1")
        e(f"s_add_u32 s{T}, s{T}, 4096")
        if not NOCLR: vm.issue("clr", f"buffer_store_dwordx4 v[112:115], v11, {srd(SWS)}, s{T} offen sc1")
        e(f"""
        v_lshlrev_b32 v12, 4, v10          ; w*16
        s_lshl_b32 s{T}, s2, 6
        s_add_u32 s{T}, s{T}, {ML}
        s_mov_b64 exec, 1
        """)
        if not NOCLR: vm.issue("clr", f"buffer_store_dwordx4 v[112:115], v12, {srd(SWS)}, s{T} offen sc1")
        e("s_mov_b64 exec, -1")

    if CLRPOS == "early": clears()
    e(f"s_lshl_b32 s{T}, s0, 15")
    mk_srd(SWD, 20, T, 0)
    e(f"""
    s_cmp_lt_u32 s0, 224
    s_cselect_b32 s{SWD+2}, 0x8000, 0
    """)
    WDR = 224
    def load_wd():
        e(f"s_mov_b32 s{T2}, 0")
        for i in range(16):
            vm.issue("wd", f"buffer_load_dwordx2 v[{WDR+2*i}:{WDR+2*i+1}], v57, {srd(SWD)}, s{T2} offen {NT}")
            if i < 15: e(f"s_add_u32 s{T2}, s{T2}, 2048")
    if cfg.get("xmap", False):
        e(f"""
    s_and_b32 s99, s2, 7
    s_lshl_b32 s99, s99, 5
    s_lshr_b32 s{T}, s2, 3
    s_add_u32 s99, s99, s{T}
    """)
    else:
        e("s_mov_b32 s99, s2")
    e(f"s_lshl_b32 s{T}, s99, 18")
    kvsz = 0 if cfg.get("nokv") else 0x40000
    mk_srd(SK, 6, T, kvsz)
    mk_srd(SV, 8, T, kvsz)
    e(f"""
    s_lshr_b32 s{T}, s2, 3
    s_lshl_b32 s{T}, s{T}, 7
    s_bfe_u32 s{T2}, s2, 0x20001       ; (dq>>1)
    s_lshl_b32 s{T2}, s{T2}, 5
    s_add_u32 s{T}, s{T}, s{T2}
    s_and_b32 s{T2}, s2, 1
    s_lshl_b32 s{T2}, s{T2}, 2
    s_add_u32 s{T}, s{T}, s{T2}
    s_lshl_b32 s{T}, s{T}, 11
    """)
    mk_srd(SWO, 12, T, 28*2048)
    mk_srd(SOUT, 22, None, 4096)
    mk_srd(SDBG, 24, None, 256)
    e(f"""
    s_lshr_b32 s{S_B}, s99, 7
    s_bfe_u32 s{S_HKV}, s99, 0x20005
    s_and_b32 s{S_S}, s99, 31
    s_mov_b32 s{S_CB}, s97           ; cg
    s_mov_b32 s8, s96                 ; rq
    s_and_b32 s{T}, s2, 127
    s_lshl_b32 s{T}, s{T}, 4
    s_lshr_b32 s{T2}, s2, 7
    s_lshl_b32 s{T2}, s{T2}, 11
    s_add_u32 s9, s{T}, s{T2}
    """)
    vm.wait("x")
    XS = 64
    for b in range(2):
        for q in range(8):
            e(f"v_lshlrev_b32 v{XS+16*b+2*q}, 16, v{16+8*b+q}")
            e(f"v_and_b32 v{XS+16*b+2*q+1}, s{S_MASK}, v{16+8*b+q}")
    def wave_red(regs, op="add", tmp=104, shifts=(8, 4, 2, 1)):
        o = {"add": "v_add_f32", "max": "v_max_f32"}[op]
        for sh in shifts:
            for r in regs: e(f"{o}_dpp v{r}, v{r}, v{r} row_ror:{sh} row_mask:0xf bank_mask:0xf")
        for sw in ("v_permlane16_swap_b32", "v_permlane32_swap_b32"):
            for k, r in enumerate(regs): e(f"v_mov_b32 v{tmp+k}, v{r}")
            for k, r in enumerate(regs): e(f"{sw} v{r}, v{tmp+k}")
            for k, r in enumerate(regs): e(f"{o} v{r}, v{r}, v{tmp+k}")
    for b in range(2):
        e(f"v_add_f32 v{96+b}, v{XS+16*b}, v{XS+16*b+1}")
    for q in range(2, 16):
        for b in range(2):
            e(f"v_add_f32 v{96+b}, v{96+b}, v{XS+16*b+q}")
    wave_red([96, 97])
    def rbf(dst, src):
        e(f"v_cvt_pk_bf16_f32 v{dst}, v{src}, v{src}")
        e(f"v_and_b32 v{dst}, s{S_MASK}, v{dst}")
    for b in range(2): e(f"v_mul_f32 v{96+b}, 0x3a800000, v{96+b}")
    for q in range(16):
        for b in range(2):
            e(f"v_sub_f32 v{XS+16*b+q}, v{XS+16*b+q}, v{96+b}")
    for b in range(2): e(f"v_mul_f32 v{98+b}, v{XS+16*b}, v{XS+16*b}")
    for q in range(1, 16):
        for b in range(2):
            e(f"v_fmac_f32 v{98+b}, v{XS+16*b+q}, v{XS+16*b+q}")
    wave_red([98, 99])
    for b in range(2):
        e(f"v_mul_f32 v{98+b}, 0x3a800000, v{98+b}")
        rbf(98+b, 98+b)
        e(f"v_add_f32 v{98+b}, 0x3727c5ac, v{98+b}")
        rbf(98+b, 98+b)
        e(f"v_sqrt_f32 v{98+b}, v{98+b}")
        rbf(98+b, 98+b)
        rbf(96+b, 96+b)
        e(f"v_rcp_f32 v{100+b}, v{98+b}")
    for b in range(2):
        e(f"v_lshlrev_b32 v{64+b}, 16, v{32+b}")
    for b in range(2):
        e(f"v_sub_f32 v{64+b}, v{64+b}, v{96+b}")
    for b in range(2): rbf(64+b, 64+b)
    for b in range(2):
        e(f"v_mul_f32 v102, v{64+b}, v{100+b}")
        e(f"v_fma_f32 v103, -v102, v{98+b}, v{64+b}")
        e(f"v_fma_f32 v{64+b}, v103, v{100+b}, v102")
    for b in range(2): rbf(64+b, 64+b)
    e(f"""
    v_lshlrev_b32 v11, 9, v10
    v_lshlrev_b32 v12, 3, v1
    v_add_u32 v12, v12, v11             ; w*512 + l*8
    ds_write_b64 v12, v[64:65] offset:{L_XN}
    v_lshrrev_b32 v12, 3, v1
    v_lshlrev_b32 v12, 3, v12
    v_add_u32 v12, v12, v11             ; w*512 + (l>>3)*8
    s_waitcnt lgkmcnt(0)
    """)
    for i in range(8):
        e(f"ds_read_b64 v[{40+2*i}:{41+2*i}], v12 offset:{L_XN+64*i}")
    e(f"""
    v_and_b32 v14, 7, v1
    v_lshlrev_b32 v14, 5, v14
    v_lshrrev_b32 v12, 4, v1
    v_lshlrev_b32 v12, 3, v12
    v_add_u32 v14, v14, v12
    v_add_u32 v14, v14, v11
    s_waitcnt lgkmcnt(0)
    """)
    stamp()
    ACC = 96
    def gemv(wbase, m):
        for i in range(8):
            for q in range(4):
                t = 112 + 2*((i*4+q) & 1)
                w = wbase + 4*i + q
                e(f"v_lshlrev_b32 v{t}, 16, v{w}")
                e(f"v_and_b32 v{t+1}, s{S_MASK}, v{w}")
                for p in range(2):
                    a = ACC + 2*(2*q+p)
                    sel = "op_sel:[0,0,0] op_sel_hi:[0,1,1]" if p == 0 else "op_sel:[1,0,0] op_sel_hi:[1,1,1]"
                    if i == 0:
                        sel2 = "op_sel:[0,0] op_sel_hi:[0,1]" if p == 0 else "op_sel:[1,0] op_sel_hi:[1,1]"
                        e(f"v_pk_mul_f32 v[{a}:{a+1}], v[{t}:{t+1}], v[40:41] {sel2}")
                    else:
                        e(f"v_pk_fma_f32 v[{a}:{a+1}], v[{t}:{t+1}], v[{40+2*i}:{41+2*i}], v[{a}:{a+1}] {sel}")
        A = lambda c, b: ACC + 2*c + b
        for c in range(4):
            for b in range(2): e(f"v_permlane32_swap_b32 v{A(c,b)}, v{A(c+4,b)}")
        for c in range(4):
            e(f"v_pk_add_f32 v[{A(c,0)}:{A(c,1)}], v[{A(c,0)}:{A(c,1)}], v[{A(c+4,0)}:{A(c+4,1)}]")
        for c in range(2):
            for b in range(2): e(f"v_permlane16_swap_b32 v{A(c,b)}, v{A(c+2,b)}")
        for c in range(2):
            e(f"v_pk_add_f32 v[{A(c,0)}:{A(c,1)}], v[{A(c,0)}:{A(c,1)}], v[{A(c+2,0)}:{A(c+2,1)}]")
        for k in range(4): e(f"v_add_f32_dpp v{ACC+k}, v{ACC+k}, v{ACC+k} row_ror:8 row_mask:0xf bank_mask:0xf")
        e(f"v_swap_b32 v{ACC+1}, v{ACC+2}")
        e("s_mov_b32 exec_lo, 0x00ff00ff")
        e("s_mov_b32 exec_hi, 0x00ff00ff")
        e(f"ds_write_b64 v14, v[{ACC}:{ACC+1}] offset:{L_RED+m*2048}")
        e(f"ds_write_b64 v14, v[{ACC+2}:{ACC+3}] offset:{L_RED+m*2048+256}")
        e("s_mov_b64 exec, -1")
    def load_k(t):
        e(f"s_mov_b32 s{T2}, {t*8192}")
        for u in range(2):
            for j in range(4):
                a = 32*t + 16*u + 4*j
                vm.issue(f"k{t}", f"buffer_load_dwordx4 a[{a}:{a+3}], v{6+u}, {srd(SK)}, s{T2} offen offset:{j*64} {NT}")
    def load_v(t):
        e(f"s_mov_b32 s{T2}, {t*8192}")
        for i in range(8):
            r = 128 + 32*(t & 3) + 4*i
            vm.issue(f"v{t}", f"buffer_load_dwordx4 v[{r}:{r+3}], v{8+(i>>2)}, {srd(SV)}, s{T2} offen offset:{(i&3)*1024} {NT}")
    WINV = [WIN]
    def pace(next_n):
        vm.wait_leave(max(WINV[0] - next_n, 0))
    if CLRPOS == "ln": clears()
    load_k(0)
    vm.wait("wq")
    stamp()
    gemv(128, 0)
    if CLRPOS == "q": clears()
    load_k(1)
    vm.wait("wg")
    gemv(160, 1)
    if CLRPOS == "g": clears()
    load_wd()
    vm.wait("wu")
    stamp()
    gemv(192, 2)
    e("s_waitcnt lgkmcnt(0)")
    e("s_barrier")
    e(f"""
    s_cmp_lg_u32 s3, 0
    s_cbranch_scc1 L_nopub
    v_lshrrev_b32 v11, 5, v1
    v_lshlrev_b32 v11, 11, v11          ; m*2048
    v_bfe_u32 v12, v1, 4, 1
    v_lshlrev_b32 v13, 8, v12           ; b*256
    v_add_u32 v11, v11, v13
    v_and_b32 v14, 15, v1
    v_lshlrev_b32 v15, 4, v14           ; c4*16
    v_add_u32 v11, v11, v15
    v_and_b32 v58, 0x7ff, v11
    """)
    for w in range(4):
        e(f"ds_read_b128 v[{96+4*w}:{99+4*w}], v11 offset:{L_RED+w*512}")
    for w in range(4):
        e(f"ds_read_b128 v[{64+4*w}:{67+4*w}], v58 offset:{L_RED+4096+w*512}")
    e(f"""
    v_lshlrev_b32 v59, 14, v12
    v_add_u32 v59, v59, v15
    s_lshl_b32 s{T}, s8, 15
    s_lshl_b32 s{T2}, s{S_CB}, 8
    s_add_u32 s{T}, s{T}, s{T2}
    v_add_u32 v59, s{T}, v59
    v_lshrrev_b32 v60, 2, v14
    v_lshlrev_b32 v60, 10, v60
    v_lshlrev_b32 v61, 6, v12
    v_add_u32 v60, v60, v61
    v_and_b32 v61, 3, v14
    v_lshlrev_b32 v61, 4, v61
    v_add_u32 v60, v60, v61
    s_lshl_b32 s{T}, s{S_CB}, 12
    s_lshl_b32 s{T2}, s8, 8
    s_add_u32 s{T}, s{T}, s{T2}
    s_add_u32 s{T}, s{T}, {GU}
    s_xor_b32 s{T}, s{T}, {XG << 12}
    v_add_u32 v60, s{T}, v60
    v_cmp_gt_u32 vcc, 32, v1
    v_cndmask_b32 v59, v60, v59, vcc
    v_xor_b32 v60, {(XG ^ XU) << 12}, v60
    v_add_u32 v60, 128, v60             ; u address
    s_waitcnt lgkmcnt(4)
    v_pk_add_f32 v[96:97], v[96:97], v[100:101]
    v_pk_add_f32 v[98:99], v[98:99], v[102:103]
    v_pk_add_f32 v[104:105], v[104:105], v[108:109]
    v_pk_add_f32 v[106:107], v[106:107], v[110:111]
    v_pk_add_f32 v[96:97], v[96:97], v[104:105]
    v_pk_add_f32 v[98:99], v[98:99], v[106:107]
    """)
    vm.issue("pub", f"buffer_store_dwordx4 v[96:99], v59, {srd(SWS)}, 0 offen sc1", definite=False)
    e(f"""
    s_waitcnt lgkmcnt(0)
    v_pk_add_f32 v[64:65], v[64:65], v[68:69]
    v_pk_add_f32 v[66:67], v[66:67], v[70:71]
    v_pk_add_f32 v[72:73], v[72:73], v[76:77]
    v_pk_add_f32 v[74:75], v[74:75], v[78:79]
    v_pk_add_f32 v[64:65], v[64:65], v[72:73]
    v_pk_add_f32 v[66:67], v[66:67], v[74:75]
    s_mov_b32 exec_hi, 0
    """)
    vm.issue("pub", f"buffer_store_dwordx4 v[64:67], v60, {srd(SWS)}, 0 offen sc1", definite=False)
    e("s_mov_b64 exec, -1")
    e("L_nopub:")
    load_k(2)
    stamp()
    vm.wait_leave(8)
    assert all(t in ("k2",) for t, d in vm.ops), vm.ops
    e("s_barrier")
    e("s_cmp_lg_u32 s3, 0")
    e("s_cbranch_scc1 L_nosig")
    e(f"""
    v_mov_b32 v11, 1
    s_and_b32 s{T}, s2, 3
    s_lshl_b32 s{T}, s{T}, 6
    v_mov_b32 v12, s{T}
    s_mov_b64 exec, 1
    """)
    vm.issue("sig", f"buffer_atomic_add v11, v12, {srd(SDBG)}, 0 offen sc1", definite=False)
    e("s_mov_b64 exec, -1")
    e("L_nosig:")
    load_k(3)
    POLLK = cfg.get("pollk", 6)
    for t in range(4, POLLK):
        pace(8); load_k(t)
    e(f"""
    s_cmp_lg_u32 s3, 0
    s_cbranch_scc1 L_nopoll1
    v_and_b32 v40, 3, v1
    v_lshlrev_b32 v40, 6, v40
    """)
    vm.issue("poll", f"buffer_load_dword v41, v40, {srd(SDBG)}, 0 offen sc1", definite=False)
    e("L_nopoll1:")
    pace(8); load_k(POLLK)
    e("s_cmp_lg_u32 s3, 0")
    e("s_cbranch_scc1 L_qok")
    e(f"s_waitcnt vmcnt({vm.count_after('poll')})")
    e(f"""
    s_mov_b32 s{S_SPIN}, 0
L_qspin:
    v_cmp_eq_u32 vcc, 64, v41
    s_nop 1
    s_cmp_eq_u64 vcc, -1
    s_cbranch_scc1 L_qok
    s_add_u32 s{S_SPIN}, s{S_SPIN}, 1
    s_cmp_gt_u32 s{S_SPIN}, {SPIN}
    s_cbranch_scc1 L_end
    buffer_load_dword v41, v40, {srd(SDBG)}, 0 offen sc1
    s_waitcnt vmcnt(0)
    s_branch L_qspin
L_qok:
    s_barrier
    v_lshlrev_b32 v40, 4, v0
    s_lshl_b32 s{T}, s{S_B}, 14
    s_lshl_b32 s{T2}, s{S_HKV}, 12
    s_add_u32 s{T}, s{T}, s{T2}
    """)
    for rq in range(4):
        vm.issue("q", f"buffer_load_dwordx4 v[{16+4*rq}:{19+4*rq}], v40, {srd(SWS)}, s{T} offen sc1")
        if rq < 3: e(f"s_add_u32 s{T}, s{T}, 32768")
    e(f"""
    v_lshlrev_b32 v41, 4, v1
    s_lshl_b32 s{T}, s0, 10
    s_add_u32 s{T}, s{T}, {GU}
    """)
    vm.issue("q", f"buffer_load_dwordx4 v[32:35], v41, {srd(SWS)}, s{T} offen sc1")
    for t in range(POLLK+1, 8):
        load_k(t)
    e(f"""
    v_lshrrev_b32 v42, 5, v0
    v_lshlrev_b32 v42, 4, v42           ; (t>>5)*16
    v_lshlrev_b32 v43, 3, v0
    v_add_u32 v42, v42, v43
    v_and_b32 v43, 7, v1
    v_mul_u32_u24 v43, 272, v43
    v_lshrrev_b32 v44, 4, v1
    v_lshlrev_b32 v44, 4, v44
    v_add_u32 v43, v43, v44
    v_and_b32 v44, 3, v1
    v_lshlrev_b32 v44, 5, v44
    v_lshrrev_b32 v45, 4, v1
    v_lshlrev_b32 v45, 3, v45
    v_add_u32 v44, v44, v45
    v_bfe_u32 v45, v1, 2, 1
    v_lshlrev_b32 v45, 2, v45
    v_add_u32 v44, v44, v45
    """)
    vm.wait("q")
    stamp()
    e(f"""
    v_pk_add_f32 v[16:17], v[16:17], v[20:21]
    v_pk_add_f32 v[18:19], v[18:19], v[22:23]
    v_pk_add_f32 v[24:25], v[24:25], v[28:29]
    v_pk_add_f32 v[26:27], v[26:27], v[30:31]
    v_pk_add_f32 v[16:17], v[16:17], v[24:25]
    v_pk_add_f32 v[18:19], v[18:19], v[26:27]
    v_cvt_pk_bf16_f32 v16, v16, v17
    v_cvt_pk_bf16_f32 v17, v18, v19
    ds_write_b64 v42, v[16:17] offset:{L_QS}
    v_permlane32_swap_b32 v32, v34
    v_permlane32_swap_b32 v33, v35
    v_pk_add_f32 v[32:33], v[32:33], v[34:35]
    v_permlane16_swap_b32 v32, v33
    v_add_f32 v96, v32, v33
    """)
    rbf(96, 96)
    e(f"""
    v_mov_b32_dpp v100, v96 row_ror:8 row_mask:0xf bank_mask:0xf     ; u
    v_mul_f32 v98, 0xbfb8aa3b, v96      ; -g*log2e
    v_exp_f32 v98, v98
    v_add_f32 v98, 1.0, v98
    v_rcp_f32 v99, v98
    v_mul_f32 v101, v96, v99
    v_fma_f32 v102, -v101, v98, v96
    v_fma_f32 v102, v102, v99, v101
    v_cmp_eq_f32 vcc, 0x7f800000, v98
    v_cndmask_b32 v101, v102, v101, vcc
    """)
    rbf(101, 101)
    e("v_mul_f32 v101, v101, v100")
    rbf(101, 101)
    e("s_mov_b32 exec_lo, 0x00ff00ff")
    e("s_mov_b32 exec_hi, 0x00ff00ff")
    e(f"ds_write_b32 v44, v101 offset:{L_HB}")
    e("s_mov_b64 exec, -1")
    e("v_mov_b32 v11, 0")
    e("s_waitcnt lgkmcnt(0)")
    e("s_barrier")
    for j in range(4):
        e(f"ds_read_b128 v[{16+4*j}:{19+4*j}], v43 offset:{L_QS+64*j}")
    for k in range(8):
        e(f"ds_read_b128 v[{64+4*k}:{67+4*k}], v11 offset:{L_HB+16*k}")
    load_v(0)
    vm.wait("wd")
    e("s_waitcnt lgkmcnt(0)")
    F0, F1 = 2, 12
    def rowfma(wreg_pairs, opair, first):
        for b, F in ((0, F0), (1, F1)):
            for hlf in range(2):
                wp = wreg_pairs[hlf]; a = F + 2*hlf
                if first:
                    e(f"v_pk_mul_f32 v[{a}:{a+1}], v[{wp}:{wp+1}], v[{opair}:{opair+1}] op_sel:[0,{b}] op_sel_hi:[1,{b}]")
                else:
                    e(f"v_pk_fma_f32 v[{a}:{a+1}], v[{wp}:{wp+1}], v[{opair}:{opair+1}], v[{a}:{a+1}] op_sel:[0,{b},0] op_sel_hi:[1,{b},1]")
    for i in range(16):
        t = 96 + 4*(i & 1)
        for d in range(2):
            e(f"v_lshlrev_b32 v{t+2*d}, 16, v{WDR+2*i+d}")
            e(f"v_and_b32 v{t+2*d+1}, s{S_MASK}, v{WDR+2*i+d}")
        rowfma((t, t+2), 64+2*i, i == 0)
    pace(8); load_v(1)
    SCALE = 0x3db504f3
    e(f"s_mov_b32 s10, {hex(SCALE)}")
    e(f"s_mov_b32 s11, {hex(SCALE)}")
    def qk(t):
        for j in range(4):
            for u in range(2):
                a = 32*t + 16*u + 4*j; s = 64 + 8*t + 4*u
                c = "0" if j == 0 else f"v[{s}:{s+3}]"
                e(f"v_mfma_f32_16x16x32_bf16 v[{s}:{s+3}], a[{a}:{a+3}], v[{16+4*j}:{19+4*j}], {c}")
    def rnd(t):
        for z in range(4):
            r = 64 + 8*t + 2*z; tmp = 40 + (z & 1)
            if MIMIC:
                e(f"v_cvt_pk_bf16_f32 v{tmp}, v{r}, v{r+1}")
                e(f"v_lshlrev_b32 v{r}, 16, v{tmp}")
                e(f"v_and_b32 v{r+1}, s{S_MASK}, v{tmp}")
                e(f"v_pk_mul_f32 v[{r}:{r+1}], v[{r}:{r+1}], s[10:11]")
                e(f"v_cvt_pk_bf16_f32 v{tmp}, v{r}, v{r+1}")
                e(f"v_lshlrev_b32 v{r}, 16, v{tmp}")
                e(f"v_and_b32 v{r+1}, s{S_MASK}, v{tmp}")
            else:
                e(f"v_pk_mul_f32 v[{r}:{r+1}], v[{r}:{r+1}], s[10:11]")
    vm.wait("k7")
    qk(0); qk(1); rnd(0); qk(2); rnd(1); qk(3); rnd(2)
    load_v(2)
    qk(4); rnd(3); qk(5); rnd(4); qk(6); rnd(5); qk(7); rnd(6)
    load_v(3)
    rnd(7)
    stamp()
    e("v_max3_f32 v40, v64, v65, v66")
    e("v_max3_f32 v41, v67, v68, v69")
    k = 70
    while k + 3 < 128:
        e(f"v_max3_f32 v40, v40, v{k}, v{k+1}")
        e(f"v_max3_f32 v41, v41, v{k+2}, v{k+3}")
        k += 4
    e(f"v_max3_f32 v40, v40, v{k}, v{k+1}")
    e("v_max_f32 v40, v40, v41")
    for sw in ("v_permlane16_swap_b32", "v_permlane32_swap_b32"):
        e("v_mov_b32 v41, v40")
        e(f"{sw} v40, v41")
        e("v_max_f32 v40, v40, v41")
    e(f"""
    v_and_b32 v42, 15, v1
    v_lshlrev_b32 v42, 2, v42           ; n*4
    v_lshlrev_b32 v43, 6, v10
    v_add_u32 v43, v43, v42             ; w*64+n*4
    ds_write_b32 v43, v40 offset:{L_MX}
    s_waitcnt lgkmcnt(0)
    s_barrier
    ds_read_b32 v44, v42 offset:{L_MX}
    ds_read_b32 v45, v42 offset:{L_MX+64}
    ds_read_b32 v46, v42 offset:{L_MX+128}
    ds_read_b32 v47, v42 offset:{L_MX+192}
    s_mov_b32 s10, 0x3fb8aa3b
    s_waitcnt lgkmcnt(0)
    v_max3_f32 v44, v44, v45, v46
    v_max_f32 v44, v44, v47
    v_mul_f32 v45, s10, v44             ; M*log2e
    """)
    for r in range(64, 128):
        e(f"v_fma_f32 v{r}, v{r}, s10, -v45")
    for r in range(64, 128):
        e(f"v_exp_f32 v{r}, v{r}")
    e("v_add_f32 v46, v64, v65")
    e("v_add_f32 v47, v66, v67")
    for r in range(68, 128, 2):
        e(f"v_add_f32 v46, v46, v{r}")
        e(f"v_add_f32 v47, v47, v{r+1}")
    e("v_add_f32 v46, v46, v47")
    for z in range(32):
        e(f"v_cvt_pk_bf16_f32 v{64+z}, v{64+2*z}, v{65+2*z}")
    for sw in ("v_permlane16_swap_b32", "v_permlane32_swap_b32"):
        e("v_mov_b32 v47, v46")
        e(f"{sw} v46, v47")
        e("v_add_f32 v46, v46, v47")
    e(f"ds_write_b32 v43, v46 offset:{L_LS}")
    e(f"""
    s_waitcnt lgkmcnt(0)
    s_barrier
    s_cmp_lg_u32 s3, 0
    s_cbranch_scc1 L_noml
    ds_read_b32 v46, v42 offset:{L_LS}
    ds_read_b32 v47, v42 offset:{L_LS+64}
    ds_read_b32 v48, v42 offset:{L_LS+128}
    ds_read_b32 v49, v42 offset:{L_LS+192}
    v_lshlrev_b32 v50, 7, v42           ; n*512
    s_lshl_b32 s{T}, s{S_HKV}, 12       ; hkv*8*512
    s_lshl_b32 s{T2}, s{S_B}, 8
    s_add_u32 s{T}, s{T}, s{T2}
    s_lshl_b32 s{T2}, s{S_S}, 3
    s_add_u32 s{T}, s{T}, s{T2}
    s_add_u32 s{T}, s{T}, {ML}
    s_waitcnt lgkmcnt(0)
    v_add_f32 v46, v46, v47
    v_add_f32 v48, v48, v49
    v_add_f32 v45, v46, v48
    s_mov_b64 exec, 0xff
    """)
    vm.issue("mlst", f"buffer_store_dwordx2 v[44:45], v50, {srd(SWS)}, s{T} offen sc1", definite=False)
    e("s_mov_b64 exec, -1")
    e("L_noml:")
    stamp()
    def pv(t):
        slot = 128 + 32*(t & 3)
        for j in range(8):
            q, p = j >> 1, j & 1
            T4 = 16 + 4*(j & 3)
            for z in range(4):
                e(f"v_perm_b32 v{T4+z}, v{slot+4*(2*z+1)+q}, v{slot+4*(2*z)+q}, s{S_SEL1 if p else S_SEL0}")
            c = "0" if t == 0 else f"v[{32+4*j}:{35+4*j}]"
            e(f"v_mfma_f32_16x16x32_bf16 v[{32+4*j}:{35+4*j}], v[{T4}:{T4+3}], v[{64+4*t}:{67+4*t}], {c}")
    WOR = 96
    e("v_lshlrev_b32 v11, 3, v0")
    WINV[0] = cfg.get("winv", WIN)
    vm.wait("v0"); pv(0)
    pace(8); load_v(4)
    pace(8)
    for i in range(16):
        off = (8*(i & 3) + (i >> 2))*2048
        e(f"s_mov_b32 s{T2}, {off}")
        vm.issue("wo", f"buffer_load_dwordx2 v[{WOR+2*i}:{WOR+2*i+1}], v11, {srd(SWO)}, s{T2} offen {NT}")
    vm.wait("v1"); pv(1)
    pace(8); load_v(5)
    vm.wait("v2"); pv(2)
    e(f"""
    v_lshrrev_b32 v6, 1, v1
    s_and_b32 s8, s2, 31
    v_xor_b32 v6, s8, v6
    v_lshlrev_b32 v6, 3, v6
    v_lshrrev_b32 v7, 1, v10
    v_lshlrev_b32 v7, 8, v7
    v_add_u32 v6, v6, v7
    s_lshr_b32 s8, s2, 3
    s_lshl_b32 s8, s8, 9
    s_add_u32 s8, s8, {ML}
    """)
    pace(8)
    vm.issue("ml", f"buffer_load_dwordx2 a[0:1], v6, {srd(SWS)}, s8 offen sc1")
    load_v(6)
    vm.wait("v3"); pv(3)
    pace(8); load_v(7)
    vm.wait("v4"); pv(4)
    vm.wait("wo")
    def unpack_wo(i0):
        for i in range(i0, i0+8):
            for d in range(2):
                e(f"v_lshlrev_b32 v{128+4*i+2*d}, 16, v{WOR+2*i+d}")
                e(f"v_and_b32 v{129+4*i+2*d}, s{S_MASK}, v{WOR+2*i+d}")
    unpack_wo(0)
    vm.wait("v5"); pv(5)
    unpack_wo(8)
    vm.wait("ml")
    e(f"""
    v_accvgpr_read_b32 v96, a0
    v_accvgpr_read_b32 v97, a1
    s_mov_b32 s{S_SPIN}, 0
L_mlspin:
    v_max_u32 v98, v96, v97
    v_cmp_eq_u32 vcc, -1, v98
    s_nop 1
    s_cmp_eq_u64 vcc, 0
    s_cbranch_scc1 L_mlok
    s_add_u32 s{S_SPIN}, s{S_SPIN}, 1
    s_cmp_gt_u32 s{S_SPIN}, {SPIN}
    s_cbranch_scc1 L_end
    buffer_load_dwordx2 v[96:97], v6, {srd(SWS)}, s8 offen sc1
    s_waitcnt vmcnt(0)
    s_branch L_mlspin
L_mlok:
    v_mov_b32 v98, v96
    """)
    wave_red([98], op="max", tmp=104, shifts=(8, 4, 2))
    e("v_sub_f32 v98, v96, v98")
    e("v_mul_f32 v98, 0x3fb8aa3b, v98")
    e("v_exp_f32 v98, v98")
    e("v_mul_f32 v99, v98, v97")
    wave_red([99], op="add", tmp=104, shifts=(8, 4, 2))
    e("""
    v_rcp_f32 v100, v99
    v_mul_f32 v101, v98, v100
    v_fma_f32 v102, -v101, v99, v98
    v_fma_f32 v100, v102, v100, v101    ; f = e_s / L
    """)
    e(f"""
    v_and_b32 v96, 15, v1
    v_mul_u32_u24 v96, 528, v96
    v_lshrrev_b32 v97, 4, v1
    v_lshlrev_b32 v97, 7, v97
    v_add_u32 v96, v96, v97
    v_mul_u32_u24 v97, {OBW}, v10
    v_add_u32 v96, v96, v97
    v_lshrrev_b32 v98, 5, v0
    v_mul_u32_u24 v97, 528, v98
    v_and_b32 v99, 31, v0
    v_lshlrev_b32 v101, 4, v99
    v_add_u32 v97, v97, v101
    v_lshlrev_b32 v98, 15, v98
    v_lshrrev_b32 v101, 2, v99
    v_lshlrev_b32 v101, 12, v101
    v_add_u32 v98, v98, v101
    v_and_b32 v101, 3, v99
    v_lshlrev_b32 v101, 4, v101
    v_add_u32 v98, v98, v101
    v_bfe_u32 v101, v0, 2, 5
    v_xor_b32 v101, s{S_S}, v101
    v_lshlrev_b32 v101, 6, v101
    v_add_u32 v98, v98, v101
    s_lshl_b32 s10, s{S_HKV}, 18
    s_lshl_b32 s{T}, s{S_B}, 11
    s_add_u32 s10, s10, s{T}
    s_add_u32 s10, s10, {PO}
    v_lshrrev_b32 v99, 1, v10
    v_lshlrev_b32 v99, 11, v99
    v_lshrrev_b32 v101, 1, v1
    v_lshlrev_b32 v101, 6, v101
    v_add_u32 v99, v99, v101
    v_and_b32 v101, 1, v10
    v_lshlrev_b32 v101, 5, v101
    v_add_u32 v99, v99, v101
    v_and_b32 v101, 1, v1
    v_lshlrev_b32 v101, 4, v101
    v_add_u32 v99, v99, v101
    s_lshl_b32 s11, s2, 12
    s_add_u32 s11, s11, {PO}
    v_and_b32 v101, 1, v10
    v_lshlrev_b32 v101, 6, v101
    v_and_b32 v102, 1, v1
    v_lshlrev_b32 v102, 5, v102
    v_add_u32 v101, v101, v102
    v_lshrrev_b32 v102, 4, v1
    v_lshlrev_b32 v102, 3, v102
    v_add_u32 v101, v101, v102
    v_lshrrev_b32 v102, 1, v10
    v_lshlrev_b32 v102, 2, v102
    v_add_u32 v101, v101, v102
    v_mov_b32 v102, 0
    v_lshrrev_b32 v103, 1, v0
    v_xor_b32 v11, s2, v103
    v_lshlrev_b32 v103, 13, v103
    v_and_b32 v104, 1, v0
    v_lshlrev_b32 v104, 4, v104
    v_add_u32 v103, v103, v104
    v_xor_b32 v109, 0x80, v11
    v_lshlrev_b32 v109, 5, v109
    v_add_u32 v109, v109, v103
    v_lshlrev_b32 v11, 5, v11
    v_add_u32 v103, v103, v11
    s_mov_b32 s96, {PF}
    s_mov_b32 s97, {PF+0x100000}
    v_lshlrev_b32 v104, 5, v0
    s_lshl_b32 s98, s2, 13
    s_add_u32 s98, s98, {PF}
    v_lshlrev_b32 v105, 5, v10
    v_lshrrev_b32 v106, 4, v1
    v_lshlrev_b32 v106, 3, v106
    v_add_u32 v105, v105, v106
    v_lshlrev_b32 v106, 3, v1
    v_lshlrev_b32 v107, 2, v1
    v_and_b32 v107, 12, v107
    """)
    vm.issue("res", f"buffer_load_dword v108, v107, {srd(SX)}, s9 offen")
    vm.wait("v6"); pv(6)
    vm.wait("v7")
    vm.wait("res")
    stamp()
    pv(7)
    e("v_lshlrev_b32 v110, 16, v108")
    e(f"v_and_b32 v111, s{S_MASK}, v108")
    e("s_mov_b32 exec_lo, 0x00ff00ff")
    e("s_mov_b32 exec_hi, 0x00ff00ff")
    for j in range(8):
        e(f"ds_write_b128 v96, v[{32+4*j}:{35+4*j}] offset:{L_OB+16*j}")
    e("s_mov_b64 exec, -1")
    e("s_waitcnt lgkmcnt(0)")
    e("s_barrier")
    for w in range(4):
        e(f"ds_read_b128 v[{16+4*w}:{19+4*w}], v97 offset:{L_OB+w*OBW}")
    e("s_waitcnt lgkmcnt(2)")
    e("v_pk_add_f32 v[16:17], v[16:17], v[20:21]")
    e("v_pk_add_f32 v[18:19], v[18:19], v[22:23]")
    e("s_waitcnt lgkmcnt(0)")
    e("v_pk_add_f32 v[24:25], v[24:25], v[28:29]")
    e("v_pk_add_f32 v[26:27], v[26:27], v[30:31]")
    e("v_pk_add_f32 v[16:17], v[16:17], v[24:25]")
    e("v_pk_add_f32 v[18:19], v[18:19], v[26:27]")
    vm.issue("post", f"buffer_store_dwordx4 v[16:19], v98, {srd(SWS)}, s10 offen sc1")
    if cfg.get("tstamps"): stamp()
    if cfg.get("drainA", True): e("s_waitcnt vmcnt(0)")
    MASKP = cfg.get("maskpoll", True)
    tailchk = """
    s_and_b64 exec, exec, vcc
    s_cbranch_execnz {L}
    s_mov_b64 exec, -1
    """ if MASKP else """
    s_nop 1
    s_cmp_eq_u64 vcc, 0
    s_cbranch_scc0 {L}
    """
    e(f"s_mov_b32 s{S_SPIN}, 0")
    if cfg.get("preA"):
        e(f"""
    s_mov_b64 exec, {cfg['preA']}
L_popre:
    buffer_load_dword v20, v99, {srd(SWS)}, s11 offen sc1
    s_add_u32 s{S_SPIN}, s{S_SPIN}, 1
    s_cmp_gt_u32 s{S_SPIN}, {SPIN}
    s_cbranch_scc1 L_end
    s_waitcnt vmcnt(0)
    v_cmp_eq_u32 vcc, -1, v20
    s_and_b64 exec, exec, vcc
    s_cbranch_execnz L_popre
    s_mov_b64 exec, -1
    """)
    e(f"""
L_pospin:
    buffer_load_dwordx4 v[20:23], v99, {srd(SWS)}, s11 offen sc1
    s_add_u32 s{S_SPIN}, s{S_SPIN}, 1
    s_cmp_gt_u32 s{S_SPIN}, {SPIN}
    s_cbranch_scc1 L_end
    s_waitcnt vmcnt(0)
    v_max3_u32 v24, v20, v21, v22
    v_max_u32 v24, v24, v23
    v_cmp_eq_u32 vcc, -1, v24
    """)
    e(tailchk.format(L="L_pospin"))
    vm.ops = []
    if STAMPS: e(f"s_mov_b32 s24, s{S_SPIN}")
    stamp()
    e("v_pk_mul_f32 v[20:21], v[20:21], v[100:101] op_sel:[0,0] op_sel_hi:[1,0]")
    e("v_pk_mul_f32 v[22:23], v[22:23], v[100:101] op_sel:[0,0] op_sel_hi:[1,0]")
    e("v_permlane32_swap_b32 v20, v22")
    e("v_permlane32_swap_b32 v21, v23")
    e("v_add_f32 v20, v20, v22")
    e("v_add_f32 v21, v21, v23")
    e("v_permlane16_swap_b32 v20, v21")
    e("v_add_f32 v20, v20, v21")
    for sh in (2, 4, 8):
        e(f"v_add_f32_dpp v20, v20, v20 row_ror:{sh} row_mask:0xf bank_mask:0xf")
    rbf(20, 20)
    e("s_mov_b32 exec_lo, 0x00030003")
    e("s_mov_b32 exec_hi, 0x00030003")
    e(f"ds_write_b32 v101, v20 offset:{L_OBC}")
    e("s_mov_b64 exec, -1")
    e("s_waitcnt lgkmcnt(0)")
    e("s_barrier")
    for k in range(8):
        e(f"ds_read_b128 v[{16+4*k}:{19+4*k}], v102 offset:{L_OBC+16*k}")
    for i in range(16):
        if i % 2 == 0: e(f"s_waitcnt lgkmcnt({7 - i//2})")
        rowfma((128+4*i, 130+4*i), 16+2*i, False)
    vm.issue("pfst", f"buffer_store_dwordx4 v[{F0}:{F0+3}], v103, {srd(SWS)}, s96 offen sc1")
    vm.issue("pfst", f"buffer_store_dwordx4 v[{F1}:{F1+3}], v109, {srd(SWS)}, s97 offen sc1")
    if cfg.get("tstamps"): stamp()
    if cfg.get("sleepB"): e(f"s_sleep {cfg['sleepB']}")
    if cfg.get("drainB", True): e("s_waitcnt vmcnt(0)")
    e(f"s_mov_b32 s{S_SPIN}, 0")
    if cfg.get("preB"):
        e(f"""
    s_mov_b64 exec, {cfg['preB']}
L_pfpre:
    buffer_load_dword v20, v104, {srd(SWS)}, s98 offen offset:16 sc1
    s_add_u32 s{S_SPIN}, s{S_SPIN}, 1
    s_cmp_gt_u32 s{S_SPIN}, {SPIN}
    s_cbranch_scc1 L_end
    s_waitcnt vmcnt(0)
    v_cmp_eq_u32 vcc, -1, v20
    s_and_b64 exec, exec, vcc
    s_cbranch_execnz L_pfpre
    s_mov_b64 exec, -1
    """)
    e(f"""
L_pfspin:
    buffer_load_dwordx4 v[20:23], v104, {srd(SWS)}, s98 offen sc1
    buffer_load_dwordx4 v[24:27], v104, {srd(SWS)}, s98 offen offset:16 sc1
    s_add_u32 s{S_SPIN}, s{S_SPIN}, 1
    s_cmp_gt_u32 s{S_SPIN}, {SPIN}
    s_cbranch_scc1 L_end
    s_waitcnt vmcnt(0)
    v_max3_u32 v28, v20, v21, v22
    v_max3_u32 v29, v23, v24, v25
    v_max3_u32 v28, v28, v26, v27
    v_max_u32 v28, v28, v29
    v_cmp_eq_u32 vcc, -1, v28
    """)
    e(tailchk.format(L="L_pfspin"))
    vm.ops = []
    if STAMPS: e(f"s_mov_b32 s25, s{S_SPIN}")
    stamp()
    for c in range(4): e(f"v_permlane32_swap_b32 v{20+c}, v{24+c}")
    e("v_pk_add_f32 v[20:21], v[20:21], v[24:25]")
    e("v_pk_add_f32 v[22:23], v[22:23], v[26:27]")
    for c in range(2): e(f"v_permlane16_swap_b32 v{20+c}, v{22+c}")
    e("v_pk_add_f32 v[20:21], v[20:21], v[22:23]")
    for sh in (1, 2, 4, 8):
        for k in range(2): e(f"v_add_f32_dpp v{20+k}, v{20+k}, v{20+k} row_ror:{sh} row_mask:0xf bank_mask:0xf")
    e("s_mov_b32 exec_lo, 0x00010001")
    e("s_mov_b32 exec_hi, 0x00010001")
    e(f"ds_write_b64 v105, v[20:21] offset:{L_FIN}")
    e("s_mov_b64 exec, -1")
    e("s_waitcnt lgkmcnt(0)")
    e("s_barrier")
    e("s_cmp_lg_u32 s3, 0")
    e("s_cbranch_scc1 L_end")
    e("s_mov_b64 exec, 15")
    for w in range(4):
        e(f"ds_read_b64 v[{20+2*w}:{21+2*w}], v106 offset:{L_FIN+32*w}")
    e("s_waitcnt lgkmcnt(0)")
    e("v_pk_add_f32 v[20:21], v[20:21], v[22:23]")
    e("v_pk_add_f32 v[24:25], v[24:25], v[26:27]")
    e("v_pk_add_f32 v[20:21], v[20:21], v[24:25]")
    e("v_pk_add_f32 v[20:21], v[20:21], v[110:111]")
    e("v_cvt_pk_bf16_f32 v20, v20, v21")
    e(f"buffer_store_dword v20, v107, {srd(SOUT)}, s9 offen")
    if STAMPS:
        stamp()
        e("s_mov_b64 exec, 1")
        e(f"s_add_u32 s{SX}, s26, {240<<20}")
        e(f"s_addc_u32 s{SX+1}, s27, 0")
        e(f"s_and_b32 s{SX+1}, s{SX+1}, 0xffff")
        e(f"s_mov_b32 s{SX+2}, 0x10000")
        e(f"s_lshl_b32 s{T}, s2, 7")
        e("v_mov_b32 v2, 0")
        for k in range(stamp_n[0]):
            r = stamp_regs[k]
            e(f"v_mov_b32 v4, s{r}")
            e(f"v_mov_b32 v5, s{r+1}")
            e(f"buffer_store_dwordx2 v[4:5], v2, {srd(SX)}, s{T} offen offset:{8*k}")
            e("s_nop 2")
        e("v_mov_b32 v4, s24")
        e("v_mov_b32 v5, s25")
        e(f"buffer_store_dwordx2 v[4:5], v2, {srd(SX)}, s{T} offen offset:{8*15}")
    e("L_end:")
    e("s_endpgm")
    e(kernel_desc(NAME, 512, 102, 256))
    body, n = hazard.fix(e.text())
    hdr = HEADER_COMMENTS + f"; @launch grid=(256,1,1) block=(256,1,1) lds={LDS}\n" + '.amdgcn_target "amdgcn-amd-amdhsa--gfx950"\n.text\n'
    return hdr + body, n, LDS

if __name__ == "__main__":
    import json
    cfg = json.loads(sys.argv[2]) if len(sys.argv) > 2 else {}
    out = sys.argv[1]
    txt, n, lds = gen(cfg)
    open(out, "w").write(txt)
    print("nops inserted", n, "lines", txt.count("\n"), "lds", lds)
```

```python
import sys
from common import *
import hazard

NAME = "parallel_sum__gqa_block_cached__swiglu_ffn__decode_kernel"

class VM:
    def __init__(self, e): self.e = e; self.ops = []
    def issue(self, tag, line, definite=True):
        self.e(line); self.ops.append((tag, definite))
    def wait(self, tag):
        idx = [i for i, (t, d) in enumerate(self.ops) if t == tag]
        if not idx: return
        idx = max(idx)
        n = sum(1 for t, d in self.ops[idx+1:] if d)
        assert n <= 63, (tag, n)
        self.e(f"s_waitcnt vmcnt({n})")
        self.ops = self.ops[idx+1:]
        return n
    def count_after(self, tag):
        idx = max(i for i, (t, d) in enumerate(self.ops) if t == tag)
        return sum(1 for t, d in self.ops[idx+1:] if d)
    def wait_leave(self, n):
        if sum(1 for t, d in self.ops if d) <= n and all(d for t, d in self.ops): return
        self.e(f"s_waitcnt vmcnt({n})")
        while self.ops and sum(1 for t, d in self.ops[1:] if d) >= n: self.ops.pop(0)
    def drain(self):
        self.e("s_waitcnt vmcnt(0)"); self.ops = []

def gen(cfg):
    MIMIC = cfg.get("mimic", True)
    STAMPS = cfg.get("stamps", False)
    WIN = cfg.get("win", 16)
    NT = cfg.get("nt", "nt")
    NTW = cfg.get("ntw", "nt")
    SPIN = cfg.get("spin", 200000)
    e = E(); vm = VM(e)
    stamp_regs = [76+2*k for k in range(10)] + [12, 14, 16, 18, 20, 22]
    stamp_n = [0]
    def stamp():
        if not STAMPS: return
        k = stamp_n[0]; stamp_n[0] += 1
        r = stamp_regs[k]
        e(f"s_memrealtime s[{r}:{r+1}]")
        e("s_waitcnt lgkmcnt(0)")
    SX, SWQ, SWG, SWU, SK, SV, SWD, SWO, SWS, SOUT, SDBG = 28, 32, 36, 40, 44, 48, 52, 56, 60, 64, 68
    srd = lambda b: f"s[{b}:{b+3}]"
    S_MASK = 72
    S_T = 73; S_T2 = 74; S_SPIN = 75
    S_SEL0, S_SEL1 = 100, 101
    S_B, S_HKV, S_S, S_CB = 4, 5, 6, 7
    QP, GU, ML, PO, PF = 0, 0x20000, 0x60000, 0x100000, 0x200000
    L_HB = 1536
    L_MX = 1664
    L_LS = 1920
    L_OBC = 2176
    L_FIN = 2304
    L_OB = 2560
    OBW = 8*528
    LDS = L_OB + 4*OBW
    L_RED = L_OB
    L_XN = L_OB + 6144
    L_QS = L_OB + 8192
    T, T2 = S_T, S_T2

    if cfg.get("oddlight", False):
        RROLE = "s_and_b32 s{d}, s2, 1\n    s_lshl_b32 s{d}, s{d}, 7\n    s_lshr_b32 s98, s2, 1\n    s_add_u32 s{d}, s{d}, s98"
    elif cfg.get("ol2"):
        RROLE = ("s_and_b32 s{d}, s2, 1\n    s_lshl_b32 s{d}, s{d}, 5\n    s_sub_u32 s98, s2, 192\n    s_lshr_b32 s98, s98, 1\n"
                 "    s_add_u32 s{d}, s{d}, s98\n    s_add_u32 s{d}, s{d}, 192\n    s_cmp_lt_u32 s2, 192\n    s_cselect_b32 s{d}, s2, s{d}")
    else:
        RROLE = "s_mov_b32 s{d}, s2"
    e(kernel_head(NAME))
    e(f"""
    s_cmp_ge_u32 s2, 256
    s_cbranch_scc1 L_end
    {('s_xor_b32 s2, s2, %d' % cfg['jx']) if cfg.get('jx') else ''}
    {('s_branch L_pad' + chr(10) + ('    s_nop 0' + chr(10)) * (cfg['pad']//4 - 1) + 'L_pad:') if cfg.get('pad') else ''}
    s_load_dwordx16 s[4:19], s[0:1], 0
    s_load_dwordx8 s[20:27], s[0:1], 64
    v_and_b32 v1, 63, v0
    v_lshrrev_b32 v10, 6, v0
    v_readfirstlane_b32 s3, v10
    s_mov_b32 s{S_MASK}, 0xffff0000
    s_mov_b32 s{S_SEL0}, 0x05040100
    s_mov_b32 s{S_SEL1}, 0x07060302
    """)
    e(f"""
    {RROLE.format(d=97)}
    s_and_b32 s96, s97, 3              ; rq
    s_lshr_b32 s97, s97, 2             ; cg
    s_lshl_b32 s98, s96, 8             ; rq*256
    v_lshrrev_b32 v11, 3, v1
    v_lshlrev_b32 v12, 6, v10
    v_add_u32 v11, v11, v12
    v_add_u32 v11, s98, v11            ; row0
    v_and_b32 v12, 7, v1
    v_lshlrev_b32 v12, 4, v12          ; cc*16
    v_lshlrev_b32 v2, 13, v11
    v_add_u32 v2, v2, v12
    s_movk_i32 s{T}, 7168
    v_mul_lo_u32 v3, v11, s{T}
    v_add_u32 v3, v3, v12
    v_lshlrev_b32 v4, 5, v1
    v_lshlrev_b32 v5, 6, v10
    v_add_u32 v5, v5, v1
    v_add_u32 v5, s98, v5
    v_lshlrev_b32 v5, 1, v5
    v_lshlrev_b32 v57, 3, v0
    v_and_b32 v11, 3, v1
    v_lshlrev_b32 v11, 2, v11
    v_bfe_u32 v12, v1, 2, 2
    v_add_u32 v11, v11, v12
    v_lshlrev_b32 v11, 8, v11
    v_lshrrev_b32 v12, 4, v1
    v_lshlrev_b32 v12, 4, v12
    v_add_u32 v11, v11, v12
    v_lshlrev_b32 v12, {13 if cfg.get("ilv") else 16}, v10
    v_add_u32 v6, v11, v12
    v_add_u32 v7, 4096, v6
    v_lshlrev_b32 v11, 4, v1
    v_add_u32 v8, v11, v12
    v_add_u32 v9, 4096, v8
    s_waitcnt lgkmcnt(0)
    s_lshl_b32 s0, s97, 2
    s_add_u32 s0, s0, s96              ; r
    """)
    stamp()
    def mk_srd(dst, plo, off_sgpr, size):
        if off_sgpr is None:
            e(f"s_mov_b32 s{dst}, s{plo}")
            e(f"s_and_b32 s{dst+1}, s{plo+1}, 0xffff")
        else:
            e(f"s_add_u32 s{dst}, s{plo}, s{off_sgpr}")
            e(f"s_addc_u32 s{dst+1}, s{plo+1}, 0")
            e(f"s_and_b32 s{dst+1}, s{dst+1}, 0xffff")
        e(f"s_mov_b32 s{dst+2}, {size}")
        e(f"s_mov_b32 s{dst+3}, 0x20000")
    mk_srd(SX, 4, None, 4096)
    for b in range(2):
        for hlf in range(2):
            vm.issue("x", f"buffer_load_dwordx4 v[{16+8*b+4*hlf}:{19+8*b+4*hlf}], v4, {srd(SX)}, 0 offen offset:{b*2048+hlf*16}")
    for b in range(2):
        vm.issue("x", f"buffer_load_ushort v{32+b}, v5, {srd(SX)}, 0 offen offset:{b*2048}")
    if cfg.get("xq"): e(f"s_xor_b32 s97, s97, {cfg['xq']}")
    e(f"s_lshl_b32 s{T}, s97, 7")
    if cfg.get("xq"): e(f"s_xor_b32 s97, s97, {cfg['xq']}")
    mk_srd(SWQ, 10, T, 0)
    e(f"s_sub_u32 s{SWQ+2}, 0x800000, s{T}")
    e(f"s_mov_b32 s{T2}, 0")
    for i in range(8):
        vm.issue("wq", f"buffer_load_dwordx4 v[{128+4*i}:{131+4*i}], v2, {srd(SWQ)}, s{T2} offen {NTW}")
        if i < 7: e(f"s_add_u32 s{T2}, s{T2}, {8*8192}")
    if cfg.get("xg"): e(f"s_xor_b32 s97, s97, {cfg['xg']}")
    e(f"s_lshl_b32 s{T}, s97, 7")
    if cfg.get("xg"): e(f"s_xor_b32 s97, s97, {cfg['xg']}")
    MM = cfg.get("mm", True)
    XG, XU = (2, 4) if MM else (0, 0)
    if MM: e(f"s_xor_b32 s{T}, s{T}, {XG << 7}")
    mk_srd(SWG, 16, T, 0)
    e(f"s_sub_u32 s99, {7<<20}, s{T}")
    if MM: e(f"s_xor_b32 s{T}, s{T}, {(XG ^ XU) << 7}")
    mk_srd(SWU, 18, T, 0)
    e(f"""
    s_sub_u32 s{T2}, {7<<20}, s{T}
    s_cmp_lt_u32 s0, 224
    s_cselect_b32 s{SWG+2}, s99, 0
    s_cselect_b32 s{SWU+2}, s{T2}, 0
    s_mov_b32 s{T2}, 0
    """)
    for i in range(8):
        vm.issue("wg", f"buffer_load_dwordx4 v[{160+4*i}:{163+4*i}], v3, {srd(SWG)}, s{T2} offen {NTW}")
        if i < 7: e(f"s_add_u32 s{T2}, s{T2}, {8*7168}")
    e(f"s_mov_b32 s{T2}, 0")
    for i in range(8):
        vm.issue("wu", f"buffer_load_dwordx4 v[{192+4*i}:{195+4*i}], v3, {srd(SWU)}, s{T2} offen {NTW}")
        if i < 7: e(f"s_add_u32 s{T2}, s{T2}, {8*7168}")
    mk_srd(SWS, 26, None, 0x400000)
    NOCLR = cfg.get("noclr", False)
    CLRPOS = cfg.get("clrpos", "early")
    def clears():
        e(f"""
        v_mov_b32 v112, -1
        v_mov_b32 v113, -1
        v_mov_b32 v114, -1
        v_mov_b32 v115, -1
        v_lshlrev_b32 v11, 4, v0           ; tid*16
        s_lshl_b32 s{T}, s2, 12
        s_add_u32 s{T}, s{T}, {PO}
        """)
        if not NOCLR: vm.issue("clr", f"buffer_store_dwordx4 v[112:115], v11, {srd(SWS)}, s{T} offen sc1")
        e(f"""
        s_lshl_b32 s{T}, s2, 13
        s_add_u32 s{T}, s{T}, {PF}
        """)
        if not NOCLR: vm.issue("clr", f"buffer_store_dwordx4 v[112:115], v11, {srd(SWS)}, s{T} offen sc1")
        e(f"s_add_u32 s{T}, s{T}, 4096")
        if not NOCLR: vm.issue("clr", f"buffer_store_dwordx4 v[112:115], v11, {srd(SWS)}, s{T} offen sc1")
        e(f"""
        v_lshlrev_b32 v12, 4, v10          ; w*16
        s_lshl_b32 s{T}, s2, 6
        s_add_u32 s{T}, s{T}, {ML}
        s_mov_b64 exec, 1
        """)
        if not NOCLR: vm.issue("clr", f"buffer_store_dwordx4 v[112:115], v12, {srd(SWS)}, s{T} offen sc1")
        e("s_mov_b64 exec, -1")

    if CLRPOS == "early": clears()
    e(f"s_lshl_b32 s{T}, s0, 15")
    mk_srd(SWD, 20, T, 0)
    e(f"""
    s_cmp_lt_u32 s0, 224
    s_cselect_b32 s{SWD+2}, 0x8000, 0
    """)
    WDR = 224
    def load_wd():
        e(f"s_mov_b32 s{T2}, 0")
        for i in range(16):
            vm.issue("wd", f"buffer_load_dwordx2 v[{WDR+2*i}:{WDR+2*i+1}], v57, {srd(SWD)}, s{T2} offen {NT}")
            if i < 15: e(f"s_add_u32 s{T2}, s{T2}, 2048")
    if cfg.get("xmap", False):
        e(f"""
    s_and_b32 s99, s2, 7
    s_lshl_b32 s99, s99, 5
    s_lshr_b32 s{T}, s2, 3
    s_add_u32 s99, s99, s{T}
    """)
    else:
        e("s_mov_b32 s99, s2")
    ILV = cfg.get("ilv", False)
    TSTR = (1 << 20) if ILV else 8192
    if ILV:
        e(f"s_lshr_b32 s{T}, s99, 5")
        e(f"s_lshl_b32 s{T}, s{T}, 23")
        e(f"s_and_b32 s{T2}, s99, 31")
        e(f"s_lshl_b32 s{T2}, s{T2}, 15")
        e(f"s_add_u32 s{T}, s{T}, s{T2}")
    else:
        e(f"s_lshl_b32 s{T}, s99, 18")
    kvsz = 0 if cfg.get("nokv") else (0x708000 if ILV else 0x40000)
    mk_srd(SK, 6, T, kvsz)
    mk_srd(SV, 8, T, kvsz)
    e(f"""
    s_lshr_b32 s{T}, s2, 3
    s_lshl_b32 s{T}, s{T}, 7
    s_bfe_u32 s{T2}, s2, 0x20001       ; (dq>>1)
    s_lshl_b32 s{T2}, s{T2}, 5
    s_add_u32 s{T}, s{T}, s{T2}
    s_and_b32 s{T2}, s2, 1
    s_lshl_b32 s{T2}, s{T2}, 2
    s_add_u32 s{T}, s{T}, s{T2}
    s_lshl_b32 s{T}, s{T}, 11
    """)
    mk_srd(SWO, 12, T, 28*2048)
    mk_srd(SOUT, 22, None, 4096)
    mk_srd(SDBG, 24, None, 256)
    PF_LIST = cfg.get("tlbpf", "")
    if PF_LIST:
        e("v_mov_b32 v116, 0")
        e("s_mov_b64 exec, 1")
        for ch in PF_LIST:
            reg, sr = {"k": (6, SK), "v": (8, SV), "o": (116, SWO), "d": (116, SWD), "y": (116, SOUT), "g": (116, SDBG)}[ch]
            vm.issue("pf", f"buffer_load_dword v117, v{reg}, {srd(sr)}, 0 offen")
        e("s_mov_b64 exec, -1")
    e(f"""
    s_lshr_b32 s{S_B}, s99, 7
    s_bfe_u32 s{S_HKV}, s99, 0x20005
    s_and_b32 s{S_S}, s99, 31
    s_mov_b32 s{S_CB}, s97           ; cg
    s_mov_b32 s8, s96                 ; rq
    s_and_b32 s{T}, s2, 127
    s_lshl_b32 s{T}, s{T}, 4
    s_lshr_b32 s{T2}, s2, 7
    s_lshl_b32 s{T2}, s{T2}, 11
    s_add_u32 s9, s{T}, s{T2}
    """)
    vm.wait("x")
    XS = 64
    for b in range(2):
        for q in range(8):
            e(f"v_lshlrev_b32 v{XS+16*b+2*q}, 16, v{16+8*b+q}")
            e(f"v_and_b32 v{XS+16*b+2*q+1}, s{S_MASK}, v{16+8*b+q}")
    def wave_red(regs, op="add", tmp=104, shifts=(8, 4, 2, 1)):
        o = {"add": "v_add_f32", "max": "v_max_f32"}[op]
        for sh in shifts:
            for r in regs: e(f"{o}_dpp v{r}, v{r}, v{r} row_ror:{sh} row_mask:0xf bank_mask:0xf")
        for sw in ("v_permlane16_swap_b32", "v_permlane32_swap_b32"):
            for k, r in enumerate(regs): e(f"v_mov_b32 v{tmp+k}, v{r}")
            for k, r in enumerate(regs): e(f"{sw} v{r}, v{tmp+k}")
            for k, r in enumerate(regs): e(f"{o} v{r}, v{r}, v{tmp+k}")
    for b in range(2):
        e(f"v_add_f32 v{96+b}, v{XS+16*b}, v{XS+16*b+1}")
    for q in range(2, 16):
        for b in range(2):
            e(f"v_add_f32 v{96+b}, v{96+b}, v{XS+16*b+q}")
    wave_red([96, 97])
    def rbf(dst, src):
        e(f"v_cvt_pk_bf16_f32 v{dst}, v{src}, v{src}")
        e(f"v_and_b32 v{dst}, s{S_MASK}, v{dst}")
    for b in range(2): e(f"v_mul_f32 v{96+b}, 0x3a800000, v{96+b}")
    for q in range(16):
        for b in range(2):
            e(f"v_sub_f32 v{XS+16*b+q}, v{XS+16*b+q}, v{96+b}")
    for b in range(2): e(f"v_mul_f32 v{98+b}, v{XS+16*b}, v{XS+16*b}")
    for q in range(1, 16):
        for b in range(2):
            e(f"v_fmac_f32 v{98+b}, v{XS+16*b+q}, v{XS+16*b+q}")
    wave_red([98, 99])
    for b in range(2):
        e(f"v_mul_f32 v{98+b}, 0x3a800000, v{98+b}")
        rbf(98+b, 98+b)
        e(f"v_add_f32 v{98+b}, 0x3727c5ac, v{98+b}")
        rbf(98+b, 98+b)
        e(f"v_sqrt_f32 v{98+b}, v{98+b}")
        rbf(98+b, 98+b)
        rbf(96+b, 96+b)
        e(f"v_rcp_f32 v{100+b}, v{98+b}")
    for b in range(2):
        e(f"v_lshlrev_b32 v{64+b}, 16, v{32+b}")
    for b in range(2):
        e(f"v_sub_f32 v{64+b}, v{64+b}, v{96+b}")
    for b in range(2): rbf(64+b, 64+b)
    for b in range(2):
        e(f"v_mul_f32 v102, v{64+b}, v{100+b}")
        e(f"v_fma_f32 v103, -v102, v{98+b}, v{64+b}")
        e(f"v_fma_f32 v{64+b}, v103, v{100+b}, v102")
    for b in range(2): rbf(64+b, 64+b)
    e(f"""
    v_lshlrev_b32 v11, 9, v10
    v_lshlrev_b32 v12, 3, v1
    v_add_u32 v12, v12, v11             ; w*512 + l*8
    ds_write_b64 v12, v[64:65] offset:{L_XN}
    v_lshrrev_b32 v12, 3, v1
    v_lshlrev_b32 v12, 3, v12
    v_add_u32 v12, v12, v11             ; w*512 + (l>>3)*8
    s_waitcnt lgkmcnt(0)
    """)
    for i in range(8):
        e(f"ds_read_b64 v[{40+2*i}:{41+2*i}], v12 offset:{L_XN+64*i}")
    e(f"""
    v_and_b32 v14, 7, v1
    v_lshlrev_b32 v14, 5, v14
    v_lshrrev_b32 v12, 4, v1
    v_lshlrev_b32 v12, 3, v12
    v_add_u32 v14, v14, v12
    v_add_u32 v14, v14, v11
    s_waitcnt lgkmcnt(0)
    """)
    stamp()
    ACC = 96
    def gemv(wbase, m):
        for i in range(8):
            for q in range(4):
                t = 112 + 2*((i*4+q) & 1)
                w = wbase + 4*i + q
                e(f"v_lshlrev_b32 v{t}, 16, v{w}")
                e(f"v_and_b32 v{t+1}, s{S_MASK}, v{w}")
                for p in range(2):
                    a = ACC + 2*(2*q+p)
                    sel = "op_sel:[0,0,0] op_sel_hi:[0,1,1]" if p == 0 else "op_sel:[1,0,0] op_sel_hi:[1,1,1]"
                    if i == 0:
                        sel2 = "op_sel:[0,0] op_sel_hi:[0,1]" if p == 0 else "op_sel:[1,0] op_sel_hi:[1,1]"
                        e(f"v_pk_mul_f32 v[{a}:{a+1}], v[{t}:{t+1}], v[40:41] {sel2}")
                    else:
                        e(f"v_pk_fma_f32 v[{a}:{a+1}], v[{t}:{t+1}], v[{40+2*i}:{41+2*i}], v[{a}:{a+1}] {sel}")
        A = lambda c, b: ACC + 2*c + b
        for c in range(4):
            for b in range(2): e(f"v_permlane32_swap_b32 v{A(c,b)}, v{A(c+4,b)}")
        for c in range(4):
            e(f"v_pk_add_f32 v[{A(c,0)}:{A(c,1)}], v[{A(c,0)}:{A(c,1)}], v[{A(c+4,0)}:{A(c+4,1)}]")
        for c in range(2):
            for b in range(2): e(f"v_permlane16_swap_b32 v{A(c,b)}, v{A(c+2,b)}")
        for c in range(2):
            e(f"v_pk_add_f32 v[{A(c,0)}:{A(c,1)}], v[{A(c,0)}:{A(c,1)}], v[{A(c+2,0)}:{A(c+2,1)}]")
        for k in range(4): e(f"v_add_f32_dpp v{ACC+k}, v{ACC+k}, v{ACC+k} row_ror:8 row_mask:0xf bank_mask:0xf")
        e(f"v_swap_b32 v{ACC+1}, v{ACC+2}")
        e("s_mov_b32 exec_lo, 0x00ff00ff")
        e("s_mov_b32 exec_hi, 0x00ff00ff")
        e(f"ds_write_b64 v14, v[{ACC}:{ACC+1}] offset:{L_RED+m*2048}")
        e(f"ds_write_b64 v14, v[{ACC+2}:{ACC+3}] offset:{L_RED+m*2048+256}")
        e("s_mov_b64 exec, -1")
    def load_k(t):
        e(f"s_mov_b32 s{T2}, {t*TSTR}")
        for u in range(2):
            for j in range(4):
                a = 32*t + 16*u + 4*j
                vm.issue(f"k{t}", f"buffer_load_dwordx4 a[{a}:{a+3}], v{6+u}, {srd(SK)}, s{T2} offen offset:{j*64} {NT}")
    def load_v(t):
        e(f"s_mov_b32 s{T2}, {t*TSTR}")
        for i in range(8):
            r = 128 + 32*(t & 3) + 4*i
            vm.issue(f"v{t}", f"buffer_load_dwordx4 v[{r}:{r+3}], v{8+(i>>2)}, {srd(SV)}, s{T2} offen offset:{(i&3)*1024} {NT}")
    WINV = [WIN]
    def pace(next_n):
        vm.wait_leave(max(WINV[0] - next_n, 0))
    if CLRPOS == "ln": clears()
    load_k(0)
    vm.wait("wq")
    stamp()
    gemv(128, 0)
    if CLRPOS == "q": clears()
    load_k(1)
    vm.wait("wg")
    gemv(160, 1)
    if CLRPOS == "g": clears()
    load_wd()
    vm.wait("wu")
    stamp()
    gemv(192, 2)
    e("s_waitcnt lgkmcnt(0)")
    e("s_barrier")
    e(f"""
    s_cmp_lg_u32 s3, 0
    s_cbranch_scc1 L_nopub
    v_lshrrev_b32 v11, 5, v1
    v_lshlrev_b32 v11, 11, v11          ; m*2048
    v_bfe_u32 v12, v1, 4, 1
    v_lshlrev_b32 v13, 8, v12           ; b*256
    v_add_u32 v11, v11, v13
    v_and_b32 v14, 15, v1
    v_lshlrev_b32 v15, 4, v14           ; c4*16
    v_add_u32 v11, v11, v15
    v_and_b32 v58, 0x7ff, v11
    """)
    for w in range(4):
        e(f"ds_read_b128 v[{96+4*w}:{99+4*w}], v11 offset:{L_RED+w*512}")
    for w in range(4):
        e(f"ds_read_b128 v[{64+4*w}:{67+4*w}], v58 offset:{L_RED+4096+w*512}")
    e(f"""
    v_lshlrev_b32 v59, 14, v12
    v_add_u32 v59, v59, v15
    s_lshl_b32 s{T}, s8, 15
    s_lshl_b32 s{T2}, s{S_CB}, 8
    s_add_u32 s{T}, s{T}, s{T2}
    v_add_u32 v59, s{T}, v59
    v_lshrrev_b32 v60, 2, v14
    v_lshlrev_b32 v60, 10, v60
    v_lshlrev_b32 v61, 6, v12
    v_add_u32 v60, v60, v61
    v_and_b32 v61, 3, v14
    v_lshlrev_b32 v61, 4, v61
    v_add_u32 v60, v60, v61
    s_lshl_b32 s{T}, s{S_CB}, 12
    s_lshl_b32 s{T2}, s8, 8
    s_add_u32 s{T}, s{T}, s{T2}
    s_add_u32 s{T}, s{T}, {GU}
    s_xor_b32 s{T}, s{T}, {XG << 12}
    v_add_u32 v60, s{T}, v60
    v_cmp_gt_u32 vcc, 32, v1
    v_cndmask_b32 v59, v60, v59, vcc
    v_xor_b32 v60, {(XG ^ XU) << 12}, v60
    v_add_u32 v60, 128, v60             ; u address
    s_waitcnt lgkmcnt(4)
    v_pk_add_f32 v[96:97], v[96:97], v[100:101]
    v_pk_add_f32 v[98:99], v[98:99], v[102:103]
    v_pk_add_f32 v[104:105], v[104:105], v[108:109]
    v_pk_add_f32 v[106:107], v[106:107], v[110:111]
    v_pk_add_f32 v[96:97], v[96:97], v[104:105]
    v_pk_add_f32 v[98:99], v[98:99], v[106:107]
    """)
    vm.issue("pub", f"buffer_store_dwordx4 v[96:99], v59, {srd(SWS)}, 0 offen sc1", definite=False)
    e(f"""
    s_waitcnt lgkmcnt(0)
    v_pk_add_f32 v[64:65], v[64:65], v[68:69]
    v_pk_add_f32 v[66:67], v[66:67], v[70:71]
    v_pk_add_f32 v[72:73], v[72:73], v[76:77]
    v_pk_add_f32 v[74:75], v[74:75], v[78:79]
    v_pk_add_f32 v[64:65], v[64:65], v[72:73]
    v_pk_add_f32 v[66:67], v[66:67], v[74:75]
    s_mov_b32 exec_hi, 0
    """)
    vm.issue("pub", f"buffer_store_dwordx4 v[64:67], v60, {srd(SWS)}, 0 offen sc1", definite=False)
    e("s_mov_b64 exec, -1")
    e("L_nopub:")
    load_k(2)
    stamp()
    vm.wait_leave(8)
    assert all(t in ("k2",) for t, d in vm.ops), vm.ops
    e("s_barrier")
    e("s_cmp_lg_u32 s3, 0")
    e("s_cbranch_scc1 L_nosig")
    e(f"""
    v_mov_b32 v11, 1
    s_and_b32 s{T}, s2, 3
    s_lshl_b32 s{T}, s{T}, 6
    v_mov_b32 v12, s{T}
    s_mov_b64 exec, 1
    """)
    vm.issue("sig", f"buffer_atomic_add v11, v12, {srd(SDBG)}, 0 offen sc1", definite=False)
    e("s_mov_b64 exec, -1")
    e("L_nosig:")
    load_k(3)
    POLLK = cfg.get("pollk", 6)
    for t in range(4, POLLK):
        pace(8); load_k(t)
    e(f"""
    s_cmp_lg_u32 s3, 0
    s_cbranch_scc1 L_nopoll1
    v_and_b32 v40, 3, v1
    v_lshlrev_b32 v40, 6, v40
    """)
    vm.issue("poll", f"buffer_load_dword v41, v40, {srd(SDBG)}, 0 offen sc1", definite=False)
    e("L_nopoll1:")
    pace(8); load_k(POLLK)
    e("s_cmp_lg_u32 s3, 0")
    e("s_cbranch_scc1 L_qok")
    e(f"s_waitcnt vmcnt({vm.count_after('poll')})")
    e(f"""
    s_mov_b32 s{S_SPIN}, 0
L_qspin:
    v_cmp_eq_u32 vcc, 64, v41
    s_nop 1
    s_cmp_eq_u64 vcc, -1
    s_cbranch_scc1 L_qok
    s_add_u32 s{S_SPIN}, s{S_SPIN}, 1
    s_cmp_gt_u32 s{S_SPIN}, {SPIN}
    s_cbranch_scc1 L_end
    buffer_load_dword v41, v40, {srd(SDBG)}, 0 offen sc1
    s_waitcnt vmcnt(0)
    s_branch L_qspin
L_qok:
    s_barrier
    v_lshlrev_b32 v40, 4, v0
    s_lshl_b32 s{T}, s{S_B}, 14
    s_lshl_b32 s{T2}, s{S_HKV}, 12
    s_add_u32 s{T}, s{T}, s{T2}
    """)
    for rq in range(4):
        vm.issue("q", f"buffer_load_dwordx4 v[{16+4*rq}:{19+4*rq}], v40, {srd(SWS)}, s{T} offen sc1")
        if rq < 3: e(f"s_add_u32 s{T}, s{T}, 32768")
    e(f"""
    v_lshlrev_b32 v41, 4, v1
    s_lshl_b32 s{T}, s0, 10
    s_add_u32 s{T}, s{T}, {GU}
    """)
    vm.issue("q", f"buffer_load_dwordx4 v[32:35], v41, {srd(SWS)}, s{T} offen sc1")
    for t in range(POLLK+1, 8):
        load_k(t)
    e(f"""
    v_lshrrev_b32 v42, 5, v0
    v_lshlrev_b32 v42, 4, v42           ; (t>>5)*16
    v_lshlrev_b32 v43, 3, v0
    v_add_u32 v42, v42, v43
    v_and_b32 v43, 7, v1
    v_mul_u32_u24 v43, 272, v43
    v_lshrrev_b32 v44, 4, v1
    v_lshlrev_b32 v44, 4, v44
    v_add_u32 v43, v43, v44
    v_and_b32 v44, 3, v1
    v_lshlrev_b32 v44, 5, v44
    v_lshrrev_b32 v45, 4, v1
    v_lshlrev_b32 v45, 3, v45
    v_add_u32 v44, v44, v45
    v_bfe_u32 v45, v1, 2, 1
    v_lshlrev_b32 v45, 2, v45
    v_add_u32 v44, v44, v45
    """)
    vm.wait("q")
    stamp()
    e(f"""
    v_pk_add_f32 v[16:17], v[16:17], v[20:21]
    v_pk_add_f32 v[18:19], v[18:19], v[22:23]
    v_pk_add_f32 v[24:25], v[24:25], v[28:29]
    v_pk_add_f32 v[26:27], v[26:27], v[30:31]
    v_pk_add_f32 v[16:17], v[16:17], v[24:25]
    v_pk_add_f32 v[18:19], v[18:19], v[26:27]
    v_cvt_pk_bf16_f32 v16, v16, v17
    v_cvt_pk_bf16_f32 v17, v18, v19
    ds_write_b64 v42, v[16:17] offset:{L_QS}
    v_permlane32_swap_b32 v32, v34
    v_permlane32_swap_b32 v33, v35
    v_pk_add_f32 v[32:33], v[32:33], v[34:35]
    v_permlane16_swap_b32 v32, v33
    v_add_f32 v96, v32, v33
    """)
    rbf(96, 96)
    e(f"""
    v_mov_b32_dpp v100, v96 row_ror:8 row_mask:0xf bank_mask:0xf     ; u
    v_mul_f32 v98, 0xbfb8aa3b, v96      ; -g*log2e
    v_exp_f32 v98, v98
    v_add_f32 v98, 1.0, v98
    v_rcp_f32 v99, v98
    v_mul_f32 v101, v96, v99
    v_fma_f32 v102, -v101, v98, v96
    v_fma_f32 v102, v102, v99, v101
    v_cmp_eq_f32 vcc, 0x7f800000, v98
    v_cndmask_b32 v101, v102, v101, vcc
    """)
    rbf(101, 101)
    e("v_mul_f32 v101, v101, v100")
    rbf(101, 101)
    e("s_mov_b32 exec_lo, 0x00ff00ff")
    e("s_mov_b32 exec_hi, 0x00ff00ff")
    e(f"ds_write_b32 v44, v101 offset:{L_HB}")
    e("s_mov_b64 exec, -1")
    e("v_mov_b32 v11, 0")
    e("s_waitcnt lgkmcnt(0)")
    e("s_barrier")
    for j in range(4):
        e(f"ds_read_b128 v[{16+4*j}:{19+4*j}], v43 offset:{L_QS+64*j}")
    for k in range(8):
        e(f"ds_read_b128 v[{64+4*k}:{67+4*k}], v11 offset:{L_HB+16*k}")
    load_v(0)
    vm.wait("wd")
    e("s_waitcnt lgkmcnt(0)")
    F0, F1 = 2, 12
    def rowfma(wreg_pairs, opair, first):
        for b, F in ((0, F0), (1, F1)):
            for hlf in range(2):
                wp = wreg_pairs[hlf]; a = F + 2*hlf
                if first:
                    e(f"v_pk_mul_f32 v[{a}:{a+1}], v[{wp}:{wp+1}], v[{opair}:{opair+1}] op_sel:[0,{b}] op_sel_hi:[1,{b}]")
                else:
                    e(f"v_pk_fma_f32 v[{a}:{a+1}], v[{wp}:{wp+1}], v[{opair}:{opair+1}], v[{a}:{a+1}] op_sel:[0,{b},0] op_sel_hi:[1,{b},1]")
    for i in range(16):
        t = 96 + 4*(i & 1)
        for d in range(2):
            e(f"v_lshlrev_b32 v{t+2*d}, 16, v{WDR+2*i+d}")
            e(f"v_and_b32 v{t+2*d+1}, s{S_MASK}, v{WDR+2*i+d}")
        rowfma((t, t+2), 64+2*i, i == 0)
    pace(8); load_v(1)
    SCALE = 0x3db504f3
    e(f"s_mov_b32 s10, {hex(SCALE)}")
    e(f"s_mov_b32 s11, {hex(SCALE)}")
    def qk(t):
        for j in range(4):
            for u in range(2):
                a = 32*t + 16*u + 4*j; s = 64 + 8*t + 4*u
                c = "0" if j == 0 else f"v[{s}:{s+3}]"
                e(f"v_mfma_f32_16x16x32_bf16 v[{s}:{s+3}], a[{a}:{a+3}], v[{16+4*j}:{19+4*j}], {c}")
    def rnd(t):
        for z in range(4):
            r = 64 + 8*t + 2*z; tmp = 40 + (z & 1)
            if MIMIC:
                e(f"v_cvt_pk_bf16_f32 v{tmp}, v{r}, v{r+1}")
                e(f"v_lshlrev_b32 v{r}, 16, v{tmp}")
                e(f"v_and_b32 v{r+1}, s{S_MASK}, v{tmp}")
                e(f"v_pk_mul_f32 v[{r}:{r+1}], v[{r}:{r+1}], s[10:11]")
                e(f"v_cvt_pk_bf16_f32 v{tmp}, v{r}, v{r+1}")
                e(f"v_lshlrev_b32 v{r}, 16, v{tmp}")
                e(f"v_and_b32 v{r+1}, s{S_MASK}, v{tmp}")
            else:
                e(f"v_pk_mul_f32 v[{r}:{r+1}], v[{r}:{r+1}], s[10:11]")
    vm.wait("k7")
    qk(0); qk(1); rnd(0); qk(2); rnd(1); qk(3); rnd(2)
    load_v(2)
    qk(4); rnd(3); qk(5); rnd(4); qk(6); rnd(5); qk(7); rnd(6)
    load_v(3)
    rnd(7)
    stamp()
    e("v_max3_f32 v40, v64, v65, v66")
    e("v_max3_f32 v41, v67, v68, v69")
    k = 70
    while k + 3 < 128:
        e(f"v_max3_f32 v40, v40, v{k}, v{k+1}")
        e(f"v_max3_f32 v41, v41, v{k+2}, v{k+3}")
        k += 4
    e(f"v_max3_f32 v40, v40, v{k}, v{k+1}")
    e("v_max_f32 v40, v40, v41")
    for sw in ("v_permlane16_swap_b32", "v_permlane32_swap_b32"):
        e("v_mov_b32 v41, v40")
        e(f"{sw} v40, v41")
        e("v_max_f32 v40, v40, v41")
    e(f"""
    v_and_b32 v42, 15, v1
    v_lshlrev_b32 v42, 2, v42           ; n*4
    v_lshlrev_b32 v43, 6, v10
    v_add_u32 v43, v43, v42             ; w*64+n*4
    ds_write_b32 v43, v40 offset:{L_MX}
    s_waitcnt lgkmcnt(0)
    s_barrier
    ds_read_b32 v44, v42 offset:{L_MX}
    ds_read_b32 v45, v42 offset:{L_MX+64}
    ds_read_b32 v46, v42 offset:{L_MX+128}
    ds_read_b32 v47, v42 offset:{L_MX+192}
    s_mov_b32 s10, 0x3fb8aa3b
    s_waitcnt lgkmcnt(0)
    v_max3_f32 v44, v44, v45, v46
    v_max_f32 v44, v44, v47
    v_mul_f32 v45, s10, v44             ; M*log2e
    """)
    for r in range(64, 128):
        e(f"v_fma_f32 v{r}, v{r}, s10, -v45")
    for r in range(64, 128):
        e(f"v_exp_f32 v{r}, v{r}")
    e("v_add_f32 v46, v64, v65")
    e("v_add_f32 v47, v66, v67")
    for r in range(68, 128, 2):
        e(f"v_add_f32 v46, v46, v{r}")
        e(f"v_add_f32 v47, v47, v{r+1}")
    e("v_add_f32 v46, v46, v47")
    for z in range(32):
        e(f"v_cvt_pk_bf16_f32 v{64+z}, v{64+2*z}, v{65+2*z}")
    for sw in ("v_permlane16_swap_b32", "v_permlane32_swap_b32"):
        e("v_mov_b32 v47, v46")
        e(f"{sw} v46, v47")
        e("v_add_f32 v46, v46, v47")
    e(f"ds_write_b32 v43, v46 offset:{L_LS}")
    e(f"""
    s_waitcnt lgkmcnt(0)
    s_barrier
    s_cmp_lg_u32 s3, 0
    s_cbranch_scc1 L_noml
    ds_read_b32 v46, v42 offset:{L_LS}
    ds_read_b32 v47, v42 offset:{L_LS+64}
    ds_read_b32 v48, v42 offset:{L_LS+128}
    ds_read_b32 v49, v42 offset:{L_LS+192}
    v_lshlrev_b32 v50, 7, v42           ; n*512
    s_lshl_b32 s{T}, s{S_HKV}, 12       ; hkv*8*512
    s_lshl_b32 s{T2}, s{S_B}, 8
    s_add_u32 s{T}, s{T}, s{T2}
    s_lshl_b32 s{T2}, s{S_S}, 3
    s_add_u32 s{T}, s{T}, s{T2}
    s_add_u32 s{T}, s{T}, {ML}
    s_waitcnt lgkmcnt(0)
    v_add_f32 v46, v46, v47
    v_add_f32 v48, v48, v49
    v_add_f32 v45, v46, v48
    s_mov_b64 exec, 0xff
    """)
    vm.issue("mlst", f"buffer_store_dwordx2 v[44:45], v50, {srd(SWS)}, s{T} offen sc1", definite=False)
    e("s_mov_b64 exec, -1")
    e("L_noml:")
    stamp()
    def pv(t):
        slot = 128 + 32*(t & 3)
        for j in range(8):
            q, p = j >> 1, j & 1
            T4 = 16 + 4*(j & 3)
            for z in range(4):
                e(f"v_perm_b32 v{T4+z}, v{slot+4*(2*z+1)+q}, v{slot+4*(2*z)+q}, s{S_SEL1 if p else S_SEL0}")
            c = "0" if t == 0 else f"v[{32+4*j}:{35+4*j}]"
            e(f"v_mfma_f32_16x16x32_bf16 v[{32+4*j}:{35+4*j}], v[{T4}:{T4+3}], v[{64+4*t}:{67+4*t}], {c}")
    WOR = 96
    e("v_lshlrev_b32 v11, 3, v0")
    WINV[0] = cfg.get("winv", WIN)
    vm.wait("v0"); pv(0)
    pace(8); load_v(4)
    pace(8)
    for i in range(16):
        off = (8*(i & 3) + (i >> 2))*2048
        e(f"s_mov_b32 s{T2}, {off}")
        vm.issue("wo", f"buffer_load_dwordx2 v[{WOR+2*i}:{WOR+2*i+1}], v11, {srd(SWO)}, s{T2} offen {NT}")
    vm.wait("v1"); pv(1)
    pace(8); load_v(5)
    vm.wait("v2"); pv(2)
    e(f"""
    v_lshrrev_b32 v6, 1, v1
    s_and_b32 s8, s2, 31
    v_xor_b32 v6, s8, v6
    v_lshlrev_b32 v6, 3, v6
    v_lshrrev_b32 v7, 1, v10
    v_lshlrev_b32 v7, 8, v7
    v_add_u32 v6, v6, v7
    s_lshr_b32 s8, s2, 3
    s_lshl_b32 s8, s8, 9
    s_add_u32 s8, s8, {ML}
    """)
    pace(8)
    vm.issue("ml", f"buffer_load_dwordx2 a[0:1], v6, {srd(SWS)}, s8 offen sc1")
    load_v(6)
    vm.wait("v3"); pv(3)
    pace(8); load_v(7)
    vm.wait("v4"); pv(4)
    vm.wait("wo")
    def unpack_wo(i0):
        for i in range(i0, i0+8):
            for d in range(2):
                e(f"v_lshlrev_b32 v{128+4*i+2*d}, 16, v{WOR+2*i+d}")
                e(f"v_and_b32 v{129+4*i+2*d}, s{S_MASK}, v{WOR+2*i+d}")
    unpack_wo(0)
    vm.wait("v5"); pv(5)
    unpack_wo(8)
    vm.wait("ml")
    e(f"""
    v_accvgpr_read_b32 v96, a0
    v_accvgpr_read_b32 v97, a1
    s_mov_b32 s{S_SPIN}, 0
L_mlspin:
    v_max_u32 v98, v96, v97
    v_cmp_eq_u32 vcc, -1, v98
    s_nop 1
    s_cmp_eq_u64 vcc, 0
    s_cbranch_scc1 L_mlok
    s_add_u32 s{S_SPIN}, s{S_SPIN}, 1
    s_cmp_gt_u32 s{S_SPIN}, {SPIN}
    s_cbranch_scc1 L_end
    buffer_load_dwordx2 v[96:97], v6, {srd(SWS)}, s8 offen sc1
    s_waitcnt vmcnt(0)
    s_branch L_mlspin
L_mlok:
    v_mov_b32 v98, v96
    """)
    wave_red([98], op="max", tmp=104, shifts=(8, 4, 2))
    e("v_sub_f32 v98, v96, v98")
    e("v_mul_f32 v98, 0x3fb8aa3b, v98")
    e("v_exp_f32 v98, v98")
    e("v_mul_f32 v99, v98, v97")
    wave_red([99], op="add", tmp=104, shifts=(8, 4, 2))
    e("""
    v_rcp_f32 v100, v99
    v_mul_f32 v101, v98, v100
    v_fma_f32 v102, -v101, v99, v98
    v_fma_f32 v100, v102, v100, v101    ; f = e_s / L
    """)
    e(f"""
    v_and_b32 v96, 15, v1
    v_mul_u32_u24 v96, 528, v96
    v_lshrrev_b32 v97, 4, v1
    v_lshlrev_b32 v97, 7, v97
    v_add_u32 v96, v96, v97
    v_mul_u32_u24 v97, {OBW}, v10
    v_add_u32 v96, v96, v97
    v_lshrrev_b32 v98, 5, v0
    v_mul_u32_u24 v97, 528, v98
    v_and_b32 v99, 31, v0
    v_lshlrev_b32 v101, 4, v99
    v_add_u32 v97, v97, v101
    v_lshlrev_b32 v98, 15, v98
    v_lshrrev_b32 v101, 2, v99
    v_lshlrev_b32 v101, 12, v101
    v_add_u32 v98, v98, v101
    v_and_b32 v101, 3, v99
    v_lshlrev_b32 v101, 4, v101
    v_add_u32 v98, v98, v101
    v_bfe_u32 v101, v0, 2, 5
    v_xor_b32 v101, s{S_S}, v101
    v_lshlrev_b32 v101, 6, v101
    v_add_u32 v98, v98, v101
    s_lshl_b32 s10, s{S_HKV}, 18
    s_lshl_b32 s{T}, s{S_B}, 11
    s_add_u32 s10, s10, s{T}
    s_add_u32 s10, s10, {PO}
    v_lshrrev_b32 v99, 1, v10
    v_lshlrev_b32 v99, 11, v99
    v_lshrrev_b32 v101, 1, v1
    v_lshlrev_b32 v101, 6, v101
    v_add_u32 v99, v99, v101
    v_and_b32 v101, 1, v10
    v_lshlrev_b32 v101, 5, v101
    v_add_u32 v99, v99, v101
    v_and_b32 v101, 1, v1
    v_lshlrev_b32 v101, 4, v101
    v_add_u32 v99, v99, v101
    s_lshl_b32 s11, s2, 12
    s_add_u32 s11, s11, {PO}
    v_and_b32 v101, 1, v10
    v_lshlrev_b32 v101, 6, v101
    v_and_b32 v102, 1, v1
    v_lshlrev_b32 v102, 5, v102
    v_add_u32 v101, v101, v102
    v_lshrrev_b32 v102, 4, v1
    v_lshlrev_b32 v102, 3, v102
    v_add_u32 v101, v101, v102
    v_lshrrev_b32 v102, 1, v10
    v_lshlrev_b32 v102, 2, v102
    v_add_u32 v101, v101, v102
    v_mov_b32 v102, 0
    v_lshrrev_b32 v103, 1, v0
    v_xor_b32 v11, s2, v103
    v_lshlrev_b32 v103, 13, v103
    v_and_b32 v104, 1, v0
    v_lshlrev_b32 v104, 4, v104
    v_add_u32 v103, v103, v104
    v_xor_b32 v109, 0x80, v11
    v_lshlrev_b32 v109, 5, v109
    v_add_u32 v109, v109, v103
    v_lshlrev_b32 v11, 5, v11
    v_add_u32 v103, v103, v11
    s_mov_b32 s96, {PF}
    s_mov_b32 s97, {PF+0x100000}
    v_lshlrev_b32 v104, 5, v0
    s_lshl_b32 s98, s2, 13
    s_add_u32 s98, s98, {PF}
    v_lshlrev_b32 v105, 5, v10
    v_lshrrev_b32 v106, 4, v1
    v_lshlrev_b32 v106, 3, v106
    v_add_u32 v105, v105, v106
    v_lshlrev_b32 v106, 3, v1
    v_lshlrev_b32 v107, 2, v1
    v_and_b32 v107, 12, v107
    """)
    vm.issue("res", f"buffer_load_dword v108, v107, {srd(SX)}, s9 offen")
    vm.wait("v6"); pv(6)
    vm.wait("v7")
    vm.wait("res")
    stamp()
    pv(7)
    e("v_lshlrev_b32 v110, 16, v108")
    e(f"v_and_b32 v111, s{S_MASK}, v108")
    e("s_mov_b32 exec_lo, 0x00ff00ff")
    e("s_mov_b32 exec_hi, 0x00ff00ff")
    for j in range(8):
        e(f"ds_write_b128 v96, v[{32+4*j}:{35+4*j}] offset:{L_OB+16*j}")
    e("s_mov_b64 exec, -1")
    e("s_waitcnt lgkmcnt(0)")
    e("s_barrier")
    for w in range(4):
        e(f"ds_read_b128 v[{16+4*w}:{19+4*w}], v97 offset:{L_OB+w*OBW}")
    e("s_waitcnt lgkmcnt(2)")
    e("v_pk_add_f32 v[16:17], v[16:17], v[20:21]")
    e("v_pk_add_f32 v[18:19], v[18:19], v[22:23]")
    e("s_waitcnt lgkmcnt(0)")
    e("v_pk_add_f32 v[24:25], v[24:25], v[28:29]")
    e("v_pk_add_f32 v[26:27], v[26:27], v[30:31]")
    e("v_pk_add_f32 v[16:17], v[16:17], v[24:25]")
    e("v_pk_add_f32 v[18:19], v[18:19], v[26:27]")
    vm.issue("post", f"buffer_store_dwordx4 v[16:19], v98, {srd(SWS)}, s10 offen sc1")
    if cfg.get("tstamps"): stamp()
    if cfg.get("drainA", True): e("s_waitcnt vmcnt(0)")
    MASKP = cfg.get("maskpoll", True)
    tailchk = """
    s_and_b64 exec, exec, vcc
    s_cbranch_execnz {L}
    s_mov_b64 exec, -1
    """ if MASKP else """
    s_nop 1
    s_cmp_eq_u64 vcc, 0
    s_cbranch_scc0 {L}
    """
    e(f"s_mov_b32 s{S_SPIN}, 0")
    if cfg.get("preA"):
        e(f"""
    s_mov_b64 exec, {cfg['preA']}
L_popre:
    buffer_load_dword v20, v99, {srd(SWS)}, s11 offen sc1
    s_add_u32 s{S_SPIN}, s{S_SPIN}, 1
    s_cmp_gt_u32 s{S_SPIN}, {SPIN}
    s_cbranch_scc1 L_end
    s_waitcnt vmcnt(0)
    v_cmp_eq_u32 vcc, -1, v20
    s_and_b64 exec, exec, vcc
    s_cbranch_execnz L_popre
    s_mov_b64 exec, -1
    """)
    e(f"""
L_pospin:
    buffer_load_dwordx4 v[20:23], v99, {srd(SWS)}, s11 offen sc1
    s_add_u32 s{S_SPIN}, s{S_SPIN}, 1
    s_cmp_gt_u32 s{S_SPIN}, {SPIN}
    s_cbranch_scc1 L_end
    s_waitcnt vmcnt(0)
    v_max3_u32 v24, v20, v21, v22
    v_max_u32 v24, v24, v23
    v_cmp_eq_u32 vcc, -1, v24
    """)
    e(tailchk.format(L="L_pospin"))
    vm.ops = []
    if STAMPS: e(f"s_mov_b32 s24, s{S_SPIN}")
    stamp()
    e("v_pk_mul_f32 v[20:21], v[20:21], v[100:101] op_sel:[0,0] op_sel_hi:[1,0]")
    e("v_pk_mul_f32 v[22:23], v[22:23], v[100:101] op_sel:[0,0] op_sel_hi:[1,0]")
    e("v_permlane32_swap_b32 v20, v22")
    e("v_permlane32_swap_b32 v21, v23")
    e("v_add_f32 v20, v20, v22")
    e("v_add_f32 v21, v21, v23")
    e("v_permlane16_swap_b32 v20, v21")
    e("v_add_f32 v20, v20, v21")
    for sh in (2, 4, 8):
        e(f"v_add_f32_dpp v20, v20, v20 row_ror:{sh} row_mask:0xf bank_mask:0xf")
    rbf(20, 20)
    e("s_mov_b32 exec_lo, 0x00030003")
    e("s_mov_b32 exec_hi, 0x00030003")
    e(f"ds_write_b32 v101, v20 offset:{L_OBC}")
    e("s_mov_b64 exec, -1")
    e("s_waitcnt lgkmcnt(0)")
    e("s_barrier")
    for k in range(8):
        e(f"ds_read_b128 v[{16+4*k}:{19+4*k}], v102 offset:{L_OBC+16*k}")
    for i in range(16):
        if i % 2 == 0: e(f"s_waitcnt lgkmcnt({7 - i//2})")
        rowfma((128+4*i, 130+4*i), 16+2*i, False)
    vm.issue("pfst", f"buffer_store_dwordx4 v[{F0}:{F0+3}], v103, {srd(SWS)}, s96 offen sc1")
    vm.issue("pfst", f"buffer_store_dwordx4 v[{F1}:{F1+3}], v109, {srd(SWS)}, s97 offen sc1")
    if cfg.get("tstamps"): stamp()
    if cfg.get("sleepB"): e(f"s_sleep {cfg['sleepB']}")
    if cfg.get("drainB", True): e("s_waitcnt vmcnt(0)")
    e(f"s_mov_b32 s{S_SPIN}, 0")
    if cfg.get("preB"):
        e(f"""
    s_mov_b64 exec, {cfg['preB']}
L_pfpre:
    buffer_load_dword v20, v104, {srd(SWS)}, s98 offen offset:16 sc1
    s_add_u32 s{S_SPIN}, s{S_SPIN}, 1
    s_cmp_gt_u32 s{S_SPIN}, {SPIN}
    s_cbranch_scc1 L_end
    s_waitcnt vmcnt(0)
    v_cmp_eq_u32 vcc, -1, v20
    s_and_b64 exec, exec, vcc
    s_cbranch_execnz L_pfpre
    s_mov_b64 exec, -1
    """)
    e(f"""
L_pfspin:
    buffer_load_dwordx4 v[20:23], v104, {srd(SWS)}, s98 offen sc1
    buffer_load_dwordx4 v[24:27], v104, {srd(SWS)}, s98 offen offset:16 sc1
    s_add_u32 s{S_SPIN}, s{S_SPIN}, 1
    s_cmp_gt_u32 s{S_SPIN}, {SPIN}
    s_cbranch_scc1 L_end
    s_waitcnt vmcnt(0)
    v_max3_u32 v28, v20, v21, v22
    v_max3_u32 v29, v23, v24, v25
    v_max3_u32 v28, v28, v26, v27
    v_max_u32 v28, v28, v29
    v_cmp_eq_u32 vcc, -1, v28
    """)
    e(tailchk.format(L="L_pfspin"))
    vm.ops = []
    if STAMPS: e(f"s_mov_b32 s25, s{S_SPIN}")
    stamp()
    for c in range(4): e(f"v_permlane32_swap_b32 v{20+c}, v{24+c}")
    e("v_pk_add_f32 v[20:21], v[20:21], v[24:25]")
    e("v_pk_add_f32 v[22:23], v[22:23], v[26:27]")
    for c in range(2): e(f"v_permlane16_swap_b32 v{20+c}, v{22+c}")
    e("v_pk_add_f32 v[20:21], v[20:21], v[22:23]")
    for sh in (1, 2, 4, 8):
        for k in range(2): e(f"v_add_f32_dpp v{20+k}, v{20+k}, v{20+k} row_ror:{sh} row_mask:0xf bank_mask:0xf")
    e("s_mov_b32 exec_lo, 0x00010001")
    e("s_mov_b32 exec_hi, 0x00010001")
    e(f"ds_write_b64 v105, v[20:21] offset:{L_FIN}")
    e("s_mov_b64 exec, -1")
    e("s_waitcnt lgkmcnt(0)")
    e("s_barrier")
    e("s_cmp_lg_u32 s3, 0")
    e("s_cbranch_scc1 L_end")
    e("s_mov_b64 exec, 15")
    for w in range(4):
        e(f"ds_read_b64 v[{20+2*w}:{21+2*w}], v106 offset:{L_FIN+32*w}")
    e("s_waitcnt lgkmcnt(0)")
    e("v_pk_add_f32 v[20:21], v[20:21], v[22:23]")
    e("v_pk_add_f32 v[24:25], v[24:25], v[26:27]")
    e("v_pk_add_f32 v[20:21], v[20:21], v[24:25]")
    e("v_pk_add_f32 v[20:21], v[20:21], v[110:111]")
    e("v_cvt_pk_bf16_f32 v20, v20, v21")
    e(f"buffer_store_dword v20, v107, {srd(SOUT)}, s9 offen")
    if STAMPS:
        stamp()
        e("s_mov_b64 exec, 1")
        e(f"s_add_u32 s{SX}, s26, {240<<20}")
        e(f"s_addc_u32 s{SX+1}, s27, 0")
        e(f"s_and_b32 s{SX+1}, s{SX+1}, 0xffff")
        e(f"s_mov_b32 s{SX+2}, 0x10000")
        e(f"s_lshl_b32 s{T}, s2, 7")
        e("v_mov_b32 v2, 0")
        for k in range(stamp_n[0]):
            r = stamp_regs[k]
            e(f"v_mov_b32 v4, s{r}")
            e(f"v_mov_b32 v5, s{r+1}")
            e(f"buffer_store_dwordx2 v[4:5], v2, {srd(SX)}, s{T} offen offset:{8*k}")
            e("s_nop 2")
        e("v_mov_b32 v4, s24")
        e("v_mov_b32 v5, s25")
        e(f"buffer_store_dwordx2 v[4:5], v2, {srd(SX)}, s{T} offen offset:{8*15}")
    e("L_end:")
    e("s_endpgm")
    e(kernel_desc(NAME, 512, 102, 256))
    body, n = hazard.fix(e.text())
    hdr = HEADER_COMMENTS + f"; @launch grid=(256,1,1) block=(256,1,1) lds={LDS}\n" + '.amdgcn_target "amdgcn-amd-amdhsa--gfx950"\n.text\n'
    return hdr + body, n, LDS

if __name__ == "__main__":
    import json
    cfg = json.loads(sys.argv[2]) if len(sys.argv) > 2 else {}
    out = sys.argv[1]
    txt, n, lds = gen(cfg)
    open(out, "w").write(txt)
    print("nops inserted", n, "lines", txt.count("\n"), "lds", lds)
```

```python
import sys
from common import *
import hazard

NAME = "parallel_sum__gqa_block_cached__swiglu_ffn__decode_kernel"

class VM:
    def __init__(self, e): self.e = e; self.ops = []
    def issue(self, tag, line, definite=True):
        self.e(line); self.ops.append((tag, definite))
    def wait(self, tag):
        idx = [i for i, (t, d) in enumerate(self.ops) if t == tag]
        if not idx: return
        idx = max(idx)
        n = sum(1 for t, d in self.ops[idx+1:] if d)
        assert n <= 63, (tag, n)
        self.e(f"s_waitcnt vmcnt({n})")
        self.ops = self.ops[idx+1:]
        return n
    def count_after(self, tag):
        idx = max(i for i, (t, d) in enumerate(self.ops) if t == tag)
        return sum(1 for t, d in self.ops[idx+1:] if d)
    def wait_leave(self, n):
        if sum(1 for t, d in self.ops if d) <= n and all(d for t, d in self.ops): return
        self.e(f"s_waitcnt vmcnt({n})")
        while self.ops and sum(1 for t, d in self.ops[1:] if d) >= n: self.ops.pop(0)
    def drain(self):
        self.e("s_waitcnt vmcnt(0)"); self.ops = []

def gen(cfg):
    MIMIC = cfg.get("mimic", True)
    STAMPS = cfg.get("stamps", False)
    WIN = cfg.get("win", 16)
    NT = cfg.get("nt", "nt")
    NTW = cfg.get("ntw", "nt")
    SPIN = cfg.get("spin", 200000)
    e = E(); vm = VM(e)
    stamp_regs = [76+2*k for k in range(10)] + [12, 14, 16, 18, 20, 22]
    stamp_n = [0]
    def stamp():
        if not STAMPS: return
        k = stamp_n[0]; stamp_n[0] += 1
        r = stamp_regs[k]
        e(f"s_memrealtime s[{r}:{r+1}]")
        e("s_waitcnt lgkmcnt(0)")
    SX, SWQ, SWG, SWU, SK, SV, SWD, SWO, SWS, SOUT, SDBG = 28, 32, 36, 40, 44, 48, 52, 56, 60, 64, 68
    srd = lambda b: f"s[{b}:{b+3}]"
    S_MASK = 72
    S_T = 73; S_T2 = 74; S_SPIN = 75
    S_SEL0, S_SEL1 = 100, 101
    S_B, S_HKV, S_S, S_CB = 4, 5, 6, 7
    QP, GU, ML, PO, PF = 0, 0x20000, 0x60000, 0x100000, 0x200000
    L_HB = 1536
    L_MX = 1664
    L_LS = 1920
    L_OBC = 2176
    L_FIN = 2304
    L_OB = 2560
    OBW = 8*528
    LDS = L_OB + 4*OBW
    L_RED = L_OB
    L_XN = L_OB + 6144
    L_QS = L_OB + 8192
    T, T2 = S_T, S_T2

    if cfg.get("oddlight", False):
        RROLE = "s_and_b32 s{d}, s2, 1\n    s_lshl_b32 s{d}, s{d}, 7\n    s_lshr_b32 s98, s2, 1\n    s_add_u32 s{d}, s{d}, s98"
    elif cfg.get("ol2"):
        RROLE = ("s_and_b32 s{d}, s2, 1\n    s_lshl_b32 s{d}, s{d}, 5\n    s_sub_u32 s98, s2, 192\n    s_lshr_b32 s98, s98, 1\n"
                 "    s_add_u32 s{d}, s{d}, s98\n    s_add_u32 s{d}, s{d}, 192\n    s_cmp_lt_u32 s2, 192\n    s_cselect_b32 s{d}, s2, s{d}")
    else:
        RROLE = "s_mov_b32 s{d}, s2"
    e(kernel_head(NAME))
    e(f"""
    s_cmp_ge_u32 s2, 256
    s_cbranch_scc1 L_end
    {('s_xor_b32 s2, s2, %d' % cfg['jx']) if cfg.get('jx') else ''}
    {('s_branch L_pad' + chr(10) + ('    s_nop 0' + chr(10)) * (cfg['pad']//4 - 1) + 'L_pad:') if cfg.get('pad') else ''}
    s_load_dwordx16 s[4:19], s[0:1], 0
    s_load_dwordx8 s[20:27], s[0:1], 64
    v_and_b32 v1, 63, v0
    v_lshrrev_b32 v10, 6, v0
    v_readfirstlane_b32 s3, v10
    s_mov_b32 s{S_MASK}, 0xffff0000
    s_mov_b32 s{S_SEL0}, 0x05040100
    s_mov_b32 s{S_SEL1}, 0x07060302
    """)
    e(f"""
    {RROLE.format(d=97)}
    s_and_b32 s96, s97, 3              ; rq
    s_lshr_b32 s97, s97, 2             ; cg
    s_lshl_b32 s98, s96, 8             ; rq*256
    v_lshrrev_b32 v11, 3, v1
    v_lshlrev_b32 v12, 6, v10
    v_add_u32 v11, v11, v12
    v_add_u32 v11, s98, v11            ; row0
    v_and_b32 v12, 7, v1
    v_lshlrev_b32 v12, 4, v12          ; cc*16
    v_lshlrev_b32 v2, 13, v11
    v_add_u32 v2, v2, v12
    s_movk_i32 s{T}, 7168
    v_mul_lo_u32 v3, v11, s{T}
    v_add_u32 v3, v3, v12
    v_lshlrev_b32 v4, 5, v1
    v_lshlrev_b32 v5, 6, v10
    v_add_u32 v5, v5, v1
    v_add_u32 v5, s98, v5
    v_lshlrev_b32 v5, 1, v5
    v_lshlrev_b32 v57, 3, v0
    v_and_b32 v11, 3, v1
    v_lshlrev_b32 v11, 2, v11
    v_bfe_u32 v12, v1, 2, 2
    v_add_u32 v11, v11, v12
    v_lshlrev_b32 v11, 8, v11
    v_lshrrev_b32 v12, 4, v1
    v_lshlrev_b32 v12, 4, v12
    v_add_u32 v11, v11, v12
    v_lshlrev_b32 v12, {13 if cfg.get("ilv") else 16}, v10
    v_add_u32 v6, v11, v12
    v_add_u32 v7, 4096, v6
    v_lshlrev_b32 v11, 4, v1
    v_add_u32 v8, v11, v12
    v_add_u32 v9, 4096, v8
    s_waitcnt lgkmcnt(0)
    s_lshl_b32 s0, s97, 2
    s_add_u32 s0, s0, s96              ; r
    """)
    stamp()
    def mk_srd(dst, plo, off_sgpr, size):
        if off_sgpr is None:
            e(f"s_mov_b32 s{dst}, s{plo}")
            e(f"s_and_b32 s{dst+1}, s{plo+1}, 0xffff")
        else:
            e(f"s_add_u32 s{dst}, s{plo}, s{off_sgpr}")
            e(f"s_addc_u32 s{dst+1}, s{plo+1}, 0")
            e(f"s_and_b32 s{dst+1}, s{dst+1}, 0xffff")
        e(f"s_mov_b32 s{dst+2}, {size}")
        e(f"s_mov_b32 s{dst+3}, 0x20000")
    mk_srd(SX, 4, None, 4096)
    for b in range(2):
        for hlf in range(2):
            vm.issue("x", f"buffer_load_dwordx4 v[{16+8*b+4*hlf}:{19+8*b+4*hlf}], v4, {srd(SX)}, 0 offen offset:{b*2048+hlf*16}")
    for b in range(2):
        vm.issue("x", f"buffer_load_ushort v{32+b}, v5, {srd(SX)}, 0 offen offset:{b*2048}")
    if cfg.get("xq"): e(f"s_xor_b32 s97, s97, {cfg['xq']}")
    e(f"s_lshl_b32 s{T}, s97, 7")
    if cfg.get("xq"): e(f"s_xor_b32 s97, s97, {cfg['xq']}")
    mk_srd(SWQ, 10, T, 0)
    e(f"s_sub_u32 s{SWQ+2}, 0x800000, s{T}")
    e(f"s_mov_b32 s{T2}, 0")
    for i in range(8):
        vm.issue("wq", f"buffer_load_dwordx4 v[{128+4*i}:{131+4*i}], v2, {srd(SWQ)}, s{T2} offen {NTW}")
        if i < 7: e(f"s_add_u32 s{T2}, s{T2}, {8*8192}")
    if cfg.get("xg"): e(f"s_xor_b32 s97, s97, {cfg['xg']}")
    e(f"s_lshl_b32 s{T}, s97, 7")
    if cfg.get("xg"): e(f"s_xor_b32 s97, s97, {cfg['xg']}")
    MM = cfg.get("mm", True)
    XG, XU = (2, 4) if MM else (0, 0)
    if MM: e(f"s_xor_b32 s{T}, s{T}, {XG << 7}")
    mk_srd(SWG, 16, T, 0)
    e(f"s_sub_u32 s99, {7<<20}, s{T}")
    if MM: e(f"s_xor_b32 s{T}, s{T}, {(XG ^ XU) << 7}")
    mk_srd(SWU, 18, T, 0)
    e(f"""
    s_sub_u32 s{T2}, {7<<20}, s{T}
    s_cmp_lt_u32 s0, 224
    s_cselect_b32 s{SWG+2}, s99, 0
    s_cselect_b32 s{SWU+2}, s{T2}, 0
    s_mov_b32 s{T2}, 0
    """)
    for i in range(8):
        vm.issue("wg", f"buffer_load_dwordx4 v[{160+4*i}:{163+4*i}], v3, {srd(SWG)}, s{T2} offen {NTW}")
        if i < 7: e(f"s_add_u32 s{T2}, s{T2}, {8*7168}")
    e(f"s_mov_b32 s{T2}, 0")
    for i in range(8):
        vm.issue("wu", f"buffer_load_dwordx4 v[{192+4*i}:{195+4*i}], v3, {srd(SWU)}, s{T2} offen {NTW}")
        if i < 7: e(f"s_add_u32 s{T2}, s{T2}, {8*7168}")
    mk_srd(SWS, 26, None, 0x400000)
    NOCLR = cfg.get("noclr", False)
    CLRPOS = cfg.get("clrpos", "early")
    def clears():
        e(f"""
        v_mov_b32 v112, -1
        v_mov_b32 v113, -1
        v_mov_b32 v114, -1
        v_mov_b32 v115, -1
        v_lshlrev_b32 v11, 4, v0           ; tid*16
        s_lshl_b32 s{T}, s2, 12
        s_add_u32 s{T}, s{T}, {PO}
        """)
        if not NOCLR: vm.issue("clr", f"buffer_store_dwordx4 v[112:115], v11, {srd(SWS)}, s{T} offen sc1")
        e(f"""
        s_lshl_b32 s{T}, s2, 13
        s_add_u32 s{T}, s{T}, {PF}
        """)
        if not NOCLR: vm.issue("clr", f"buffer_store_dwordx4 v[112:115], v11, {srd(SWS)}, s{T} offen sc1")
        e(f"s_add_u32 s{T}, s{T}, 4096")
        if not NOCLR: vm.issue("clr", f"buffer_store_dwordx4 v[112:115], v11, {srd(SWS)}, s{T} offen sc1")
        e(f"""
        v_lshlrev_b32 v12, 4, v10          ; w*16
        s_lshl_b32 s{T}, s2, 6
        s_add_u32 s{T}, s{T}, {ML}
        s_mov_b64 exec, 1
        """)
        if not NOCLR: vm.issue("clr", f"buffer_store_dwordx4 v[112:115], v12, {srd(SWS)}, s{T} offen sc1")
        e("s_mov_b64 exec, -1")

    if CLRPOS == "early": clears()
    e(f"s_lshl_b32 s{T}, s0, 15")
    mk_srd(SWD, 20, T, 0)
    e(f"""
    s_cmp_lt_u32 s0, 224
    s_cselect_b32 s{SWD+2}, 0x8000, 0
    """)
    WDR = 224
    def load_wd(WDR=WDR, voff=57):
        e(f"s_mov_b32 s{T2}, 0")
        for i in range(16):
            vm.issue("wd", f"buffer_load_dwordx2 v[{WDR+2*i}:{WDR+2*i+1}], v{voff}, {srd(SWD)}, s{T2} offen {NT}")
            if i < 15: e(f"s_add_u32 s{T2}, s{T2}, 2048")
    if cfg.get("xmap", False):
        e(f"""
    s_and_b32 s99, s2, 7
    s_lshl_b32 s99, s99, 5
    s_lshr_b32 s{T}, s2, 3
    s_add_u32 s99, s99, s{T}
    """)
    else:
        e("s_mov_b32 s99, s2")
    ILV = cfg.get("ilv", False)
    TSTR = (1 << 20) if ILV else 8192
    if ILV:
        e(f"s_lshr_b32 s{T}, s99, 5")
        e(f"s_lshl_b32 s{T}, s{T}, 23")
        e(f"s_and_b32 s{T2}, s99, 31")
        e(f"s_lshl_b32 s{T2}, s{T2}, 15")
        e(f"s_add_u32 s{T}, s{T}, s{T2}")
    else:
        e(f"s_lshl_b32 s{T}, s99, 18")
    kvsz = 0 if cfg.get("nokv") else (0x708000 if ILV else 0x40000)
    mk_srd(SK, 6, T, kvsz)
    mk_srd(SV, 8, T, kvsz)
    e(f"""
    s_lshr_b32 s{T}, s2, 3
    s_lshl_b32 s{T}, s{T}, 7
    s_bfe_u32 s{T2}, s2, 0x20001       ; (dq>>1)
    s_lshl_b32 s{T2}, s{T2}, 5
    s_add_u32 s{T}, s{T}, s{T2}
    s_and_b32 s{T2}, s2, 1
    s_lshl_b32 s{T2}, s{T2}, 2
    s_add_u32 s{T}, s{T}, s{T2}
    s_lshl_b32 s{T}, s{T}, 11
    """)
    mk_srd(SWO, 12, T, 28*2048)
    mk_srd(SOUT, 22, None, 4096)
    mk_srd(SDBG, 24, None, 256)
    PF_LIST = cfg.get("tlbpf", "")
    if PF_LIST:
        e("v_mov_b32 v116, 0")
        e("s_mov_b64 exec, 1")
        for ch in PF_LIST:
            reg, sr = {"k": (6, SK), "v": (8, SV), "o": (116, SWO), "d": (116, SWD), "y": (116, SOUT), "g": (116, SDBG)}[ch]
            vm.issue("pf", f"buffer_load_dword v117, v{reg}, {srd(sr)}, 0 offen")
        e("s_mov_b64 exec, -1")
    e(f"""
    s_lshr_b32 s{S_B}, s99, 7
    s_bfe_u32 s{S_HKV}, s99, 0x20005
    s_and_b32 s{S_S}, s99, 31
    s_mov_b32 s{S_CB}, s97           ; cg
    s_mov_b32 s8, s96                 ; rq
    s_and_b32 s{T}, s2, 127
    s_lshl_b32 s{T}, s{T}, 4
    s_lshr_b32 s{T2}, s2, 7
    s_lshl_b32 s{T2}, s{T2}, 11
    s_add_u32 s9, s{T}, s{T2}
    """)
    vm.wait("x")
    XS = 64
    for b in range(2):
        for q in range(8):
            e(f"v_lshlrev_b32 v{XS+16*b+2*q}, 16, v{16+8*b+q}")
            e(f"v_and_b32 v{XS+16*b+2*q+1}, s{S_MASK}, v{16+8*b+q}")
    def wave_red(regs, op="add", tmp=104, shifts=(8, 4, 2, 1)):
        o = {"add": "v_add_f32", "max": "v_max_f32"}[op]
        for sh in shifts:
            for r in regs: e(f"{o}_dpp v{r}, v{r}, v{r} row_ror:{sh} row_mask:0xf bank_mask:0xf")
        for sw in ("v_permlane16_swap_b32", "v_permlane32_swap_b32"):
            for k, r in enumerate(regs): e(f"v_mov_b32 v{tmp+k}, v{r}")
            for k, r in enumerate(regs): e(f"{sw} v{r}, v{tmp+k}")
            for k, r in enumerate(regs): e(f"{o} v{r}, v{r}, v{tmp+k}")
    for b in range(2):
        e(f"v_add_f32 v{96+b}, v{XS+16*b}, v{XS+16*b+1}")
    for q in range(2, 16):
        for b in range(2):
            e(f"v_add_f32 v{96+b}, v{96+b}, v{XS+16*b+q}")
    wave_red([96, 97])
    def rbf(dst, src):
        e(f"v_cvt_pk_bf16_f32 v{dst}, v{src}, v{src}")
        e(f"v_and_b32 v{dst}, s{S_MASK}, v{dst}")
    for b in range(2): e(f"v_mul_f32 v{96+b}, 0x3a800000, v{96+b}")
    for q in range(16):
        for b in range(2):
            e(f"v_sub_f32 v{XS+16*b+q}, v{XS+16*b+q}, v{96+b}")
    for b in range(2): e(f"v_mul_f32 v{98+b}, v{XS+16*b}, v{XS+16*b}")
    for q in range(1, 16):
        for b in range(2):
            e(f"v_fmac_f32 v{98+b}, v{XS+16*b+q}, v{XS+16*b+q}")
    wave_red([98, 99])
    for b in range(2):
        e(f"v_mul_f32 v{98+b}, 0x3a800000, v{98+b}")
        rbf(98+b, 98+b)
        e(f"v_add_f32 v{98+b}, 0x3727c5ac, v{98+b}")
        rbf(98+b, 98+b)
        e(f"v_sqrt_f32 v{98+b}, v{98+b}")
        rbf(98+b, 98+b)
        rbf(96+b, 96+b)
        e(f"v_rcp_f32 v{100+b}, v{98+b}")
    for b in range(2):
        e(f"v_lshlrev_b32 v{64+b}, 16, v{32+b}")
    for b in range(2):
        e(f"v_sub_f32 v{64+b}, v{64+b}, v{96+b}")
    for b in range(2): rbf(64+b, 64+b)
    for b in range(2):
        e(f"v_mul_f32 v102, v{64+b}, v{100+b}")
        e(f"v_fma_f32 v103, -v102, v{98+b}, v{64+b}")
        e(f"v_fma_f32 v{64+b}, v103, v{100+b}, v102")
    for b in range(2): rbf(64+b, 64+b)
    e(f"""
    v_lshlrev_b32 v11, 9, v10
    v_lshlrev_b32 v12, 3, v1
    v_add_u32 v12, v12, v11             ; w*512 + l*8
    ds_write_b64 v12, v[64:65] offset:{L_XN}
    v_lshrrev_b32 v12, 3, v1
    v_lshlrev_b32 v12, 3, v12
    v_add_u32 v12, v12, v11             ; w*512 + (l>>3)*8
    s_waitcnt lgkmcnt(0)
    """)
    for i in range(8):
        e(f"ds_read_b64 v[{40+2*i}:{41+2*i}], v12 offset:{L_XN+64*i}")
    e(f"""
    v_and_b32 v14, 7, v1
    v_lshlrev_b32 v14, 5, v14
    v_lshrrev_b32 v12, 4, v1
    v_lshlrev_b32 v12, 3, v12
    v_add_u32 v14, v14, v12
    v_add_u32 v14, v14, v11
    s_waitcnt lgkmcnt(0)
    """)
    stamp()
    ACC = 96
    def gemv(wbase, m):
        for i in range(8):
            for q in range(4):
                t = 112 + 2*((i*4+q) & 1)
                w = wbase + 4*i + q
                e(f"v_lshlrev_b32 v{t}, 16, v{w}")
                e(f"v_and_b32 v{t+1}, s{S_MASK}, v{w}")
                for p in range(2):
                    a = ACC + 2*(2*q+p)
                    sel = "op_sel:[0,0,0] op_sel_hi:[0,1,1]" if p == 0 else "op_sel:[1,0,0] op_sel_hi:[1,1,1]"
                    if i == 0:
                        sel2 = "op_sel:[0,0] op_sel_hi:[0,1]" if p == 0 else "op_sel:[1,0] op_sel_hi:[1,1]"
                        e(f"v_pk_mul_f32 v[{a}:{a+1}], v[{t}:{t+1}], v[40:41] {sel2}")
                    else:
                        e(f"v_pk_fma_f32 v[{a}:{a+1}], v[{t}:{t+1}], v[{40+2*i}:{41+2*i}], v[{a}:{a+1}] {sel}")
        A = lambda c, b: ACC + 2*c + b
        for c in range(4):
            for b in range(2): e(f"v_permlane32_swap_b32 v{A(c,b)}, v{A(c+4,b)}")
        for c in range(4):
            e(f"v_pk_add_f32 v[{A(c,0)}:{A(c,1)}], v[{A(c,0)}:{A(c,1)}], v[{A(c+4,0)}:{A(c+4,1)}]")
        for c in range(2):
            for b in range(2): e(f"v_permlane16_swap_b32 v{A(c,b)}, v{A(c+2,b)}")
        for c in range(2):
            e(f"v_pk_add_f32 v[{A(c,0)}:{A(c,1)}], v[{A(c,0)}:{A(c,1)}], v[{A(c+2,0)}:{A(c+2,1)}]")
        for k in range(4): e(f"v_add_f32_dpp v{ACC+k}, v{ACC+k}, v{ACC+k} row_ror:8 row_mask:0xf bank_mask:0xf")
        e(f"v_swap_b32 v{ACC+1}, v{ACC+2}")
        e("s_mov_b32 exec_lo, 0x00ff00ff")
        e("s_mov_b32 exec_hi, 0x00ff00ff")
        e(f"ds_write_b64 v14, v[{ACC}:{ACC+1}] offset:{L_RED+m*2048}")
        e(f"ds_write_b64 v14, v[{ACC+2}:{ACC+3}] offset:{L_RED+m*2048+256}")
        e("s_mov_b64 exec, -1")
    def load_k(t):
        e(f"s_mov_b32 s{T2}, {t*TSTR}")
        for u in range(2):
            for j in range(4):
                a = 32*t + 16*u + 4*j
                vm.issue(f"k{t}", f"buffer_load_dwordx4 a[{a}:{a+3}], v{6+u}, {srd(SK)}, s{T2} offen offset:{j*64} {NT}")
    def load_v(t):
        e(f"s_mov_b32 s{T2}, {t*TSTR}")
        for i in range(8):
            r = 128 + 32*(t & 3) + 4*i
            vm.issue(f"v{t}", f"buffer_load_dwordx4 v[{r}:{r+3}], v{8+(i>>2)}, {srd(SV)}, s{T2} offen offset:{(i&3)*1024} {NT}")
    WINV = [WIN]
    def pace(next_n):
        vm.wait_leave(max(WINV[0] - next_n, 0))
    if CLRPOS == "ln": clears()
    load_k(0)
    vm.wait("wq")
    stamp()
    gemv(128, 0)
    if CLRPOS == "q": clears()
    load_k(1)
    vm.wait("wg")
    gemv(160, 1)
    if CLRPOS == "g": clears()
    LATE = cfg.get("late", True)
    if not LATE: load_wd()
    vm.wait("wu")
    stamp()
    gemv(192, 2)
    e("s_waitcnt lgkmcnt(0)")
    e("s_barrier")
    e(f"""
    s_cmp_lg_u32 s3, 0
    s_cbranch_scc1 L_nopub
    v_lshrrev_b32 v11, 5, v1
    v_lshlrev_b32 v11, 11, v11          ; m*2048
    v_bfe_u32 v12, v1, 4, 1
    v_lshlrev_b32 v13, 8, v12           ; b*256
    v_add_u32 v11, v11, v13
    v_and_b32 v14, 15, v1
    v_lshlrev_b32 v15, 4, v14           ; c4*16
    v_add_u32 v11, v11, v15
    v_and_b32 v58, 0x7ff, v11
    """)
    for w in range(4):
        e(f"ds_read_b128 v[{96+4*w}:{99+4*w}], v11 offset:{L_RED+w*512}")
    for w in range(4):
        e(f"ds_read_b128 v[{64+4*w}:{67+4*w}], v58 offset:{L_RED+4096+w*512}")
    e(f"""
    v_lshlrev_b32 v59, 14, v12
    v_add_u32 v59, v59, v15
    s_lshl_b32 s{T}, s8, 15
    s_lshl_b32 s{T2}, s{S_CB}, 8
    s_add_u32 s{T}, s{T}, s{T2}
    v_add_u32 v59, s{T}, v59
    v_lshrrev_b32 v60, 2, v14
    v_lshlrev_b32 v60, 10, v60
    v_lshlrev_b32 v61, 6, v12
    v_add_u32 v60, v60, v61
    v_and_b32 v61, 3, v14
    v_lshlrev_b32 v61, 4, v61
    v_add_u32 v60, v60, v61
    s_lshl_b32 s{T}, s{S_CB}, 12
    s_lshl_b32 s{T2}, s8, 8
    s_add_u32 s{T}, s{T}, s{T2}
    s_add_u32 s{T}, s{T}, {GU}
    s_xor_b32 s{T}, s{T}, {XG << 12}
    v_add_u32 v60, s{T}, v60
    v_cmp_gt_u32 vcc, 32, v1
    v_cndmask_b32 v59, v60, v59, vcc
    v_xor_b32 v60, {(XG ^ XU) << 12}, v60
    v_add_u32 v60, 128, v60             ; u address
    s_waitcnt lgkmcnt(4)
    v_pk_add_f32 v[96:97], v[96:97], v[100:101]
    v_pk_add_f32 v[98:99], v[98:99], v[102:103]
    v_pk_add_f32 v[104:105], v[104:105], v[108:109]
    v_pk_add_f32 v[106:107], v[106:107], v[110:111]
    v_pk_add_f32 v[96:97], v[96:97], v[104:105]
    v_pk_add_f32 v[98:99], v[98:99], v[106:107]
    """)
    vm.issue("pub", f"buffer_store_dwordx4 v[96:99], v59, {srd(SWS)}, 0 offen sc1", definite=False)
    e(f"""
    s_waitcnt lgkmcnt(0)
    v_pk_add_f32 v[64:65], v[64:65], v[68:69]
    v_pk_add_f32 v[66:67], v[66:67], v[70:71]
    v_pk_add_f32 v[72:73], v[72:73], v[76:77]
    v_pk_add_f32 v[74:75], v[74:75], v[78:79]
    v_pk_add_f32 v[64:65], v[64:65], v[72:73]
    v_pk_add_f32 v[66:67], v[66:67], v[74:75]
    s_mov_b32 exec_hi, 0
    """)
    vm.issue("pub", f"buffer_store_dwordx4 v[64:67], v60, {srd(SWS)}, 0 offen sc1", definite=False)
    e("s_mov_b64 exec, -1")
    e("L_nopub:")
    load_k(2)
    stamp()
    vm.wait_leave(8)
    assert all(t in ("k2",) for t, d in vm.ops), vm.ops
    e("s_barrier")
    e("s_cmp_lg_u32 s3, 0")
    e("s_cbranch_scc1 L_nosig")
    e(f"""
    v_mov_b32 v11, 1
    s_and_b32 s{T}, s2, 3
    s_lshl_b32 s{T}, s{T}, 6
    v_mov_b32 v12, s{T}
    s_mov_b64 exec, 1
    """)
    vm.issue("sig", f"buffer_atomic_add v11, v12, {srd(SDBG)}, 0 offen sc1", definite=False)
    e("s_mov_b64 exec, -1")
    e("L_nosig:")
    load_k(3)
    POLLK = cfg.get("pollk", 6)
    for t in range(4, POLLK):
        pace(8); load_k(t)
    e(f"""
    s_cmp_lg_u32 s3, 0
    s_cbranch_scc1 L_nopoll1
    v_and_b32 v40, 3, v1
    v_lshlrev_b32 v40, 6, v40
    """)
    vm.issue("poll", f"buffer_load_dword v41, v40, {srd(SDBG)}, 0 offen sc1", definite=False)
    e("L_nopoll1:")
    pace(8); load_k(POLLK)
    e("s_cmp_lg_u32 s3, 0")
    e("s_cbranch_scc1 L_qok")
    e(f"s_waitcnt vmcnt({vm.count_after('poll')})")
    e(f"""
    s_mov_b32 s{S_SPIN}, 0
L_qspin:
    v_cmp_eq_u32 vcc, 64, v41
    s_nop 1
    s_cmp_eq_u64 vcc, -1
    s_cbranch_scc1 L_qok
    s_add_u32 s{S_SPIN}, s{S_SPIN}, 1
    s_cmp_gt_u32 s{S_SPIN}, {SPIN}
    s_cbranch_scc1 L_end
    buffer_load_dword v41, v40, {srd(SDBG)}, 0 offen sc1
    s_waitcnt vmcnt(0)
    s_branch L_qspin
L_qok:
    s_barrier
    v_lshlrev_b32 v40, 4, v0
    s_lshl_b32 s{T}, s{S_B}, 14
    s_lshl_b32 s{T2}, s{S_HKV}, 12
    s_add_u32 s{T}, s{T}, s{T2}
    """)
    for rq in range(4):
        vm.issue("q", f"buffer_load_dwordx4 v[{16+4*rq}:{19+4*rq}], v40, {srd(SWS)}, s{T} offen sc1")
        if rq < 3: e(f"s_add_u32 s{T}, s{T}, 32768")
    e(f"""
    v_lshlrev_b32 v41, 4, v1
    s_lshl_b32 s{T}, s0, 10
    s_add_u32 s{T}, s{T}, {GU}
    """)
    vm.issue("q", f"buffer_load_dwordx4 v[32:35], v41, {srd(SWS)}, s{T} offen sc1")
    for t in range(POLLK+1, 8):
        load_k(t)
    e(f"""
    v_lshrrev_b32 v42, 5, v0
    v_lshlrev_b32 v42, 4, v42           ; (t>>5)*16
    v_lshlrev_b32 v43, 3, v0
    v_add_u32 v42, v42, v43
    v_and_b32 v43, 7, v1
    v_mul_u32_u24 v43, 272, v43
    v_lshrrev_b32 v44, 4, v1
    v_lshlrev_b32 v44, 4, v44
    v_add_u32 v43, v43, v44
    v_and_b32 v44, 3, v1
    v_lshlrev_b32 v44, 5, v44
    v_lshrrev_b32 v45, 4, v1
    v_lshlrev_b32 v45, 3, v45
    v_add_u32 v44, v44, v45
    v_bfe_u32 v45, v1, 2, 1
    v_lshlrev_b32 v45, 2, v45
    v_add_u32 v44, v44, v45
    """)
    vm.wait("q")
    stamp()
    e(f"""
    v_pk_add_f32 v[16:17], v[16:17], v[20:21]
    v_pk_add_f32 v[18:19], v[18:19], v[22:23]
    v_pk_add_f32 v[24:25], v[24:25], v[28:29]
    v_pk_add_f32 v[26:27], v[26:27], v[30:31]
    v_pk_add_f32 v[16:17], v[16:17], v[24:25]
    v_pk_add_f32 v[18:19], v[18:19], v[26:27]
    v_cvt_pk_bf16_f32 v16, v16, v17
    v_cvt_pk_bf16_f32 v17, v18, v19
    ds_write_b64 v42, v[16:17] offset:{L_QS}
    v_permlane32_swap_b32 v32, v34
    v_permlane32_swap_b32 v33, v35
    v_pk_add_f32 v[32:33], v[32:33], v[34:35]
    v_permlane16_swap_b32 v32, v33
    v_add_f32 v96, v32, v33
    """)
    rbf(96, 96)
    e(f"""
    v_mov_b32_dpp v100, v96 row_ror:8 row_mask:0xf bank_mask:0xf     ; u
    v_mul_f32 v98, 0xbfb8aa3b, v96      ; -g*log2e
    v_exp_f32 v98, v98
    v_add_f32 v98, 1.0, v98
    v_rcp_f32 v99, v98
    v_mul_f32 v101, v96, v99
    v_fma_f32 v102, -v101, v98, v96
    v_fma_f32 v102, v102, v99, v101
    v_cmp_eq_f32 vcc, 0x7f800000, v98
    v_cndmask_b32 v101, v102, v101, vcc
    """)
    rbf(101, 101)
    e("v_mul_f32 v101, v101, v100")
    rbf(101, 101)
    e("s_mov_b32 exec_lo, 0x00ff00ff")
    e("s_mov_b32 exec_hi, 0x00ff00ff")
    e(f"ds_write_b32 v44, v101 offset:{L_HB}")
    e("s_mov_b64 exec, -1")
    e("v_mov_b32 v11, 0")
    e("s_waitcnt lgkmcnt(0)")
    e("s_barrier")
    for j in range(4):
        e(f"ds_read_b128 v[{16+4*j}:{19+4*j}], v43 offset:{L_QS+64*j}")
    if not LATE:
        for k in range(8):
            e(f"ds_read_b128 v[{64+4*k}:{67+4*k}], v11 offset:{L_HB+16*k}")
    load_v(0)
    if not LATE: vm.wait("wd")
    e("s_waitcnt lgkmcnt(0)")
    F0, F1 = 2, 12
    def rowfma(wreg_pairs, opair, first):
        for b, F in ((0, F0), (1, F1)):
            for hlf in range(2):
                wp = wreg_pairs[hlf]; a = F + 2*hlf
                if first:
                    e(f"v_pk_mul_f32 v[{a}:{a+1}], v[{wp}:{wp+1}], v[{opair}:{opair+1}] op_sel:[0,{b}] op_sel_hi:[1,{b}]")
                else:
                    e(f"v_pk_fma_f32 v[{a}:{a+1}], v[{wp}:{wp+1}], v[{opair}:{opair+1}], v[{a}:{a+1}] op_sel:[0,{b},0] op_sel_hi:[1,{b},1]")
    def ffn_down(wdr, tb):
        for i in range(16):
            t = tb + 4*(i & 1)
            for d in range(2):
                e(f"v_lshlrev_b32 v{t+2*d}, 16, v{wdr+2*i+d}")
                e(f"v_and_b32 v{t+2*d+1}, s{S_MASK}, v{wdr+2*i+d}")
            rowfma((t, t+2), 64+2*i, i == 0)
    if not LATE: ffn_down(WDR, 96)
    pace(8); load_v(1)
    SCALE = 0x3db504f3
    e(f"s_mov_b32 s10, {hex(SCALE)}")
    e(f"s_mov_b32 s11, {hex(SCALE)}")
    def qk(t):
        for j in range(4):
            for u in range(2):
                a = 32*t + 16*u + 4*j; s = 64 + 8*t + 4*u
                c = "0" if j == 0 else f"v[{s}:{s+3}]"
                e(f"v_mfma_f32_16x16x32_bf16 v[{s}:{s+3}], a[{a}:{a+3}], v[{16+4*j}:{19+4*j}], {c}")
    def rnd(t):
        for z in range(4):
            r = 64 + 8*t + 2*z; tmp = 40 + (z & 1)
            if MIMIC:
                e(f"v_cvt_pk_bf16_f32 v{tmp}, v{r}, v{r+1}")
                e(f"v_lshlrev_b32 v{r}, 16, v{tmp}")
                e(f"v_and_b32 v{r+1}, s{S_MASK}, v{tmp}")
                e(f"v_pk_mul_f32 v[{r}:{r+1}], v[{r}:{r+1}], s[10:11]")
                e(f"v_cvt_pk_bf16_f32 v{tmp}, v{r}, v{r+1}")
                e(f"v_lshlrev_b32 v{r}, 16, v{tmp}")
                e(f"v_and_b32 v{r+1}, s{S_MASK}, v{tmp}")
            else:
                e(f"v_pk_mul_f32 v[{r}:{r+1}], v[{r}:{r+1}], s[10:11]")
    vm.wait("k7")
    qk(0); qk(1); rnd(0); qk(2); rnd(1); qk(3); rnd(2)
    load_v(2)
    qk(4); rnd(3); qk(5); rnd(4); qk(6); rnd(5); qk(7); rnd(6)
    load_v(3)
    rnd(7)
    stamp()
    e("v_max3_f32 v40, v64, v65, v66")
    e("v_max3_f32 v41, v67, v68, v69")
    k = 70
    while k + 3 < 128:
        e(f"v_max3_f32 v40, v40, v{k}, v{k+1}")
        e(f"v_max3_f32 v41, v41, v{k+2}, v{k+3}")
        k += 4
    e(f"v_max3_f32 v40, v40, v{k}, v{k+1}")
    e("v_max_f32 v40, v40, v41")
    for sw in ("v_permlane16_swap_b32", "v_permlane32_swap_b32"):
        e("v_mov_b32 v41, v40")
        e(f"{sw} v40, v41")
        e("v_max_f32 v40, v40, v41")
    e(f"""
    v_and_b32 v42, 15, v1
    v_lshlrev_b32 v42, 2, v42           ; n*4
    v_lshlrev_b32 v43, 6, v10
    v_add_u32 v43, v43, v42             ; w*64+n*4
    ds_write_b32 v43, v40 offset:{L_MX}
    s_waitcnt lgkmcnt(0)
    s_barrier
    ds_read_b32 v44, v42 offset:{L_MX}
    ds_read_b32 v45, v42 offset:{L_MX+64}
    ds_read_b32 v46, v42 offset:{L_MX+128}
    ds_read_b32 v47, v42 offset:{L_MX+192}
    s_mov_b32 s10, 0x3fb8aa3b
    s_waitcnt lgkmcnt(0)
    v_max3_f32 v44, v44, v45, v46
    v_max_f32 v44, v44, v47
    v_mul_f32 v45, s10, v44             ; M*log2e
    """)
    for r in range(64, 128):
        e(f"v_fma_f32 v{r}, v{r}, s10, -v45")
    for r in range(64, 128):
        e(f"v_exp_f32 v{r}, v{r}")
    e("v_add_f32 v46, v64, v65")
    e("v_add_f32 v47, v66, v67")
    for r in range(68, 128, 2):
        e(f"v_add_f32 v46, v46, v{r}")
        e(f"v_add_f32 v47, v47, v{r+1}")
    e("v_add_f32 v46, v46, v47")
    for z in range(32):
        e(f"v_cvt_pk_bf16_f32 v{64+z}, v{64+2*z}, v{65+2*z}")
    for sw in ("v_permlane16_swap_b32", "v_permlane32_swap_b32"):
        e("v_mov_b32 v47, v46")
        e(f"{sw} v46, v47")
        e("v_add_f32 v46, v46, v47")
    e(f"ds_write_b32 v43, v46 offset:{L_LS}")
    e(f"""
    s_waitcnt lgkmcnt(0)
    s_barrier
    s_cmp_lg_u32 s3, 0
    s_cbranch_scc1 L_noml
    ds_read_b32 v46, v42 offset:{L_LS}
    ds_read_b32 v47, v42 offset:{L_LS+64}
    ds_read_b32 v48, v42 offset:{L_LS+128}
    ds_read_b32 v49, v42 offset:{L_LS+192}
    v_lshlrev_b32 v50, 7, v42           ; n*512
    s_lshl_b32 s{T}, s{S_HKV}, 12       ; hkv*8*512
    s_lshl_b32 s{T2}, s{S_B}, 8
    s_add_u32 s{T}, s{T}, s{T2}
    s_lshl_b32 s{T2}, s{S_S}, 3
    s_add_u32 s{T}, s{T}, s{T2}
    s_add_u32 s{T}, s{T}, {ML}
    s_waitcnt lgkmcnt(0)
    v_add_f32 v46, v46, v47
    v_add_f32 v48, v48, v49
    v_add_f32 v45, v46, v48
    s_mov_b64 exec, 0xff
    """)
    vm.issue("mlst", f"buffer_store_dwordx2 v[44:45], v50, {srd(SWS)}, s{T} offen sc1", definite=False)
    e("s_mov_b64 exec, -1")
    e("L_noml:")
    stamp()
    def pv(t):
        slot = 128 + 32*(t & 3)
        for j in range(8):
            q, p = j >> 1, j & 1
            T4 = 16 + 4*(j & 3)
            for z in range(4):
                e(f"v_perm_b32 v{T4+z}, v{slot+4*(2*z+1)+q}, v{slot+4*(2*z)+q}, s{S_SEL1 if p else S_SEL0}")
            c = "0" if t == 0 else f"v[{32+4*j}:{35+4*j}]"
            e(f"v_mfma_f32_16x16x32_bf16 v[{32+4*j}:{35+4*j}], v[{T4}:{T4+3}], v[{64+4*t}:{67+4*t}], {c}")
    WOR = 96
    e("v_lshlrev_b32 v11, 3, v0")
    WINV[0] = cfg.get("winv", WIN)
    vm.wait("v0"); pv(0)
    pace(8); load_v(4)
    def load_wo(WOR):
        for i in range(16):
            off = (8*(i & 3) + (i >> 2))*2048
            e(f"s_mov_b32 s{T2}, {off}")
            vm.issue("wo", f"buffer_load_dwordx2 v[{WOR+2*i}:{WOR+2*i+1}], v11, {srd(SWO)}, s{T2} offen {NT}")
    if not LATE:
        pace(8)
        load_wo(WOR)
    vm.wait("v1"); pv(1)
    pace(8); load_v(5)
    vm.wait("v2"); pv(2)
    e(f"""
    v_lshrrev_b32 v6, 1, v1
    s_and_b32 s8, s2, 31
    v_xor_b32 v6, s8, v6
    v_lshlrev_b32 v6, 3, v6
    v_lshrrev_b32 v7, 1, v10
    v_lshlrev_b32 v7, 8, v7
    v_add_u32 v6, v6, v7
    s_lshr_b32 s8, s2, 3
    s_lshl_b32 s8, s8, 9
    s_add_u32 s8, s8, {ML}
    """)
    pace(8)
    vm.issue("ml", f"buffer_load_dwordx2 a[0:1], v6, {srd(SWS)}, s8 offen sc1")
    load_v(6)
    vm.wait("v3"); pv(3)
    pace(8); load_v(7)
    vm.wait("v4"); pv(4)
    def unpack_wo(i0, src=WOR, dst=128):
        for i in range(i0, i0+8):
            for d in range(2):
                e(f"v_lshlrev_b32 v{dst+4*i+2*d}, 16, v{src+2*i+d}")
                e(f"v_and_b32 v{dst+4*i+2*d+1}, s{S_MASK}, v{src+2*i+d}")
    if LATE:
        load_wd(128, 11)
        vm.wait("v5"); pv(5)
        load_wo(160)
        WOU = 192
    else:
        vm.wait("wo")
        unpack_wo(0)
        vm.wait("v5"); pv(5)
        unpack_wo(8)
        WOU = 128
    vm.wait("ml")
    e(f"""
    v_accvgpr_read_b32 v96, a0
    v_accvgpr_read_b32 v97, a1
    s_mov_b32 s{S_SPIN}, 0
L_mlspin:
    v_max_u32 v98, v96, v97
    v_cmp_eq_u32 vcc, -1, v98
    s_nop 1
    s_cmp_eq_u64 vcc, 0
    s_cbranch_scc1 L_mlok
    s_add_u32 s{S_SPIN}, s{S_SPIN}, 1
    s_cmp_gt_u32 s{S_SPIN}, {SPIN}
    s_cbranch_scc1 L_end
    buffer_load_dwordx2 v[96:97], v6, {srd(SWS)}, s8 offen sc1
    s_waitcnt vmcnt(0)
    s_branch L_mlspin
L_mlok:
    v_mov_b32 v98, v96
    """)
    wave_red([98], op="max", tmp=104, shifts=(8, 4, 2))
    e("v_sub_f32 v98, v96, v98")
    e("v_mul_f32 v98, 0x3fb8aa3b, v98")
    e("v_exp_f32 v98, v98")
    e("v_mul_f32 v99, v98, v97")
    wave_red([99], op="add", tmp=104, shifts=(8, 4, 2))
    e("""
    v_rcp_f32 v100, v99
    v_mul_f32 v101, v98, v100
    v_fma_f32 v102, -v101, v99, v98
    v_fma_f32 v100, v102, v100, v101    ; f = e_s / L
    """)
    e(f"""
    v_and_b32 v96, 15, v1
    v_mul_u32_u24 v96, 528, v96
    v_lshrrev_b32 v97, 4, v1
    v_lshlrev_b32 v97, 7, v97
    v_add_u32 v96, v96, v97
    v_mul_u32_u24 v97, {OBW}, v10
    v_add_u32 v96, v96, v97
    v_lshrrev_b32 v98, 5, v0
    v_mul_u32_u24 v97, 528, v98
    v_and_b32 v99, 31, v0
    v_lshlrev_b32 v101, 4, v99
    v_add_u32 v97, v97, v101
    v_lshlrev_b32 v98, 15, v98
    v_lshrrev_b32 v101, 2, v99
    v_lshlrev_b32 v101, 12, v101
    v_add_u32 v98, v98, v101
    v_and_b32 v101, 3, v99
    v_lshlrev_b32 v101, 4, v101
    v_add_u32 v98, v98, v101
    v_bfe_u32 v101, v0, 2, 5
    v_xor_b32 v101, s{S_S}, v101
    v_lshlrev_b32 v101, 6, v101
    v_add_u32 v98, v98, v101
    s_lshl_b32 s10, s{S_HKV}, 18
    s_lshl_b32 s{T}, s{S_B}, 11
    s_add_u32 s10, s10, s{T}
    s_add_u32 s10, s10, {PO}
    v_lshrrev_b32 v99, 1, v10
    v_lshlrev_b32 v99, 11, v99
    v_lshrrev_b32 v101, 1, v1
    v_lshlrev_b32 v101, 6, v101
    v_add_u32 v99, v99, v101
    v_and_b32 v101, 1, v10
    v_lshlrev_b32 v101, 5, v101
    v_add_u32 v99, v99, v101
    v_and_b32 v101, 1, v1
    v_lshlrev_b32 v101, 4, v101
    v_add_u32 v99, v99, v101
    s_lshl_b32 s11, s2, 12
    s_add_u32 s11, s11, {PO}
    v_and_b32 v101, 1, v10
    v_lshlrev_b32 v101, 6, v101
    v_and_b32 v102, 1, v1
    v_lshlrev_b32 v102, 5, v102
    v_add_u32 v101, v101, v102
    v_lshrrev_b32 v102, 4, v1
    v_lshlrev_b32 v102, 3, v102
    v_add_u32 v101, v101, v102
    v_lshrrev_b32 v102, 1, v10
    v_lshlrev_b32 v102, 2, v102
    v_add_u32 v101, v101, v102
    v_mov_b32 v102, 0
    v_lshrrev_b32 v103, 1, v0
    v_xor_b32 v11, s2, v103
    v_lshlrev_b32 v103, 13, v103
    v_and_b32 v104, 1, v0
    v_lshlrev_b32 v104, 4, v104
    v_add_u32 v103, v103, v104
    v_xor_b32 v109, 0x80, v11
    v_lshlrev_b32 v109, 5, v109
    v_add_u32 v109, v109, v103
    v_lshlrev_b32 v11, 5, v11
    v_add_u32 v103, v103, v11
    s_mov_b32 s96, {PF}
    s_mov_b32 s97, {PF+0x100000}
    v_lshlrev_b32 v104, 5, v0
    s_lshl_b32 s98, s2, 13
    s_add_u32 s98, s98, {PF}
    v_lshlrev_b32 v105, 5, v10
    v_lshrrev_b32 v106, 4, v1
    v_lshlrev_b32 v106, 3, v106
    v_add_u32 v105, v105, v106
    v_lshlrev_b32 v106, 3, v1
    v_lshlrev_b32 v107, 2, v1
    v_and_b32 v107, 12, v107
    """)
    vm.issue("res", f"buffer_load_dword v108, v107, {srd(SX)}, s9 offen")
    vm.wait("v6"); pv(6)
    vm.wait("v7")
    if not LATE: vm.wait("res")
    stamp()
    pv(7)
    if not LATE:
        e("v_lshlrev_b32 v110, 16, v108")
        e(f"v_and_b32 v111, s{S_MASK}, v108")
    e("s_mov_b32 exec_lo, 0x00ff00ff")
    e("s_mov_b32 exec_hi, 0x00ff00ff")
    for j in range(8):
        e(f"ds_write_b128 v96, v[{32+4*j}:{35+4*j}] offset:{L_OB+16*j}")
    e("s_mov_b64 exec, -1")
    e("s_waitcnt lgkmcnt(0)")
    e("s_barrier")
    for w in range(4):
        e(f"ds_read_b128 v[{16+4*w}:{19+4*w}], v97 offset:{L_OB+w*OBW}")
    e("s_waitcnt lgkmcnt(2)")
    e("v_pk_add_f32 v[16:17], v[16:17], v[20:21]")
    e("v_pk_add_f32 v[18:19], v[18:19], v[22:23]")
    e("s_waitcnt lgkmcnt(0)")
    e("v_pk_add_f32 v[24:25], v[24:25], v[28:29]")
    e("v_pk_add_f32 v[26:27], v[26:27], v[30:31]")
    e("v_pk_add_f32 v[16:17], v[16:17], v[24:25]")
    e("v_pk_add_f32 v[18:19], v[18:19], v[26:27]")
    vm.issue("post", f"buffer_store_dwordx4 v[16:19], v98, {srd(SWS)}, s10 offen sc1")
    if cfg.get("tstamps"): stamp()
    if LATE:
        e("v_mov_b32 v16, 0")
        for k in range(8):
            e(f"ds_read_b128 v[{64+4*k}:{67+4*k}], v16 offset:{L_HB+16*k}")
        vm.wait("wd")
        e("s_waitcnt lgkmcnt(0)")
        ffn_down(128, 112)
        vm.issue("poll1", f"buffer_load_dwordx4 v[20:23], v99, {srd(SWS)}, s11 offen sc1")
        wo_idx = [i for i, (t, d) in enumerate(vm.ops) if t == "wo"]
        after = sum(1 for t, d in vm.ops[wo_idx[-1]+1:] if d)
        e(f"s_waitcnt vmcnt({after + 8})")
        unpack_wo(0, 160, 192)
        vm.wait("wo")
        unpack_wo(8, 160, 192)
        vm.wait("res")
        e("v_lshlrev_b32 v110, 16, v108")
        e(f"v_and_b32 v111, s{S_MASK}, v108")
        vm.wait("poll1")
        e(f"""
    s_mov_b32 s{S_SPIN}, 0
    v_max3_u32 v24, v20, v21, v22
    v_max_u32 v24, v24, v23
    v_cmp_eq_u32 vcc, -1, v24
    s_nop 1
    s_cmp_eq_u64 vcc, 0
    s_cbranch_scc1 L_podone
    """)
    if cfg.get("drainA", True): e("s_waitcnt vmcnt(0)")
    MASKP = cfg.get("maskpoll", True)
    tailchk = """
    s_and_b64 exec, exec, vcc
    s_cbranch_execnz {L}
    s_mov_b64 exec, -1
    """ if MASKP else """
    s_nop 1
    s_cmp_eq_u64 vcc, 0
    s_cbranch_scc0 {L}
    """
    e(f"s_mov_b32 s{S_SPIN}, 0")
    if cfg.get("preA"):
        e(f"""
    s_mov_b64 exec, {cfg['preA']}
L_popre:
    buffer_load_dword v20, v99, {srd(SWS)}, s11 offen sc1
    s_add_u32 s{S_SPIN}, s{S_SPIN}, 1
    s_cmp_gt_u32 s{S_SPIN}, {SPIN}
    s_cbranch_scc1 L_end
    s_waitcnt vmcnt(0)
    v_cmp_eq_u32 vcc, -1, v20
    s_and_b64 exec, exec, vcc
    s_cbranch_execnz L_popre
    s_mov_b64 exec, -1
    """)
    e(f"""
L_pospin:
    buffer_load_dwordx4 v[20:23], v99, {srd(SWS)}, s11 offen sc1
    s_add_u32 s{S_SPIN}, s{S_SPIN}, 1
    s_cmp_gt_u32 s{S_SPIN}, {SPIN}
    s_cbranch_scc1 L_end
    s_waitcnt vmcnt(0)
    v_max3_u32 v24, v20, v21, v22
    v_max_u32 v24, v24, v23
    v_cmp_eq_u32 vcc, -1, v24
    """)
    e(tailchk.format(L="L_pospin"))
    e("L_podone:")
    vm.ops = []
    if STAMPS: e(f"s_mov_b32 s24, s{S_SPIN}")
    stamp()
    e("v_pk_mul_f32 v[20:21], v[20:21], v[100:101] op_sel:[0,0] op_sel_hi:[1,0]")
    e("v_pk_mul_f32 v[22:23], v[22:23], v[100:101] op_sel:[0,0] op_sel_hi:[1,0]")
    e("v_permlane32_swap_b32 v20, v22")
    e("v_permlane32_swap_b32 v21, v23")
    e("v_add_f32 v20, v20, v22")
    e("v_add_f32 v21, v21, v23")
    e("v_permlane16_swap_b32 v20, v21")
    e("v_add_f32 v20, v20, v21")
    for sh in (2, 4, 8):
        e(f"v_add_f32_dpp v20, v20, v20 row_ror:{sh} row_mask:0xf bank_mask:0xf")
    rbf(20, 20)
    e("s_mov_b32 exec_lo, 0x00030003")
    e("s_mov_b32 exec_hi, 0x00030003")
    e(f"ds_write_b32 v101, v20 offset:{L_OBC}")
    e("s_mov_b64 exec, -1")
    e("s_waitcnt lgkmcnt(0)")
    e("s_barrier")
    for k in range(8):
        e(f"ds_read_b128 v[{16+4*k}:{19+4*k}], v102 offset:{L_OBC+16*k}")
    for i in range(16):
        if i % 2 == 0: e(f"s_waitcnt lgkmcnt({7 - i//2})")
        rowfma((WOU+4*i, WOU+2+4*i), 16+2*i, False)
    vm.issue("pfst", f"buffer_store_dwordx4 v[{F0}:{F0+3}], v103, {srd(SWS)}, s96 offen sc1")
    vm.issue("pfst", f"buffer_store_dwordx4 v[{F1}:{F1+3}], v109, {srd(SWS)}, s97 offen sc1")
    if cfg.get("tstamps"): stamp()
    if cfg.get("sleepB"): e(f"s_sleep {cfg['sleepB']}")
    if cfg.get("drainB", True): e("s_waitcnt vmcnt(0)")
    e(f"s_mov_b32 s{S_SPIN}, 0")
    if cfg.get("preB"):
        e(f"""
    s_mov_b64 exec, {cfg['preB']}
L_pfpre:
    buffer_load_dword v20, v104, {srd(SWS)}, s98 offen offset:16 sc1
    s_add_u32 s{S_SPIN}, s{S_SPIN}, 1
    s_cmp_gt_u32 s{S_SPIN}, {SPIN}
    s_cbranch_scc1 L_end
    s_waitcnt vmcnt(0)
    v_cmp_eq_u32 vcc, -1, v20
    s_and_b64 exec, exec, vcc
    s_cbranch_execnz L_pfpre
    s_mov_b64 exec, -1
    """)
    e(f"""
L_pfspin:
    buffer_load_dwordx4 v[20:23], v104, {srd(SWS)}, s98 offen sc1
    buffer_load_dwordx4 v[24:27], v104, {srd(SWS)}, s98 offen offset:16 sc1
    s_add_u32 s{S_SPIN}, s{S_SPIN}, 1
    s_cmp_gt_u32 s{S_SPIN}, {SPIN}
    s_cbranch_scc1 L_end
    s_waitcnt vmcnt(0)
    v_max3_u32 v28, v20, v21, v22
    v_max3_u32 v29, v23, v24, v25
    v_max3_u32 v28, v28, v26, v27
    v_max_u32 v28, v28, v29
    v_cmp_eq_u32 vcc, -1, v28
    """)
    e(tailchk.format(L="L_pfspin"))
    vm.ops = []
    if STAMPS: e(f"s_mov_b32 s25, s{S_SPIN}")
    stamp()
    for c in range(4): e(f"v_permlane32_swap_b32 v{20+c}, v{24+c}")
    e("v_pk_add_f32 v[20:21], v[20:21], v[24:25]")
    e("v_pk_add_f32 v[22:23], v[22:23], v[26:27]")
    for c in range(2): e(f"v_permlane16_swap_b32 v{20+c}, v{22+c}")
    e("v_pk_add_f32 v[20:21], v[20:21], v[22:23]")
    for sh in (1, 2, 4, 8):
        for k in range(2): e(f"v_add_f32_dpp v{20+k}, v{20+k}, v{20+k} row_ror:{sh} row_mask:0xf bank_mask:0xf")
    e("s_mov_b32 exec_lo, 0x00010001")
    e("s_mov_b32 exec_hi, 0x00010001")
    e(f"ds_write_b64 v105, v[20:21] offset:{L_FIN}")
    e("s_mov_b64 exec, -1")
    e("s_waitcnt lgkmcnt(0)")
    e("s_barrier")
    e("s_cmp_lg_u32 s3, 0")
    e("s_cbranch_scc1 L_end")
    e("s_mov_b64 exec, 15")
    for w in range(4):
        e(f"ds_read_b64 v[{20+2*w}:{21+2*w}], v106 offset:{L_FIN+32*w}")
    e("s_waitcnt lgkmcnt(0)")
    e("v_pk_add_f32 v[20:21], v[20:21], v[22:23]")
    e("v_pk_add_f32 v[24:25], v[24:25], v[26:27]")
    e("v_pk_add_f32 v[20:21], v[20:21], v[24:25]")
    e("v_pk_add_f32 v[20:21], v[20:21], v[110:111]")
    e("v_cvt_pk_bf16_f32 v20, v20, v21")
    e(f"buffer_store_dword v20, v107, {srd(SOUT)}, s9 offen")
    if STAMPS:
        stamp()
        e("s_mov_b64 exec, 1")
        e(f"s_add_u32 s{SX}, s26, {240<<20}")
        e(f"s_addc_u32 s{SX+1}, s27, 0")
        e(f"s_and_b32 s{SX+1}, s{SX+1}, 0xffff")
        e(f"s_mov_b32 s{SX+2}, 0x10000")
        e(f"s_lshl_b32 s{T}, s2, 7")
        e("v_mov_b32 v2, 0")
        for k in range(stamp_n[0]):
            r = stamp_regs[k]
            e(f"v_mov_b32 v4, s{r}")
            e(f"v_mov_b32 v5, s{r+1}")
            e(f"buffer_store_dwordx2 v[4:5], v2, {srd(SX)}, s{T} offen offset:{8*k}")
            e("s_nop 2")
        e("v_mov_b32 v4, s24")
        e("v_mov_b32 v5, s25")
        e(f"buffer_store_dwordx2 v[4:5], v2, {srd(SX)}, s{T} offen offset:{8*15}")
    e("L_end:")
    e("s_endpgm")
    e(kernel_desc(NAME, 512, 102, 256))
    body, n = hazard.fix(e.text())
    hdr = HEADER_COMMENTS + f"; @launch grid=(256,1,1) block=(256,1,1) lds={LDS}\n" + '.amdgcn_target "amdgcn-amd-amdhsa--gfx950"\n.text\n'
    return hdr + body, n, LDS

if __name__ == "__main__":
    import json
    cfg = json.loads(sys.argv[2]) if len(sys.argv) > 2 else {}
    out = sys.argv[1]
    txt, n, lds = gen(cfg)
    open(out, "w").write(txt)
    print("nops inserted", n, "lines", txt.count("\n"), "lds", lds)
```

```python
import sys
from common import *
import hazard

NAME = "parallel_sum__gqa_block_cached__swiglu_ffn__decode_kernel"

class VM:
    def __init__(self, e): self.e = e; self.ops = []
    def issue(self, tag, line, definite=True):
        self.e(line); self.ops.append((tag, definite))
    def wait(self, tag):
        idx = [i for i, (t, d) in enumerate(self.ops) if t == tag]
        if not idx: return
        idx = max(idx)
        n = sum(1 for t, d in self.ops[idx+1:] if d)
        assert n <= 63, (tag, n)
        self.e(f"s_waitcnt vmcnt({n})")
        self.ops = self.ops[idx+1:]
        return n
    def count_after(self, tag):
        idx = max(i for i, (t, d) in enumerate(self.ops) if t == tag)
        return sum(1 for t, d in self.ops[idx+1:] if d)
    def wait_leave(self, n):
        if sum(1 for t, d in self.ops if d) <= n and all(d for t, d in self.ops): return
        self.e(f"s_waitcnt vmcnt({n})")
        while self.ops and sum(1 for t, d in self.ops[1:] if d) >= n: self.ops.pop(0)
    def drain(self):
        self.e("s_waitcnt vmcnt(0)"); self.ops = []

def gen(cfg):
    MIMIC = cfg.get("mimic", True)
    STAMPS = cfg.get("stamps", False)
    WIN = cfg.get("win", 16)
    NT = cfg.get("nt", "nt")
    NTW = cfg.get("ntw", "nt")
    SPIN = cfg.get("spin", 200000)
    e = E(); vm = VM(e)
    stamp_regs = [76+2*k for k in range(10)] + [12, 14, 16, 18, 20, 22]
    stamp_n = [0]
    def exmask(m):
        if isinstance(m, list): return f"s_mov_b32 exec_lo, {m[0]}\n    s_mov_b32 exec_hi, {m[1]}"
        return f"s_mov_b64 exec, {m}"
    def stamp():
        if not STAMPS: return
        if cfg.get("xst2") and stamp_n[0] >= 10: return
        k = stamp_n[0]; stamp_n[0] += 1
        r = stamp_regs[k]
        e(f"s_memrealtime s[{r}:{r+1}]")
        e("s_waitcnt lgkmcnt(0)")
    SX, SWQ, SWG, SWU, SK, SV, SWD, SWO, SWS, SOUT, SDBG = 28, 32, 36, 40, 44, 48, 52, 56, 60, 64, 68
    srd = lambda b: f"s[{b}:{b+3}]"
    S_MASK = 72
    S_T = 73; S_T2 = 74; S_SPIN = 75
    S_SEL0, S_SEL1 = 100, 101
    S_B, S_HKV, S_S, S_CB = 4, 5, 6, 7
    QP, GU, ML, PO, PF = 0, 0x20000, 0x60000, 0x100000, 0x200000
    L_HB = 1536
    L_MX = 1664
    L_LS = 1920
    L_OBC = 2176
    L_FIN = 2304
    L_OB = 2560
    OBW = 8*528
    LDS = L_OB + 4*OBW
    L_RED = L_OB
    L_XN = L_OB + 6144
    L_QS = L_OB + 8192
    T, T2 = S_T, S_T2

    if cfg.get("oddlight", False):
        RROLE = "s_and_b32 s{d}, s2, 1\n    s_lshl_b32 s{d}, s{d}, 7\n    s_lshr_b32 s98, s2, 1\n    s_add_u32 s{d}, s{d}, s98"
    elif cfg.get("ol2"):
        RROLE = ("s_and_b32 s{d}, s2, 1\n    s_lshl_b32 s{d}, s{d}, 5\n    s_sub_u32 s98, s2, 192\n    s_lshr_b32 s98, s98, 1\n"
                 "    s_add_u32 s{d}, s{d}, s98\n    s_add_u32 s{d}, s{d}, 192\n    s_cmp_lt_u32 s2, 192\n    s_cselect_b32 s{d}, s2, s{d}")
    else:
        RROLE = "s_mov_b32 s{d}, s2"
    e(kernel_head(NAME))
    e(f"""
    s_cmp_ge_u32 s2, 256
    s_cbranch_scc1 L_end
    {('s_xor_b32 s2, s2, %d' % cfg['jx']) if cfg.get('jx') else ''}
    {('s_branch L_pad' + chr(10) + ('    s_nop 0' + chr(10)) * (cfg['pad']//4 - 1) + 'L_pad:') if cfg.get('pad') else ''}
    s_load_dwordx16 s[4:19], s[0:1], 0
    s_load_dwordx8 s[20:27], s[0:1], 64
    v_and_b32 v1, 63, v0
    v_lshrrev_b32 v10, 6, v0
    v_readfirstlane_b32 s3, v10
    s_mov_b32 s{S_MASK}, 0xffff0000
    s_mov_b32 s{S_SEL0}, 0x05040100
    s_mov_b32 s{S_SEL1}, 0x07060302
    """)
    e(f"""
    {RROLE.format(d=97)}
    s_and_b32 s96, s97, 3              ; rq
    s_lshr_b32 s97, s97, 2             ; cg
    s_lshl_b32 s98, s96, 8             ; rq*256
    v_lshrrev_b32 v11, 3, v1
    v_lshlrev_b32 v12, 6, v10
    v_add_u32 v11, v11, v12
    v_add_u32 v11, s98, v11            ; row0
    v_and_b32 v12, 7, v1
    v_lshlrev_b32 v12, 4, v12          ; cc*16
    v_lshlrev_b32 v2, 13, v11
    v_add_u32 v2, v2, v12
    s_movk_i32 s{T}, 7168
    v_mul_lo_u32 v3, v11, s{T}
    v_add_u32 v3, v3, v12
    v_lshlrev_b32 v4, 5, v1
    v_lshlrev_b32 v5, 6, v10
    v_add_u32 v5, v5, v1
    v_add_u32 v5, s98, v5
    v_lshlrev_b32 v5, 1, v5
    v_lshlrev_b32 v57, 3, v0
    v_and_b32 v11, 3, v1
    v_lshlrev_b32 v11, 2, v11
    v_bfe_u32 v12, v1, 2, 2
    v_add_u32 v11, v11, v12
    v_lshlrev_b32 v11, 8, v11
    v_lshrrev_b32 v12, 4, v1
    v_lshlrev_b32 v12, 4, v12
    v_add_u32 v11, v11, v12
    v_lshlrev_b32 v12, {13 if cfg.get("ilv") else 16}, v10
    v_add_u32 v6, v11, v12
    v_add_u32 v7, 4096, v6
    v_lshlrev_b32 v11, 4, v1
    v_add_u32 v8, v11, v12
    v_add_u32 v9, 4096, v8
    s_waitcnt lgkmcnt(0)
    s_lshl_b32 s0, s97, 2
    s_add_u32 s0, s0, s96              ; r
    """)
    stamp()
    def mk_srd(dst, plo, off_sgpr, size):
        if off_sgpr is None:
            e(f"s_mov_b32 s{dst}, s{plo}")
            e(f"s_and_b32 s{dst+1}, s{plo+1}, 0xffff")
        else:
            e(f"s_add_u32 s{dst}, s{plo}, s{off_sgpr}")
            e(f"s_addc_u32 s{dst+1}, s{plo+1}, 0")
            e(f"s_and_b32 s{dst+1}, s{dst+1}, 0xffff")
        e(f"s_mov_b32 s{dst+2}, {size}")
        e(f"s_mov_b32 s{dst+3}, 0x20000")
    mk_srd(SX, 4, None, 4096)
    for b in range(2):
        for hlf in range(2):
            vm.issue("x", f"buffer_load_dwordx4 v[{16+8*b+4*hlf}:{19+8*b+4*hlf}], v4, {srd(SX)}, 0 offen offset:{b*2048+hlf*16}")
    for b in range(2):
        vm.issue("x", f"buffer_load_ushort v{32+b}, v5, {srd(SX)}, 0 offen offset:{b*2048}")
    if cfg.get("xq"): e(f"s_xor_b32 s97, s97, {cfg['xq']}")
    e(f"s_lshl_b32 s{T}, s97, 7")
    if cfg.get("xq"): e(f"s_xor_b32 s97, s97, {cfg['xq']}")
    if cfg.get("xst2"): stamp()
    mk_srd(SWQ, 10, T, 0)
    e(f"s_sub_u32 s{SWQ+2}, 0x800000, s{T}")
    e(f"s_mov_b32 s{T2}, 0")
    for i in range(8):
        vm.issue("wq", f"buffer_load_dwordx4 v[{128+4*i}:{131+4*i}], v2, {srd(SWQ)}, s{T2} offen {NTW}")
        if i < 7: e(f"s_add_u32 s{T2}, s{T2}, {8*8192}")
    if cfg.get("xg"): e(f"s_xor_b32 s97, s97, {cfg['xg']}")
    e(f"s_lshl_b32 s{T}, s97, 7")
    if cfg.get("xg"): e(f"s_xor_b32 s97, s97, {cfg['xg']}")
    MM = cfg.get("mm", True)
    XG, XU = (2, 4) if MM else (0, 0)
    if MM: e(f"s_xor_b32 s{T}, s{T}, {XG << 7}")
    if cfg.get("xst2"): stamp()
    mk_srd(SWG, 16, T, 0)
    e(f"s_sub_u32 s99, {7<<20}, s{T}")
    if MM: e(f"s_xor_b32 s{T}, s{T}, {(XG ^ XU) << 7}")
    mk_srd(SWU, 18, T, 0)
    e(f"""
    s_sub_u32 s{T2}, {7<<20}, s{T}
    s_cmp_lt_u32 s0, 224
    s_cselect_b32 s{SWG+2}, s99, 0
    s_cselect_b32 s{SWU+2}, s{T2}, 0
    s_mov_b32 s{T2}, 0
    """)
    for i in range(8):
        vm.issue("wg", f"buffer_load_dwordx4 v[{160+4*i}:{163+4*i}], v3, {srd(SWG)}, s{T2} offen {NTW}")
        if i < 7: e(f"s_add_u32 s{T2}, s{T2}, {8*7168}")
    e(f"s_mov_b32 s{T2}, 0")
    for i in range(8):
        vm.issue("wu", f"buffer_load_dwordx4 v[{192+4*i}:{195+4*i}], v3, {srd(SWU)}, s{T2} offen {NTW}")
        if i < 7: e(f"s_add_u32 s{T2}, s{T2}, {8*7168}")
    if cfg.get("xst2"): stamp()
    mk_srd(SWS, 26, None, 0x400000)
    NOCLR = cfg.get("noclr", False)
    CLRPOS = cfg.get("clrpos", "early")
    def clears():
        e(f"""
        v_mov_b32 v112, -1
        v_mov_b32 v113, -1
        v_mov_b32 v114, -1
        v_mov_b32 v115, -1
        v_lshlrev_b32 v11, 4, v0           ; tid*16
        s_lshl_b32 s{T}, s2, 12
        s_add_u32 s{T}, s{T}, {PO}
        """)
        if not NOCLR: vm.issue("clr", f"buffer_store_dwordx4 v[112:115], v11, {srd(SWS)}, s{T} offen sc1")
        e(f"""
        s_lshl_b32 s{T}, s2, 13
        s_add_u32 s{T}, s{T}, {PF}
        """)
        if not NOCLR: vm.issue("clr", f"buffer_store_dwordx4 v[112:115], v11, {srd(SWS)}, s{T} offen sc1")
        e(f"s_add_u32 s{T}, s{T}, 4096")
        if not NOCLR: vm.issue("clr", f"buffer_store_dwordx4 v[112:115], v11, {srd(SWS)}, s{T} offen sc1")
        e(f"""
        v_lshlrev_b32 v12, 4, v10          ; w*16
        s_lshl_b32 s{T}, s2, 6
        s_add_u32 s{T}, s{T}, {ML}
        s_mov_b64 exec, 1
        """)
        if not NOCLR: vm.issue("clr", f"buffer_store_dwordx4 v[112:115], v12, {srd(SWS)}, s{T} offen sc1")
        e("s_mov_b64 exec, -1")

    if CLRPOS == "early": clears()
    e(f"s_lshl_b32 s{T}, s0, 15")
    if cfg.get("xst2"): stamp()
    mk_srd(SWD, 20, T, 0)
    e(f"""
    s_cmp_lt_u32 s0, 224
    s_cselect_b32 s{SWD+2}, 0x8000, 0
    """)
    WDR = 224
    def load_wd(WDR=WDR, voff=57):
        e(f"s_mov_b32 s{T2}, 0")
        for i in range(16):
            vm.issue("wd", f"buffer_load_dwordx2 v[{WDR+2*i}:{WDR+2*i+1}], v{voff}, {srd(SWD)}, s{T2} offen {NT}")
            if i < 15: e(f"s_add_u32 s{T2}, s{T2}, 2048")
    if cfg.get("xmap", False):
        e(f"""
    s_and_b32 s99, s2, 7
    s_lshl_b32 s99, s99, 5
    s_lshr_b32 s{T}, s2, 3
    s_add_u32 s99, s99, s{T}
    """)
    else:
        e("s_mov_b32 s99, s2")
    ILV = cfg.get("ilv", False)
    TSTR = (1 << 20) if ILV else 8192
    if ILV:
        e(f"s_lshr_b32 s{T}, s99, 5")
        e(f"s_lshl_b32 s{T}, s{T}, 23")
        e(f"s_and_b32 s{T2}, s99, 31")
        e(f"s_lshl_b32 s{T2}, s{T2}, 15")
        e(f"s_add_u32 s{T}, s{T}, s{T2}")
    else:
        e(f"s_lshl_b32 s{T}, s99, 18")
    kvsz = 0 if cfg.get("nokv") else (0x708000 if ILV else 0x40000)
    mk_srd(SK, 6, T, kvsz)
    mk_srd(SV, 8, T, kvsz)
    e(f"""
    s_lshr_b32 s{T}, s2, 3
    s_lshl_b32 s{T}, s{T}, 7
    s_bfe_u32 s{T2}, s2, 0x20001       ; (dq>>1)
    s_lshl_b32 s{T2}, s{T2}, 5
    s_add_u32 s{T}, s{T}, s{T2}
    s_and_b32 s{T2}, s2, 1
    s_lshl_b32 s{T2}, s{T2}, 2
    s_add_u32 s{T}, s{T}, s{T2}
    s_lshl_b32 s{T}, s{T}, 11
    """)
    mk_srd(SWO, 12, T, 28*2048)
    mk_srd(SOUT, 22, None, 4096)
    mk_srd(SDBG, 24, None, 256)
    PF_LIST = cfg.get("tlbpf", "")
    if PF_LIST:
        e("v_mov_b32 v116, 0")
        e("s_mov_b64 exec, 1")
        for ch in PF_LIST:
            reg, sr = {"k": (6, SK), "v": (8, SV), "o": (116, SWO), "d": (116, SWD), "y": (116, SOUT), "g": (116, SDBG)}[ch]
            vm.issue("pf", f"buffer_load_dword v117, v{reg}, {srd(sr)}, 0 offen")
        e("s_mov_b64 exec, -1")
    e(f"""
    s_lshr_b32 s{S_B}, s99, 7
    s_bfe_u32 s{S_HKV}, s99, 0x20005
    s_and_b32 s{S_S}, s99, 31
    s_mov_b32 s{S_CB}, s97           ; cg
    s_mov_b32 s8, s96                 ; rq
    s_and_b32 s{T}, s2, 127
    s_lshl_b32 s{T}, s{T}, 4
    s_lshr_b32 s{T2}, s2, 7
    s_lshl_b32 s{T2}, s{T2}, 11
    s_add_u32 s9, s{T}, s{T2}
    """)
    if cfg.get("xst"): stamp()
    vm.wait("x")
    if cfg.get("xst"): stamp()
    XS = 64
    for b in range(2):
        for q in range(8):
            e(f"v_lshlrev_b32 v{XS+16*b+2*q}, 16, v{16+8*b+q}")
            e(f"v_and_b32 v{XS+16*b+2*q+1}, s{S_MASK}, v{16+8*b+q}")
    def wave_red(regs, op="add", tmp=104, shifts=(8, 4, 2, 1)):
        o = {"add": "v_add_f32", "max": "v_max_f32"}[op]
        for sh in shifts:
            for r in regs: e(f"{o}_dpp v{r}, v{r}, v{r} row_ror:{sh} row_mask:0xf bank_mask:0xf")
        for sw in ("v_permlane16_swap_b32", "v_permlane32_swap_b32"):
            for k, r in enumerate(regs): e(f"v_mov_b32 v{tmp+k}, v{r}")
            for k, r in enumerate(regs): e(f"{sw} v{r}, v{tmp+k}")
            for k, r in enumerate(regs): e(f"{o} v{r}, v{r}, v{tmp+k}")
    for b in range(2):
        e(f"v_add_f32 v{96+b}, v{XS+16*b}, v{XS+16*b+1}")
    for q in range(2, 16):
        for b in range(2):
            e(f"v_add_f32 v{96+b}, v{96+b}, v{XS+16*b+q}")
    wave_red([96, 97])
    def rbf(dst, src):
        e(f"v_cvt_pk_bf16_f32 v{dst}, v{src}, v{src}")
        e(f"v_and_b32 v{dst}, s{S_MASK}, v{dst}")
    for b in range(2): e(f"v_mul_f32 v{96+b}, 0x3a800000, v{96+b}")
    for q in range(16):
        for b in range(2):
            e(f"v_sub_f32 v{XS+16*b+q}, v{XS+16*b+q}, v{96+b}")
    for b in range(2): e(f"v_mul_f32 v{98+b}, v{XS+16*b}, v{XS+16*b}")
    for q in range(1, 16):
        for b in range(2):
            e(f"v_fmac_f32 v{98+b}, v{XS+16*b+q}, v{XS+16*b+q}")
    wave_red([98, 99])
    for b in range(2):
        e(f"v_mul_f32 v{98+b}, 0x3a800000, v{98+b}")
        rbf(98+b, 98+b)
        e(f"v_add_f32 v{98+b}, 0x3727c5ac, v{98+b}")
        rbf(98+b, 98+b)
        e(f"v_sqrt_f32 v{98+b}, v{98+b}")
        rbf(98+b, 98+b)
        rbf(96+b, 96+b)
        e(f"v_rcp_f32 v{100+b}, v{98+b}")
    for b in range(2):
        e(f"v_lshlrev_b32 v{64+b}, 16, v{32+b}")
    for b in range(2):
        e(f"v_sub_f32 v{64+b}, v{64+b}, v{96+b}")
    for b in range(2): rbf(64+b, 64+b)
    for b in range(2):
        e(f"v_mul_f32 v102, v{64+b}, v{100+b}")
        e(f"v_fma_f32 v103, -v102, v{98+b}, v{64+b}")
        e(f"v_fma_f32 v{64+b}, v103, v{100+b}, v102")
    for b in range(2): rbf(64+b, 64+b)
    e(f"""
    v_lshlrev_b32 v11, 9, v10
    v_lshlrev_b32 v12, 3, v1
    v_add_u32 v12, v12, v11             ; w*512 + l*8
    ds_write_b64 v12, v[64:65] offset:{L_XN}
    v_lshrrev_b32 v12, 3, v1
    v_lshlrev_b32 v12, 3, v12
    v_add_u32 v12, v12, v11             ; w*512 + (l>>3)*8
    s_waitcnt lgkmcnt(0)
    """)
    for i in range(8):
        e(f"ds_read_b64 v[{40+2*i}:{41+2*i}], v12 offset:{L_XN+64*i}")
    e(f"""
    v_and_b32 v14, 7, v1
    v_lshlrev_b32 v14, 5, v14
    v_lshrrev_b32 v12, 4, v1
    v_lshlrev_b32 v12, 3, v12
    v_add_u32 v14, v14, v12
    v_add_u32 v14, v14, v11
    s_waitcnt lgkmcnt(0)
    """)
    stamp()
    ACC = 96
    def gemv(wbase, m):
        for i in range(8):
            for q in range(4):
                t = 112 + 2*((i*4+q) & 1)
                w = wbase + 4*i + q
                e(f"v_lshlrev_b32 v{t}, 16, v{w}")
                e(f"v_and_b32 v{t+1}, s{S_MASK}, v{w}")
                for p in range(2):
                    a = ACC + 2*(2*q+p)
                    sel = "op_sel:[0,0,0] op_sel_hi:[0,1,1]" if p == 0 else "op_sel:[1,0,0] op_sel_hi:[1,1,1]"
                    if i == 0:
                        sel2 = "op_sel:[0,0] op_sel_hi:[0,1]" if p == 0 else "op_sel:[1,0] op_sel_hi:[1,1]"
                        e(f"v_pk_mul_f32 v[{a}:{a+1}], v[{t}:{t+1}], v[40:41] {sel2}")
                    else:
                        e(f"v_pk_fma_f32 v[{a}:{a+1}], v[{t}:{t+1}], v[{40+2*i}:{41+2*i}], v[{a}:{a+1}] {sel}")
        A = lambda c, b: ACC + 2*c + b
        for c in range(4):
            for b in range(2): e(f"v_permlane32_swap_b32 v{A(c,b)}, v{A(c+4,b)}")
        for c in range(4):
            e(f"v_pk_add_f32 v[{A(c,0)}:{A(c,1)}], v[{A(c,0)}:{A(c,1)}], v[{A(c+4,0)}:{A(c+4,1)}]")
        for c in range(2):
            for b in range(2): e(f"v_permlane16_swap_b32 v{A(c,b)}, v{A(c+2,b)}")
        for c in range(2):
            e(f"v_pk_add_f32 v[{A(c,0)}:{A(c,1)}], v[{A(c,0)}:{A(c,1)}], v[{A(c+2,0)}:{A(c+2,1)}]")
        for k in range(4): e(f"v_add_f32_dpp v{ACC+k}, v{ACC+k}, v{ACC+k} row_ror:8 row_mask:0xf bank_mask:0xf")
        e(f"v_swap_b32 v{ACC+1}, v{ACC+2}")
        e("s_mov_b32 exec_lo, 0x00ff00ff")
        e("s_mov_b32 exec_hi, 0x00ff00ff")
        e(f"ds_write_b64 v14, v[{ACC}:{ACC+1}] offset:{L_RED+m*2048}")
        e(f"ds_write_b64 v14, v[{ACC+2}:{ACC+3}] offset:{L_RED+m*2048+256}")
        e("s_mov_b64 exec, -1")
    def load_k(t):
        e(f"s_mov_b32 s{T2}, {t*TSTR}")
        for u in range(2):
            for j in range(4):
                a = 32*t + 16*u + 4*j
                vm.issue(f"k{t}", f"buffer_load_dwordx4 a[{a}:{a+3}], v{6+u}, {srd(SK)}, s{T2} offen offset:{j*64} {NT}")
    def load_v(t):
        e(f"s_mov_b32 s{T2}, {t*TSTR}")
        for i in range(8):
            r = 128 + 32*(t & 3) + 4*i
            vm.issue(f"v{t}", f"buffer_load_dwordx4 v[{r}:{r+3}], v{8+(i>>2)}, {srd(SV)}, s{T2} offen offset:{(i&3)*1024} {NT}")
    WINV = [WIN]
    def pace(next_n):
        vm.wait_leave(max(WINV[0] - next_n, 0))
    if CLRPOS == "ln": clears()
    load_k(0)
    vm.wait("wq")
    stamp()
    gemv(128, 0)
    if CLRPOS == "q": clears()
    load_k(1)
    vm.wait("wg")
    gemv(160, 1)
    if CLRPOS == "g": clears()
    LATE = cfg.get("late", True)
    if not LATE: load_wd()
    vm.wait("wu")
    stamp()
    gemv(192, 2)
    e("s_waitcnt lgkmcnt(0)")
    e("s_barrier")
    e(f"""
    s_cmp_lg_u32 s3, 0
    s_cbranch_scc1 L_nopub
    v_lshrrev_b32 v11, 5, v1
    v_lshlrev_b32 v11, 11, v11          ; m*2048
    v_bfe_u32 v12, v1, 4, 1
    v_lshlrev_b32 v13, 8, v12           ; b*256
    v_add_u32 v11, v11, v13
    v_and_b32 v14, 15, v1
    v_lshlrev_b32 v15, 4, v14           ; c4*16
    v_add_u32 v11, v11, v15
    v_and_b32 v58, 0x7ff, v11
    """)
    for w in range(4):
        e(f"ds_read_b128 v[{96+4*w}:{99+4*w}], v11 offset:{L_RED+w*512}")
    for w in range(4):
        e(f"ds_read_b128 v[{64+4*w}:{67+4*w}], v58 offset:{L_RED+4096+w*512}")
    e(f"""
    v_lshlrev_b32 v59, 14, v12
    v_add_u32 v59, v59, v15
    s_lshl_b32 s{T}, s8, 15
    s_lshl_b32 s{T2}, s{S_CB}, 8
    s_add_u32 s{T}, s{T}, s{T2}
    v_add_u32 v59, s{T}, v59
    v_lshrrev_b32 v60, 2, v14
    v_lshlrev_b32 v60, 10, v60
    v_lshlrev_b32 v61, 6, v12
    v_add_u32 v60, v60, v61
    v_and_b32 v61, 3, v14
    v_lshlrev_b32 v61, 4, v61
    v_add_u32 v60, v60, v61
    s_lshl_b32 s{T}, s{S_CB}, 12
    s_lshl_b32 s{T2}, s8, 8
    s_add_u32 s{T}, s{T}, s{T2}
    s_add_u32 s{T}, s{T}, {GU}
    s_xor_b32 s{T}, s{T}, {XG << 12}
    v_add_u32 v60, s{T}, v60
    v_cmp_gt_u32 vcc, 32, v1
    v_cndmask_b32 v59, v60, v59, vcc
    v_xor_b32 v60, {(XG ^ XU) << 12}, v60
    v_add_u32 v60, 128, v60             ; u address
    s_waitcnt lgkmcnt(4)
    v_pk_add_f32 v[96:97], v[96:97], v[100:101]
    v_pk_add_f32 v[98:99], v[98:99], v[102:103]
    v_pk_add_f32 v[104:105], v[104:105], v[108:109]
    v_pk_add_f32 v[106:107], v[106:107], v[110:111]
    v_pk_add_f32 v[96:97], v[96:97], v[104:105]
    v_pk_add_f32 v[98:99], v[98:99], v[106:107]
    """)
    vm.issue("pub", f"buffer_store_dwordx4 v[96:99], v59, {srd(SWS)}, 0 offen sc1", definite=False)
    e(f"""
    s_waitcnt lgkmcnt(0)
    v_pk_add_f32 v[64:65], v[64:65], v[68:69]
    v_pk_add_f32 v[66:67], v[66:67], v[70:71]
    v_pk_add_f32 v[72:73], v[72:73], v[76:77]
    v_pk_add_f32 v[74:75], v[74:75], v[78:79]
    v_pk_add_f32 v[64:65], v[64:65], v[72:73]
    v_pk_add_f32 v[66:67], v[66:67], v[74:75]
    s_mov_b32 exec_hi, 0
    """)
    vm.issue("pub", f"buffer_store_dwordx4 v[64:67], v60, {srd(SWS)}, 0 offen sc1", definite=False)
    e("s_mov_b64 exec, -1")
    e("L_nopub:")
    load_k(2)
    stamp()
    vm.wait_leave(8)
    assert all(t in ("k2",) for t, d in vm.ops), vm.ops
    e("s_barrier")
    e("s_cmp_lg_u32 s3, 0")
    e("s_cbranch_scc1 L_nosig")
    e(f"""
    v_mov_b32 v11, 1
    s_and_b32 s{T}, s2, 3
    s_lshl_b32 s{T}, s{T}, 6
    v_mov_b32 v12, s{T}
    s_mov_b64 exec, 1
    """)
    vm.issue("sig", f"buffer_atomic_add v11, v12, {srd(SDBG)}, 0 offen sc1", definite=False)
    e("s_mov_b64 exec, -1")
    e("L_nosig:")
    load_k(3)
    POLLK = cfg.get("pollk", 6)
    for t in range(4, POLLK):
        pace(8); load_k(t)
    e(f"""
    s_cmp_lg_u32 s3, 0
    s_cbranch_scc1 L_nopoll1
    v_and_b32 v40, 3, v1
    v_lshlrev_b32 v40, 6, v40
    """)
    vm.issue("poll", f"buffer_load_dword v41, v40, {srd(SDBG)}, 0 offen sc1", definite=False)
    e("L_nopoll1:")
    pace(8); load_k(POLLK)
    e("s_cmp_lg_u32 s3, 0")
    e("s_cbranch_scc1 L_qok")
    e(f"s_waitcnt vmcnt({vm.count_after('poll')})")
    e(f"""
    s_mov_b32 s{S_SPIN}, 0
L_qspin:
    v_cmp_eq_u32 vcc, 64, v41
    s_nop 1
    s_cmp_eq_u64 vcc, -1
    s_cbranch_scc1 L_qok
    s_add_u32 s{S_SPIN}, s{S_SPIN}, 1
    s_cmp_gt_u32 s{S_SPIN}, {SPIN}
    s_cbranch_scc1 L_end
    buffer_load_dword v41, v40, {srd(SDBG)}, 0 offen sc1
    s_waitcnt vmcnt(0)
    s_branch L_qspin
L_qok:
    s_barrier
    v_lshlrev_b32 v40, 4, v0
    s_lshl_b32 s{T}, s{S_B}, 14
    s_lshl_b32 s{T2}, s{S_HKV}, 12
    s_add_u32 s{T}, s{T}, s{T2}
    """)
    for rq in range(4):
        vm.issue("q", f"buffer_load_dwordx4 v[{16+4*rq}:{19+4*rq}], v40, {srd(SWS)}, s{T} offen sc1")
        if rq < 3: e(f"s_add_u32 s{T}, s{T}, 32768")
    e(f"""
    v_lshlrev_b32 v41, 4, v1
    s_lshl_b32 s{T}, s0, 10
    s_add_u32 s{T}, s{T}, {GU}
    """)
    vm.issue("q", f"buffer_load_dwordx4 v[32:35], v41, {srd(SWS)}, s{T} offen sc1")
    for t in range(POLLK+1, 8):
        load_k(t)
    e(f"""
    v_lshrrev_b32 v42, 5, v0
    v_lshlrev_b32 v42, 4, v42           ; (t>>5)*16
    v_lshlrev_b32 v43, 3, v0
    v_add_u32 v42, v42, v43
    v_and_b32 v43, 7, v1
    v_mul_u32_u24 v43, 272, v43
    v_lshrrev_b32 v44, 4, v1
    v_lshlrev_b32 v44, 4, v44
    v_add_u32 v43, v43, v44
    v_and_b32 v44, 3, v1
    v_lshlrev_b32 v44, 5, v44
    v_lshrrev_b32 v45, 4, v1
    v_lshlrev_b32 v45, 3, v45
    v_add_u32 v44, v44, v45
    v_bfe_u32 v45, v1, 2, 1
    v_lshlrev_b32 v45, 2, v45
    v_add_u32 v44, v44, v45
    """)
    vm.wait("q")
    stamp()
    e(f"""
    v_pk_add_f32 v[16:17], v[16:17], v[20:21]
    v_pk_add_f32 v[18:19], v[18:19], v[22:23]
    v_pk_add_f32 v[24:25], v[24:25], v[28:29]
    v_pk_add_f32 v[26:27], v[26:27], v[30:31]
    v_pk_add_f32 v[16:17], v[16:17], v[24:25]
    v_pk_add_f32 v[18:19], v[18:19], v[26:27]
    v_cvt_pk_bf16_f32 v16, v16, v17
    v_cvt_pk_bf16_f32 v17, v18, v19
    ds_write_b64 v42, v[16:17] offset:{L_QS}
    v_permlane32_swap_b32 v32, v34
    v_permlane32_swap_b32 v33, v35
    v_pk_add_f32 v[32:33], v[32:33], v[34:35]
    v_permlane16_swap_b32 v32, v33
    v_add_f32 v96, v32, v33
    """)
    rbf(96, 96)
    e(f"""
    v_mov_b32_dpp v100, v96 row_ror:8 row_mask:0xf bank_mask:0xf     ; u
    v_mul_f32 v98, 0xbfb8aa3b, v96      ; -g*log2e
    v_exp_f32 v98, v98
    v_add_f32 v98, 1.0, v98
    v_rcp_f32 v99, v98
    v_mul_f32 v101, v96, v99
    v_fma_f32 v102, -v101, v98, v96
    v_fma_f32 v102, v102, v99, v101
    v_cmp_eq_f32 vcc, 0x7f800000, v98
    v_cndmask_b32 v101, v102, v101, vcc
    """)
    rbf(101, 101)
    e("v_mul_f32 v101, v101, v100")
    rbf(101, 101)
    e("s_mov_b32 exec_lo, 0x00ff00ff")
    e("s_mov_b32 exec_hi, 0x00ff00ff")
    e(f"ds_write_b32 v44, v101 offset:{L_HB}")
    e("s_mov_b64 exec, -1")
    e("v_mov_b32 v11, 0")
    e("s_waitcnt lgkmcnt(0)")
    e("s_barrier")
    for j in range(4):
        e(f"ds_read_b128 v[{16+4*j}:{19+4*j}], v43 offset:{L_QS+64*j}")
    if not LATE:
        for k in range(8):
            e(f"ds_read_b128 v[{64+4*k}:{67+4*k}], v11 offset:{L_HB+16*k}")
    load_v(0)
    if not LATE: vm.wait("wd")
    e("s_waitcnt lgkmcnt(0)")
    F0, F1 = 2, 12
    def rowfma(wreg_pairs, opair, first):
        for b, F in ((0, F0), (1, F1)):
            for hlf in range(2):
                wp = wreg_pairs[hlf]; a = F + 2*hlf
                if first:
                    e(f"v_pk_mul_f32 v[{a}:{a+1}], v[{wp}:{wp+1}], v[{opair}:{opair+1}] op_sel:[0,{b}] op_sel_hi:[1,{b}]")
                else:
                    e(f"v_pk_fma_f32 v[{a}:{a+1}], v[{wp}:{wp+1}], v[{opair}:{opair+1}], v[{a}:{a+1}] op_sel:[0,{b},0] op_sel_hi:[1,{b},1]")
    def ffn_down(wdr, tb):
        for i in range(16):
            t = tb + 4*(i & 1)
            for d in range(2):
                e(f"v_lshlrev_b32 v{t+2*d}, 16, v{wdr+2*i+d}")
                e(f"v_and_b32 v{t+2*d+1}, s{S_MASK}, v{wdr+2*i+d}")
            rowfma((t, t+2), 64+2*i, i == 0)
    if not LATE: ffn_down(WDR, 96)
    pace(8); load_v(1)
    SCALE = 0x3db504f3
    e(f"s_mov_b32 s10, {hex(SCALE)}")
    e(f"s_mov_b32 s11, {hex(SCALE)}")
    def qk(t):
        for j in range(4):
            for u in range(2):
                a = 32*t + 16*u + 4*j; s = 64 + 8*t + 4*u
                c = "0" if j == 0 else f"v[{s}:{s+3}]"
                e(f"v_mfma_f32_16x16x32_bf16 v[{s}:{s+3}], a[{a}:{a+3}], v[{16+4*j}:{19+4*j}], {c}")
    def rnd(t):
        for z in range(4):
            r = 64 + 8*t + 2*z; tmp = 40 + (z & 1)
            if MIMIC:
                e(f"v_cvt_pk_bf16_f32 v{tmp}, v{r}, v{r+1}")
                e(f"v_lshlrev_b32 v{r}, 16, v{tmp}")
                e(f"v_and_b32 v{r+1}, s{S_MASK}, v{tmp}")
                e(f"v_pk_mul_f32 v[{r}:{r+1}], v[{r}:{r+1}], s[10:11]")
                e(f"v_cvt_pk_bf16_f32 v{tmp}, v{r}, v{r+1}")
                e(f"v_lshlrev_b32 v{r}, 16, v{tmp}")
                e(f"v_and_b32 v{r+1}, s{S_MASK}, v{tmp}")
            else:
                e(f"v_pk_mul_f32 v[{r}:{r+1}], v[{r}:{r+1}], s[10:11]")
    vm.wait("k7")
    qk(0); qk(1); rnd(0); qk(2); rnd(1); qk(3); rnd(2)
    load_v(2)
    qk(4); rnd(3); qk(5); rnd(4); qk(6); rnd(5); qk(7); rnd(6)
    load_v(3)
    rnd(7)
    stamp()
    e("v_max3_f32 v40, v64, v65, v66")
    e("v_max3_f32 v41, v67, v68, v69")
    k = 70
    while k + 3 < 128:
        e(f"v_max3_f32 v40, v40, v{k}, v{k+1}")
        e(f"v_max3_f32 v41, v41, v{k+2}, v{k+3}")
        k += 4
    e(f"v_max3_f32 v40, v40, v{k}, v{k+1}")
    e("v_max_f32 v40, v40, v41")
    for sw in ("v_permlane16_swap_b32", "v_permlane32_swap_b32"):
        e("v_mov_b32 v41, v40")
        e(f"{sw} v40, v41")
        e("v_max_f32 v40, v40, v41")
    e(f"""
    v_and_b32 v42, 15, v1
    v_lshlrev_b32 v42, 2, v42           ; n*4
    v_lshlrev_b32 v43, 6, v10
    v_add_u32 v43, v43, v42             ; w*64+n*4
    ds_write_b32 v43, v40 offset:{L_MX}
    s_waitcnt lgkmcnt(0)
    s_barrier
    ds_read_b32 v44, v42 offset:{L_MX}
    ds_read_b32 v45, v42 offset:{L_MX+64}
    ds_read_b32 v46, v42 offset:{L_MX+128}
    ds_read_b32 v47, v42 offset:{L_MX+192}
    s_mov_b32 s10, 0x3fb8aa3b
    s_waitcnt lgkmcnt(0)
    v_max3_f32 v44, v44, v45, v46
    v_max_f32 v44, v44, v47
    v_mul_f32 v45, s10, v44             ; M*log2e
    """)
    for r in range(64, 128):
        e(f"v_fma_f32 v{r}, v{r}, s10, -v45")
    for r in range(64, 128):
        e(f"v_exp_f32 v{r}, v{r}")
    e("v_add_f32 v46, v64, v65")
    e("v_add_f32 v47, v66, v67")
    for r in range(68, 128, 2):
        e(f"v_add_f32 v46, v46, v{r}")
        e(f"v_add_f32 v47, v47, v{r+1}")
    e("v_add_f32 v46, v46, v47")
    for z in range(32):
        e(f"v_cvt_pk_bf16_f32 v{64+z}, v{64+2*z}, v{65+2*z}")
    for sw in ("v_permlane16_swap_b32", "v_permlane32_swap_b32"):
        e("v_mov_b32 v47, v46")
        e(f"{sw} v46, v47")
        e("v_add_f32 v46, v46, v47")
    e(f"ds_write_b32 v43, v46 offset:{L_LS}")
    e(f"""
    s_waitcnt lgkmcnt(0)
    s_barrier
    s_cmp_lg_u32 s3, 0
    s_cbranch_scc1 L_noml
    ds_read_b32 v46, v42 offset:{L_LS}
    ds_read_b32 v47, v42 offset:{L_LS+64}
    ds_read_b32 v48, v42 offset:{L_LS+128}
    ds_read_b32 v49, v42 offset:{L_LS+192}
    v_lshlrev_b32 v50, 7, v42           ; n*512
    s_lshl_b32 s{T}, s{S_HKV}, 12       ; hkv*8*512
    s_lshl_b32 s{T2}, s{S_B}, 8
    s_add_u32 s{T}, s{T}, s{T2}
    s_lshl_b32 s{T2}, s{S_S}, 3
    s_add_u32 s{T}, s{T}, s{T2}
    s_add_u32 s{T}, s{T}, {ML}
    s_waitcnt lgkmcnt(0)
    v_add_f32 v46, v46, v47
    v_add_f32 v48, v48, v49
    v_add_f32 v45, v46, v48
    s_mov_b64 exec, 0xff
    """)
    vm.issue("mlst", f"buffer_store_dwordx2 v[44:45], v50, {srd(SWS)}, s{T} offen sc1", definite=False)
    e("s_mov_b64 exec, -1")
    e("L_noml:")
    stamp()
    def pv(t):
        slot = 128 + 32*(t & 3)
        for j in range(8):
            q, p = j >> 1, j & 1
            T4 = 16 + 4*(j & 3)
            for z in range(4):
                e(f"v_perm_b32 v{T4+z}, v{slot+4*(2*z+1)+q}, v{slot+4*(2*z)+q}, s{S_SEL1 if p else S_SEL0}")
            c = "0" if t == 0 else f"v[{32+4*j}:{35+4*j}]"
            e(f"v_mfma_f32_16x16x32_bf16 v[{32+4*j}:{35+4*j}], v[{T4}:{T4+3}], v[{64+4*t}:{67+4*t}], {c}")
    WOR = 96
    e("v_lshlrev_b32 v11, 3, v0")
    WINV[0] = cfg.get("winv", WIN)
    vm.wait("v0"); pv(0)
    pace(8); load_v(4)
    def load_wo(WOR):
        for i in range(16):
            off = (8*(i & 3) + (i >> 2))*2048
            e(f"s_mov_b32 s{T2}, {off}")
            vm.issue("wo", f"buffer_load_dwordx2 v[{WOR+2*i}:{WOR+2*i+1}], v11, {srd(SWO)}, s{T2} offen {NT}")
    if not LATE:
        pace(8)
        load_wo(WOR)
    vm.wait("v1"); pv(1)
    pace(8); load_v(5)
    vm.wait("v2"); pv(2)
    e(f"""
    v_lshrrev_b32 v6, 1, v1
    s_and_b32 s8, s2, 31
    v_xor_b32 v6, s8, v6
    v_lshlrev_b32 v6, 3, v6
    v_lshrrev_b32 v7, 1, v10
    v_lshlrev_b32 v7, 8, v7
    v_add_u32 v6, v6, v7
    s_lshr_b32 s8, s2, 3
    s_lshl_b32 s8, s8, 9
    s_add_u32 s8, s8, {ML}
    """)
    pace(8)
    vm.issue("ml", f"buffer_load_dwordx2 a[0:1], v6, {srd(SWS)}, s8 offen sc1")
    load_v(6)
    vm.wait("v3"); pv(3)
    pace(8); load_v(7)
    vm.wait("v4"); pv(4)
    def unpack_wo(i0, src=WOR, dst=128):
        for i in range(i0, i0+8):
            for d in range(2):
                e(f"v_lshlrev_b32 v{dst+4*i+2*d}, 16, v{src+2*i+d}")
                e(f"v_and_b32 v{dst+4*i+2*d+1}, s{S_MASK}, v{src+2*i+d}")
    if LATE:
        load_wd(128, 11)
        vm.wait("v5"); pv(5)
        load_wo(160)
        WOU = 192
    else:
        vm.wait("wo")
        unpack_wo(0)
        vm.wait("v5"); pv(5)
        unpack_wo(8)
        WOU = 128
    vm.wait("ml")
    e(f"""
    v_accvgpr_read_b32 v96, a0
    v_accvgpr_read_b32 v97, a1
    s_mov_b32 s{S_SPIN}, 0
L_mlspin:
    v_max_u32 v98, v96, v97
    v_cmp_eq_u32 vcc, -1, v98
    s_nop 1
    s_cmp_eq_u64 vcc, 0
    s_cbranch_scc1 L_mlok
    s_add_u32 s{S_SPIN}, s{S_SPIN}, 1
    s_cmp_gt_u32 s{S_SPIN}, {SPIN}
    s_cbranch_scc1 L_end
    buffer_load_dwordx2 v[96:97], v6, {srd(SWS)}, s8 offen sc1
    s_waitcnt vmcnt(0)
    s_branch L_mlspin
L_mlok:
    v_mov_b32 v98, v96
    """)
    wave_red([98], op="max", tmp=104, shifts=(8, 4, 2))
    e("v_sub_f32 v98, v96, v98")
    e("v_mul_f32 v98, 0x3fb8aa3b, v98")
    e("v_exp_f32 v98, v98")
    e("v_mul_f32 v99, v98, v97")
    wave_red([99], op="add", tmp=104, shifts=(8, 4, 2))
    e("""
    v_rcp_f32 v100, v99
    v_mul_f32 v101, v98, v100
    v_fma_f32 v102, -v101, v99, v98
    v_fma_f32 v100, v102, v100, v101    ; f = e_s / L
    """)
    e(f"""
    v_and_b32 v96, 15, v1
    v_mul_u32_u24 v96, 528, v96
    v_lshrrev_b32 v97, 4, v1
    v_lshlrev_b32 v97, 7, v97
    v_add_u32 v96, v96, v97
    v_mul_u32_u24 v97, {OBW}, v10
    v_add_u32 v96, v96, v97
    v_lshrrev_b32 v98, 5, v0
    v_mul_u32_u24 v97, 528, v98
    v_and_b32 v99, 31, v0
    v_lshlrev_b32 v101, 4, v99
    v_add_u32 v97, v97, v101
    v_lshlrev_b32 v98, 15, v98
    v_lshrrev_b32 v101, 2, v99
    v_lshlrev_b32 v101, 12, v101
    v_add_u32 v98, v98, v101
    v_and_b32 v101, 3, v99
    v_lshlrev_b32 v101, 4, v101
    v_add_u32 v98, v98, v101
    v_bfe_u32 v101, v0, 2, 5
    v_xor_b32 v101, s{S_S}, v101
    v_lshlrev_b32 v101, 6, v101
    v_add_u32 v98, v98, v101
    s_lshl_b32 s10, s{S_HKV}, 18
    s_lshl_b32 s{T}, s{S_B}, 11
    s_add_u32 s10, s10, s{T}
    s_add_u32 s10, s10, {PO}
    v_lshrrev_b32 v99, 1, v10
    v_lshlrev_b32 v99, 11, v99
    v_lshrrev_b32 v101, 1, v1
    v_lshlrev_b32 v101, 6, v101
    v_add_u32 v99, v99, v101
    v_and_b32 v101, 1, v10
    v_lshlrev_b32 v101, 5, v101
    v_add_u32 v99, v99, v101
    v_and_b32 v101, 1, v1
    v_lshlrev_b32 v101, 4, v101
    v_add_u32 v99, v99, v101
    s_lshl_b32 s11, s2, 12
    s_add_u32 s11, s11, {PO}
    v_and_b32 v101, 1, v10
    v_lshlrev_b32 v101, 6, v101
    v_and_b32 v102, 1, v1
    v_lshlrev_b32 v102, 5, v102
    v_add_u32 v101, v101, v102
    v_lshrrev_b32 v102, 4, v1
    v_lshlrev_b32 v102, 3, v102
    v_add_u32 v101, v101, v102
    v_lshrrev_b32 v102, 1, v10
    v_lshlrev_b32 v102, 2, v102
    v_add_u32 v101, v101, v102
    v_mov_b32 v102, 0
    v_lshrrev_b32 v103, 1, v0
    v_xor_b32 v11, s2, v103
    v_lshlrev_b32 v103, 13, v103
    v_and_b32 v104, 1, v0
    v_lshlrev_b32 v104, 4, v104
    v_add_u32 v103, v103, v104
    v_xor_b32 v109, 0x80, v11
    v_lshlrev_b32 v109, 5, v109
    v_add_u32 v109, v109, v103
    v_lshlrev_b32 v11, 5, v11
    v_add_u32 v103, v103, v11
    s_mov_b32 s96, {PF}
    s_mov_b32 s97, {PF+0x100000}
    v_lshlrev_b32 v104, 5, v0
    s_lshl_b32 s98, s2, 13
    s_add_u32 s98, s98, {PF}
    v_lshlrev_b32 v105, 5, v10
    v_lshrrev_b32 v106, 4, v1
    v_lshlrev_b32 v106, 3, v106
    v_add_u32 v105, v105, v106
    v_lshlrev_b32 v106, 3, v1
    v_lshlrev_b32 v107, 2, v1
    v_and_b32 v107, 12, v107
    """)
    vm.issue("res", f"buffer_load_dword v108, v107, {srd(SX)}, s9 offen")
    vm.wait("v6"); pv(6)
    vm.wait("v7")
    if not LATE: vm.wait("res")
    stamp()
    pv(7)
    if not LATE:
        e("v_lshlrev_b32 v110, 16, v108")
        e(f"v_and_b32 v111, s{S_MASK}, v108")
    e("s_mov_b32 exec_lo, 0x00ff00ff")
    e("s_mov_b32 exec_hi, 0x00ff00ff")
    for j in range(8):
        e(f"ds_write_b128 v96, v[{32+4*j}:{35+4*j}] offset:{L_OB+16*j}")
    e("s_mov_b64 exec, -1")
    e("s_waitcnt lgkmcnt(0)")
    e("s_barrier")
    for w in range(4):
        e(f"ds_read_b128 v[{16+4*w}:{19+4*w}], v97 offset:{L_OB+w*OBW}")
    e("s_waitcnt lgkmcnt(2)")
    e("v_pk_add_f32 v[16:17], v[16:17], v[20:21]")
    e("v_pk_add_f32 v[18:19], v[18:19], v[22:23]")
    e("s_waitcnt lgkmcnt(0)")
    e("v_pk_add_f32 v[24:25], v[24:25], v[28:29]")
    e("v_pk_add_f32 v[26:27], v[26:27], v[30:31]")
    e("v_pk_add_f32 v[16:17], v[16:17], v[24:25]")
    e("v_pk_add_f32 v[18:19], v[18:19], v[26:27]")
    vm.issue("post", f"buffer_store_dwordx4 v[16:19], v98, {srd(SWS)}, s10 offen sc1")
    if cfg.get("tstamps"): stamp()
    if LATE:
        e("v_mov_b32 v16, 0")
        for k in range(8):
            e(f"ds_read_b128 v[{64+4*k}:{67+4*k}], v16 offset:{L_HB+16*k}")
        vm.wait("wd")
        e("s_waitcnt lgkmcnt(0)")
        ffn_down(128, 112)
        vm.issue("poll1", f"buffer_load_dwordx4 v[20:23], v99, {srd(SWS)}, s11 offen sc1")
        wo_idx = [i for i, (t, d) in enumerate(vm.ops) if t == "wo"]
        after = sum(1 for t, d in vm.ops[wo_idx[-1]+1:] if d)
        e(f"s_waitcnt vmcnt({after + 8})")
        unpack_wo(0, 160, 192)
        vm.wait("wo")
        unpack_wo(8, 160, 192)
        vm.wait("res")
        e("v_lshlrev_b32 v110, 16, v108")
        e(f"v_and_b32 v111, s{S_MASK}, v108")
        vm.wait("poll1")
        e(f"""
    s_mov_b32 s{S_SPIN}, 0
    v_max3_u32 v24, v20, v21, v22
    v_max_u32 v24, v24, v23
    v_cmp_eq_u32 vcc, -1, v24
    s_nop 1
    s_cmp_eq_u64 vcc, 0
    s_cbranch_scc1 L_podone
    """)
    if cfg.get("drainA", True): e("s_waitcnt vmcnt(0)")
    MASKP = cfg.get("maskpoll", True)
    tailchk = """
    s_and_b64 exec, exec, vcc
    s_cbranch_execnz {L}
    s_mov_b64 exec, -1
    """ if MASKP else """
    s_nop 1
    s_cmp_eq_u64 vcc, 0
    s_cbranch_scc0 {L}
    """
    e(f"s_mov_b32 s{S_SPIN}, 0")
    if cfg.get("preA"):
        e(f"""
    {exmask(cfg['preA'])}
L_popre:
    buffer_load_dword v20, v99, {srd(SWS)}, s11 offen sc1
    s_add_u32 s{S_SPIN}, s{S_SPIN}, 1
    s_cmp_gt_u32 s{S_SPIN}, {SPIN}
    s_cbranch_scc1 L_end
    s_waitcnt vmcnt(0)
    v_cmp_eq_u32 vcc, -1, v20
    s_and_b64 exec, exec, vcc
    s_cbranch_execnz L_popre
    s_mov_b64 exec, -1
    """)
    e(f"""
L_pospin:
    buffer_load_dwordx4 v[20:23], v99, {srd(SWS)}, s11 offen sc1
    s_add_u32 s{S_SPIN}, s{S_SPIN}, 1
    s_cmp_gt_u32 s{S_SPIN}, {SPIN}
    s_cbranch_scc1 L_end
    s_waitcnt vmcnt(0)
    v_max3_u32 v24, v20, v21, v22
    v_max_u32 v24, v24, v23
    v_cmp_eq_u32 vcc, -1, v24
    """)
    e(tailchk.format(L="L_pospin"))
    e("L_podone:")
    vm.ops = []
    if STAMPS: e(f"s_mov_b32 s24, s{S_SPIN}")
    stamp()
    e("v_pk_mul_f32 v[20:21], v[20:21], v[100:101] op_sel:[0,0] op_sel_hi:[1,0]")
    e("v_pk_mul_f32 v[22:23], v[22:23], v[100:101] op_sel:[0,0] op_sel_hi:[1,0]")
    e("v_permlane32_swap_b32 v20, v22")
    e("v_permlane32_swap_b32 v21, v23")
    e("v_add_f32 v20, v20, v22")
    e("v_add_f32 v21, v21, v23")
    e("v_permlane16_swap_b32 v20, v21")
    e("v_add_f32 v20, v20, v21")
    for sh in (2, 4, 8):
        e(f"v_add_f32_dpp v20, v20, v20 row_ror:{sh} row_mask:0xf bank_mask:0xf")
    rbf(20, 20)
    e("s_mov_b32 exec_lo, 0x00030003")
    e("s_mov_b32 exec_hi, 0x00030003")
    e(f"ds_write_b32 v101, v20 offset:{L_OBC}")
    e("s_mov_b64 exec, -1")
    e("s_waitcnt lgkmcnt(0)")
    e("s_barrier")
    for k in range(8):
        e(f"ds_read_b128 v[{16+4*k}:{19+4*k}], v102 offset:{L_OBC+16*k}")
    for i in range(16):
        if i % 2 == 0: e(f"s_waitcnt lgkmcnt({7 - i//2})")
        rowfma((WOU+4*i, WOU+2+4*i), 16+2*i, False)
    vm.issue("pfst", f"buffer_store_dwordx4 v[{F0}:{F0+3}], v103, {srd(SWS)}, s96 offen sc1")
    vm.issue("pfst", f"buffer_store_dwordx4 v[{F1}:{F1+3}], v109, {srd(SWS)}, s97 offen sc1")
    if cfg.get("tstamps"): stamp()
    if cfg.get("sleepB"): e(f"s_sleep {cfg['sleepB']}")
    if cfg.get("drainB", True): e("s_waitcnt vmcnt(0)")
    e(f"s_mov_b32 s{S_SPIN}, 0")
    if cfg.get("preB"):
        e(f"""
    {exmask(cfg['preB'])}
L_pfpre:
    buffer_load_dword v20, v104, {srd(SWS)}, s98 offen offset:16 sc1
    s_add_u32 s{S_SPIN}, s{S_SPIN}, 1
    s_cmp_gt_u32 s{S_SPIN}, {SPIN}
    s_cbranch_scc1 L_end
    s_waitcnt vmcnt(0)
    v_cmp_eq_u32 vcc, -1, v20
    s_and_b64 exec, exec, vcc
    s_cbranch_execnz L_pfpre
    s_mov_b64 exec, -1
    """)
    e(f"""
L_pfspin:
    buffer_load_dwordx4 v[20:23], v104, {srd(SWS)}, s98 offen sc1
    buffer_load_dwordx4 v[24:27], v104, {srd(SWS)}, s98 offen offset:16 sc1
    s_add_u32 s{S_SPIN}, s{S_SPIN}, 1
    s_cmp_gt_u32 s{S_SPIN}, {SPIN}
    s_cbranch_scc1 L_end
    s_waitcnt vmcnt(0)
    v_max3_u32 v28, v20, v21, v22
    v_max3_u32 v29, v23, v24, v25
    v_max3_u32 v28, v28, v26, v27
    v_max_u32 v28, v28, v29
    v_cmp_eq_u32 vcc, -1, v28
    """)
    e(tailchk.format(L="L_pfspin"))
    vm.ops = []
    if STAMPS: e(f"s_mov_b32 s25, s{S_SPIN}")
    stamp()
    for c in range(4): e(f"v_permlane32_swap_b32 v{20+c}, v{24+c}")
    e("v_pk_add_f32 v[20:21], v[20:21], v[24:25]")
    e("v_pk_add_f32 v[22:23], v[22:23], v[26:27]")
    for c in range(2): e(f"v_permlane16_swap_b32 v{20+c}, v{22+c}")
    e("v_pk_add_f32 v[20:21], v[20:21], v[22:23]")
    for sh in (1, 2, 4, 8):
        for k in range(2): e(f"v_add_f32_dpp v{20+k}, v{20+k}, v{20+k} row_ror:{sh} row_mask:0xf bank_mask:0xf")
    e("s_mov_b32 exec_lo, 0x00010001")
    e("s_mov_b32 exec_hi, 0x00010001")
    e(f"ds_write_b64 v105, v[20:21] offset:{L_FIN}")
    e("s_mov_b64 exec, -1")
    e("s_waitcnt lgkmcnt(0)")
    e("s_barrier")
    e("s_cmp_lg_u32 s3, 0")
    e("s_cbranch_scc1 L_end")
    e("s_mov_b64 exec, 15")
    for w in range(4):
        e(f"ds_read_b64 v[{20+2*w}:{21+2*w}], v106 offset:{L_FIN+32*w}")
    e("s_waitcnt lgkmcnt(0)")
    e("v_pk_add_f32 v[20:21], v[20:21], v[22:23]")
    e("v_pk_add_f32 v[24:25], v[24:25], v[26:27]")
    e("v_pk_add_f32 v[20:21], v[20:21], v[24:25]")
    e("v_pk_add_f32 v[20:21], v[20:21], v[110:111]")
    e("v_cvt_pk_bf16_f32 v20, v20, v21")
    e(f"buffer_store_dword v20, v107, {srd(SOUT)}, s9 offen")
    if STAMPS:
        stamp()
        e("s_mov_b64 exec, 1")
        e(f"s_add_u32 s{SX}, s26, {240<<20}")
        e(f"s_addc_u32 s{SX+1}, s27, 0")
        e(f"s_and_b32 s{SX+1}, s{SX+1}, 0xffff")
        e(f"s_mov_b32 s{SX+2}, 0x10000")
        e(f"s_lshl_b32 s{T}, s2, 7")
        e("v_mov_b32 v2, 0")
        for k in range(stamp_n[0]):
            r = stamp_regs[k]
            e(f"v_mov_b32 v4, s{r}")
            e(f"v_mov_b32 v5, s{r+1}")
            e(f"buffer_store_dwordx2 v[4:5], v2, {srd(SX)}, s{T} offen offset:{8*k}")
            e("s_nop 2")
        e("v_mov_b32 v4, s24")
        e("v_mov_b32 v5, s25")
        e(f"buffer_store_dwordx2 v[4:5], v2, {srd(SX)}, s{T} offen offset:{8*15}")
    e("L_end:")
    e("s_endpgm")
    e(kernel_desc(NAME, 512, 102, 256))
    body, n = hazard.fix(e.text())
    hdr = HEADER_COMMENTS + f"; @launch grid=(256,1,1) block=(256,1,1) lds={LDS}\n" + '.amdgcn_target "amdgcn-amd-amdhsa--gfx950"\n.text\n'
    return hdr + body, n, LDS

if __name__ == "__main__":
    import json
    cfg = json.loads(sys.argv[2]) if len(sys.argv) > 2 else {}
    out = sys.argv[1]
    txt, n, lds = gen(cfg)
    open(out, "w").write(txt)
    print("nops inserted", n, "lines", txt.count("\n"), "lds", lds)
```

```python
import sys
from common import *
import hazard

NAME = "parallel_sum__gqa_block_cached__swiglu_ffn__decode_kernel"

class VM:
    def __init__(self, e): self.e = e; self.ops = []
    def issue(self, tag, line, definite=True):
        self.e(line); self.ops.append((tag, definite))
    def wait(self, tag):
        idx = [i for i, (t, d) in enumerate(self.ops) if t == tag]
        if not idx: return
        idx = max(idx)
        n = sum(1 for t, d in self.ops[idx+1:] if d)
        assert n <= 63, (tag, n)
        self.e(f"s_waitcnt vmcnt({n})")
        self.ops = self.ops[idx+1:]
        return n
    def count_after(self, tag):
        idx = max(i for i, (t, d) in enumerate(self.ops) if t == tag)
        return sum(1 for t, d in self.ops[idx+1:] if d)
    def wait_leave(self, n):
        if sum(1 for t, d in self.ops if d) <= n and all(d for t, d in self.ops): return
        self.e(f"s_waitcnt vmcnt({n})")
        while self.ops and sum(1 for t, d in self.ops[1:] if d) >= n: self.ops.pop(0)
    def drain(self):
        self.e("s_waitcnt vmcnt(0)"); self.ops = []

def gen(cfg):
    MIMIC = cfg.get("mimic", True)
    STAMPS = cfg.get("stamps", False)
    WIN = cfg.get("win", 16)
    NT = cfg.get("nt", "nt")
    NTW = cfg.get("ntw", "nt")
    SPIN = cfg.get("spin", 200000)
    e = E(); vm = VM(e)
    stamp_regs = [76+2*k for k in range(10)] + [12, 14, 16, 18, 20, 22]
    stamp_n = [0]
    def exmask(m):
        if isinstance(m, list): return f"s_mov_b32 exec_lo, {m[0]}\n    s_mov_b32 exec_hi, {m[1]}"
        return f"s_mov_b64 exec, {m}"
    def stamp():
        if not STAMPS: return
        if cfg.get("xst2") and stamp_n[0] >= 10: return
        k = stamp_n[0]; stamp_n[0] += 1
        r = stamp_regs[k]
        e(f"s_memrealtime s[{r}:{r+1}]")
        e("s_waitcnt lgkmcnt(0)")
    SX, SWQ, SWG, SWU, SK, SV, SWD, SWO, SWS, SOUT, SDBG = 28, 32, 36, 40, 44, 48, 52, 56, 60, 64, 68
    srd = lambda b: f"s[{b}:{b+3}]"
    S_MASK = 72
    S_T = 73; S_T2 = 74; S_SPIN = 75
    S_SEL0, S_SEL1 = 100, 101
    S_B, S_HKV, S_S, S_CB = 4, 5, 6, 7
    QP, GU, ML, PO, PF = 0, 0x20000, 0x60000, 0x100000, 0x200000
    L_HB = 1536
    L_MX = 1664
    L_LS = 1920
    L_OBC = 2176
    L_FIN = 2304
    L_OB = 2560
    OBW = 8*528
    LDS = L_OB + 4*OBW
    L_RED = L_OB
    L_XN = L_OB + 6144
    L_QS = L_OB + 8192
    T, T2 = S_T, S_T2

    if cfg.get("oddlight", False):
        RROLE = "s_and_b32 s{d}, s2, 1\n    s_lshl_b32 s{d}, s{d}, 7\n    s_lshr_b32 s98, s2, 1\n    s_add_u32 s{d}, s{d}, s98"
    elif cfg.get("ol2"):
        RROLE = ("s_and_b32 s{d}, s2, 1\n    s_lshl_b32 s{d}, s{d}, 5\n    s_sub_u32 s98, s2, 192\n    s_lshr_b32 s98, s98, 1\n"
                 "    s_add_u32 s{d}, s{d}, s98\n    s_add_u32 s{d}, s{d}, 192\n    s_cmp_lt_u32 s2, 192\n    s_cselect_b32 s{d}, s2, s{d}")
    else:
        RROLE = "s_mov_b32 s{d}, s2"
    e(kernel_head(NAME))
    if cfg.get("xst3"): stamp()
    e(f"""
    s_cmp_ge_u32 s2, 256
    s_cbranch_scc1 L_end
    {('s_xor_b32 s2, s2, %d' % cfg['jx']) if cfg.get('jx') else ''}
    {('s_branch L_pad' + chr(10) + ('    s_nop 0' + chr(10)) * (cfg['pad']//4 - 1) + 'L_pad:') if cfg.get('pad') else ''}
    s_load_dwordx16 s[4:19], s[0:1], 0
    s_load_dwordx8 s[20:27], s[0:1], 64
    v_and_b32 v1, 63, v0
    v_lshrrev_b32 v10, 6, v0
    v_readfirstlane_b32 s3, v10
    s_mov_b32 s{S_MASK}, 0xffff0000
    s_mov_b32 s{S_SEL0}, 0x05040100
    s_mov_b32 s{S_SEL1}, 0x07060302
    """)
    e(f"""
    {RROLE.format(d=97)}
    s_and_b32 s96, s97, 3              ; rq
    s_lshr_b32 s97, s97, 2             ; cg
    s_lshl_b32 s98, s96, 8             ; rq*256
    v_lshrrev_b32 v11, 3, v1
    v_lshlrev_b32 v12, 6, v10
    v_add_u32 v11, v11, v12
    v_add_u32 v11, s98, v11            ; row0
    v_and_b32 v12, 7, v1
    v_lshlrev_b32 v12, 4, v12          ; cc*16
    v_lshlrev_b32 v2, 13, v11
    v_add_u32 v2, v2, v12
    s_movk_i32 s{T}, 7168
    v_mul_lo_u32 v3, v11, s{T}
    v_add_u32 v3, v3, v12
    v_lshlrev_b32 v4, 5, v1
    v_lshlrev_b32 v5, 6, v10
    v_add_u32 v5, v5, v1
    v_add_u32 v5, s98, v5
    v_lshlrev_b32 v5, 1, v5
    v_lshlrev_b32 v57, 3, v0
    v_and_b32 v11, 3, v1
    v_lshlrev_b32 v11, 2, v11
    v_bfe_u32 v12, v1, 2, 2
    v_add_u32 v11, v11, v12
    v_lshlrev_b32 v11, 8, v11
    v_lshrrev_b32 v12, 4, v1
    v_lshlrev_b32 v12, 4, v12
    v_add_u32 v11, v11, v12
    v_lshlrev_b32 v12, {13 if cfg.get("ilv") else 16}, v10
    v_add_u32 v6, v11, v12
    v_add_u32 v7, 4096, v6
    v_lshlrev_b32 v11, 4, v1
    v_add_u32 v8, v11, v12
    v_add_u32 v9, 4096, v8
    s_waitcnt lgkmcnt(0)
    s_lshl_b32 s0, s97, 2
    s_add_u32 s0, s0, s96              ; r
    """)
    stamp()
    def mk_srd(dst, plo, off_sgpr, size):
        if off_sgpr is None:
            e(f"s_mov_b32 s{dst}, s{plo}")
            e(f"s_and_b32 s{dst+1}, s{plo+1}, 0xffff")
        else:
            e(f"s_add_u32 s{dst}, s{plo}, s{off_sgpr}")
            e(f"s_addc_u32 s{dst+1}, s{plo+1}, 0")
            e(f"s_and_b32 s{dst+1}, s{dst+1}, 0xffff")
        e(f"s_mov_b32 s{dst+2}, {size}")
        e(f"s_mov_b32 s{dst+3}, 0x20000")
    mk_srd(SX, 4, None, 4096)
    for b in range(2):
        for hlf in range(2):
            vm.issue("x", f"buffer_load_dwordx4 v[{16+8*b+4*hlf}:{19+8*b+4*hlf}], v4, {srd(SX)}, 0 offen offset:{b*2048+hlf*16}")
    for b in range(2):
        vm.issue("x", f"buffer_load_ushort v{32+b}, v5, {srd(SX)}, 0 offen offset:{b*2048}")
    if cfg.get("xq"): e(f"s_xor_b32 s97, s97, {cfg['xq']}")
    e(f"s_lshl_b32 s{T}, s97, 7")
    if cfg.get("xq"): e(f"s_xor_b32 s97, s97, {cfg['xq']}")
    if cfg.get("xst2"): stamp()
    mk_srd(SWQ, 10, T, 0)
    e(f"s_sub_u32 s{SWQ+2}, 0x800000, s{T}")
    e(f"s_mov_b32 s{T2}, 0")
    for i in range(8):
        vm.issue("wq", f"buffer_load_dwordx4 v[{128+4*i}:{131+4*i}], v2, {srd(SWQ)}, s{T2} offen {NTW}")
        if i < 7: e(f"s_add_u32 s{T2}, s{T2}, {8*8192}")
    if cfg.get("xg"): e(f"s_xor_b32 s97, s97, {cfg['xg']}")
    e(f"s_lshl_b32 s{T}, s97, 7")
    if cfg.get("xg"): e(f"s_xor_b32 s97, s97, {cfg['xg']}")
    MM = cfg.get("mm", True)
    XG, XU = (2, 4) if MM else (0, 0)
    if MM: e(f"s_xor_b32 s{T}, s{T}, {XG << 7}")
    if cfg.get("xst2"): stamp()
    mk_srd(SWG, 16, T, 0)
    e(f"s_sub_u32 s99, {7<<20}, s{T}")
    if MM: e(f"s_xor_b32 s{T}, s{T}, {(XG ^ XU) << 7}")
    mk_srd(SWU, 18, T, 0)
    e(f"""
    s_sub_u32 s{T2}, {7<<20}, s{T}
    s_cmp_lt_u32 s0, 224
    s_cselect_b32 s{SWG+2}, s99, 0
    s_cselect_b32 s{SWU+2}, s{T2}, 0
    s_mov_b32 s{T2}, 0
    """)
    for i in range(8):
        vm.issue("wg", f"buffer_load_dwordx4 v[{160+4*i}:{163+4*i}], v3, {srd(SWG)}, s{T2} offen {NTW}")
        if i < 7: e(f"s_add_u32 s{T2}, s{T2}, {8*7168}")
    e(f"s_mov_b32 s{T2}, 0")
    for i in range(8):
        vm.issue("wu", f"buffer_load_dwordx4 v[{192+4*i}:{195+4*i}], v3, {srd(SWU)}, s{T2} offen {NTW}")
        if i < 7: e(f"s_add_u32 s{T2}, s{T2}, {8*7168}")
    if cfg.get("xst2"): stamp()
    mk_srd(SWS, 26, None, 0x400000)
    NOCLR = cfg.get("noclr", False)
    CLRPOS = cfg.get("clrpos", "early")
    def clears():
        e(f"""
        v_mov_b32 v112, -1
        v_mov_b32 v113, -1
        v_mov_b32 v114, -1
        v_mov_b32 v115, -1
        v_lshlrev_b32 v11, 4, v0           ; tid*16
        s_lshl_b32 s{T}, s2, 12
        s_add_u32 s{T}, s{T}, {PO}
        """)
        if not NOCLR: vm.issue("clr", f"buffer_store_dwordx4 v[112:115], v11, {srd(SWS)}, s{T} offen sc1")
        e(f"""
        s_lshl_b32 s{T}, s2, 13
        s_add_u32 s{T}, s{T}, {PF}
        """)
        if not NOCLR: vm.issue("clr", f"buffer_store_dwordx4 v[112:115], v11, {srd(SWS)}, s{T} offen sc1")
        e(f"s_add_u32 s{T}, s{T}, 4096")
        if not NOCLR: vm.issue("clr", f"buffer_store_dwordx4 v[112:115], v11, {srd(SWS)}, s{T} offen sc1")
        e(f"""
        v_lshlrev_b32 v12, 4, v10          ; w*16
        s_lshl_b32 s{T}, s2, 6
        s_add_u32 s{T}, s{T}, {ML}
        s_mov_b64 exec, 1
        """)
        if not NOCLR: vm.issue("clr", f"buffer_store_dwordx4 v[112:115], v12, {srd(SWS)}, s{T} offen sc1")
        e("s_mov_b64 exec, -1")

    if CLRPOS == "early": clears()
    e(f"s_lshl_b32 s{T}, s0, 15")
    if cfg.get("xst2"): stamp()
    mk_srd(SWD, 20, T, 0)
    e(f"""
    s_cmp_lt_u32 s0, 224
    s_cselect_b32 s{SWD+2}, 0x8000, 0
    """)
    WDR = 224
    def load_wd(WDR=WDR, voff=57):
        e(f"s_mov_b32 s{T2}, 0")
        for i in range(16):
            vm.issue("wd", f"buffer_load_dwordx2 v[{WDR+2*i}:{WDR+2*i+1}], v{voff}, {srd(SWD)}, s{T2} offen {NT}")
            if i < 15: e(f"s_add_u32 s{T2}, s{T2}, 2048")
    if cfg.get("xmap", False):
        e(f"""
    s_and_b32 s99, s2, 7
    s_lshl_b32 s99, s99, 5
    s_lshr_b32 s{T}, s2, 3
    s_add_u32 s99, s99, s{T}
    """)
    else:
        e("s_mov_b32 s99, s2")
    ILV = cfg.get("ilv", False)
    TSTR = (1 << 20) if ILV else 8192
    if ILV:
        e(f"s_lshr_b32 s{T}, s99, 5")
        e(f"s_lshl_b32 s{T}, s{T}, 23")
        e(f"s_and_b32 s{T2}, s99, 31")
        e(f"s_lshl_b32 s{T2}, s{T2}, 15")
        e(f"s_add_u32 s{T}, s{T}, s{T2}")
    else:
        e(f"s_lshl_b32 s{T}, s99, 18")
    kvsz = 0 if cfg.get("nokv") else (0x708000 if ILV else 0x40000)
    mk_srd(SK, 6, T, kvsz)
    mk_srd(SV, 8, T, kvsz)
    e(f"""
    s_lshr_b32 s{T}, s2, 3
    s_lshl_b32 s{T}, s{T}, 7
    s_bfe_u32 s{T2}, s2, 0x20001       ; (dq>>1)
    s_lshl_b32 s{T2}, s{T2}, 5
    s_add_u32 s{T}, s{T}, s{T2}
    s_and_b32 s{T2}, s2, 1
    s_lshl_b32 s{T2}, s{T2}, 2
    s_add_u32 s{T}, s{T}, s{T2}
    s_lshl_b32 s{T}, s{T}, 11
    """)
    mk_srd(SWO, 12, T, 28*2048)
    mk_srd(SOUT, 22, None, 4096)
    mk_srd(SDBG, 24, None, 256)
    PF_LIST = cfg.get("tlbpf", "")
    if PF_LIST:
        e("v_mov_b32 v116, 0")
        e("s_mov_b64 exec, 1")
        for ch in PF_LIST:
            reg, sr = {"k": (6, SK), "v": (8, SV), "o": (116, SWO), "d": (116, SWD), "y": (116, SOUT), "g": (116, SDBG)}[ch]
            vm.issue("pf", f"buffer_load_dword v117, v{reg}, {srd(sr)}, 0 offen")
        e("s_mov_b64 exec, -1")
    e(f"""
    s_lshr_b32 s{S_B}, s99, 7
    s_bfe_u32 s{S_HKV}, s99, 0x20005
    s_and_b32 s{S_S}, s99, 31
    s_mov_b32 s{S_CB}, s97           ; cg
    s_mov_b32 s8, s96                 ; rq
    s_and_b32 s{T}, s2, 127
    s_lshl_b32 s{T}, s{T}, 4
    s_lshr_b32 s{T2}, s2, 7
    s_lshl_b32 s{T2}, s{T2}, 11
    s_add_u32 s9, s{T}, s{T2}
    """)
    if cfg.get("xst"): stamp()
    vm.wait("x")
    if cfg.get("xst"): stamp()
    XS = 64
    for b in range(2):
        for q in range(8):
            e(f"v_lshlrev_b32 v{XS+16*b+2*q}, 16, v{16+8*b+q}")
            e(f"v_and_b32 v{XS+16*b+2*q+1}, s{S_MASK}, v{16+8*b+q}")
    def wave_red(regs, op="add", tmp=104, shifts=(8, 4, 2, 1)):
        o = {"add": "v_add_f32", "max": "v_max_f32"}[op]
        for sh in shifts:
            for r in regs: e(f"{o}_dpp v{r}, v{r}, v{r} row_ror:{sh} row_mask:0xf bank_mask:0xf")
        for sw in ("v_permlane16_swap_b32", "v_permlane32_swap_b32"):
            for k, r in enumerate(regs): e(f"v_mov_b32 v{tmp+k}, v{r}")
            for k, r in enumerate(regs): e(f"{sw} v{r}, v{tmp+k}")
            for k, r in enumerate(regs): e(f"{o} v{r}, v{r}, v{tmp+k}")
    for b in range(2):
        e(f"v_add_f32 v{96+b}, v{XS+16*b}, v{XS+16*b+1}")
    for q in range(2, 16):
        for b in range(2):
            e(f"v_add_f32 v{96+b}, v{96+b}, v{XS+16*b+q}")
    wave_red([96, 97])
    def rbf(dst, src):
        e(f"v_cvt_pk_bf16_f32 v{dst}, v{src}, v{src}")
        e(f"v_and_b32 v{dst}, s{S_MASK}, v{dst}")
    for b in range(2): e(f"v_mul_f32 v{96+b}, 0x3a800000, v{96+b}")
    for q in range(16):
        for b in range(2):
            e(f"v_sub_f32 v{XS+16*b+q}, v{XS+16*b+q}, v{96+b}")
    for b in range(2): e(f"v_mul_f32 v{98+b}, v{XS+16*b}, v{XS+16*b}")
    for q in range(1, 16):
        for b in range(2):
            e(f"v_fmac_f32 v{98+b}, v{XS+16*b+q}, v{XS+16*b+q}")
    wave_red([98, 99])
    for b in range(2):
        e(f"v_mul_f32 v{98+b}, 0x3a800000, v{98+b}")
        rbf(98+b, 98+b)
        e(f"v_add_f32 v{98+b}, 0x3727c5ac, v{98+b}")
        rbf(98+b, 98+b)
        e(f"v_sqrt_f32 v{98+b}, v{98+b}")
        rbf(98+b, 98+b)
        rbf(96+b, 96+b)
        e(f"v_rcp_f32 v{100+b}, v{98+b}")
    for b in range(2):
        e(f"v_lshlrev_b32 v{64+b}, 16, v{32+b}")
    for b in range(2):
        e(f"v_sub_f32 v{64+b}, v{64+b}, v{96+b}")
    for b in range(2): rbf(64+b, 64+b)
    for b in range(2):
        e(f"v_mul_f32 v102, v{64+b}, v{100+b}")
        e(f"v_fma_f32 v103, -v102, v{98+b}, v{64+b}")
        e(f"v_fma_f32 v{64+b}, v103, v{100+b}, v102")
    for b in range(2): rbf(64+b, 64+b)
    e(f"""
    v_lshlrev_b32 v11, 9, v10
    v_lshlrev_b32 v12, 3, v1
    v_add_u32 v12, v12, v11             ; w*512 + l*8
    ds_write_b64 v12, v[64:65] offset:{L_XN}
    v_lshrrev_b32 v12, 3, v1
    v_lshlrev_b32 v12, 3, v12
    v_add_u32 v12, v12, v11             ; w*512 + (l>>3)*8
    s_waitcnt lgkmcnt(0)
    """)
    for i in range(8):
        e(f"ds_read_b64 v[{40+2*i}:{41+2*i}], v12 offset:{L_XN+64*i}")
    e(f"""
    v_and_b32 v14, 7, v1
    v_lshlrev_b32 v14, 5, v14
    v_lshrrev_b32 v12, 4, v1
    v_lshlrev_b32 v12, 3, v12
    v_add_u32 v14, v14, v12
    v_add_u32 v14, v14, v11
    s_waitcnt lgkmcnt(0)
    """)
    stamp()
    ACC = 96
    def gemv(wbase, m):
        for i in range(8):
            for q in range(4):
                t = 112 + 2*((i*4+q) & 1)
                w = wbase + 4*i + q
                e(f"v_lshlrev_b32 v{t}, 16, v{w}")
                e(f"v_and_b32 v{t+1}, s{S_MASK}, v{w}")
                for p in range(2):
                    a = ACC + 2*(2*q+p)
                    sel = "op_sel:[0,0,0] op_sel_hi:[0,1,1]" if p == 0 else "op_sel:[1,0,0] op_sel_hi:[1,1,1]"
                    if i == 0:
                        sel2 = "op_sel:[0,0] op_sel_hi:[0,1]" if p == 0 else "op_sel:[1,0] op_sel_hi:[1,1]"
                        e(f"v_pk_mul_f32 v[{a}:{a+1}], v[{t}:{t+1}], v[40:41] {sel2}")
                    else:
                        e(f"v_pk_fma_f32 v[{a}:{a+1}], v[{t}:{t+1}], v[{40+2*i}:{41+2*i}], v[{a}:{a+1}] {sel}")
        A = lambda c, b: ACC + 2*c + b
        for c in range(4):
            for b in range(2): e(f"v_permlane32_swap_b32 v{A(c,b)}, v{A(c+4,b)}")
        for c in range(4):
            e(f"v_pk_add_f32 v[{A(c,0)}:{A(c,1)}], v[{A(c,0)}:{A(c,1)}], v[{A(c+4,0)}:{A(c+4,1)}]")
        for c in range(2):
            for b in range(2): e(f"v_permlane16_swap_b32 v{A(c,b)}, v{A(c+2,b)}")
        for c in range(2):
            e(f"v_pk_add_f32 v[{A(c,0)}:{A(c,1)}], v[{A(c,0)}:{A(c,1)}], v[{A(c+2,0)}:{A(c+2,1)}]")
        for k in range(4): e(f"v_add_f32_dpp v{ACC+k}, v{ACC+k}, v{ACC+k} row_ror:8 row_mask:0xf bank_mask:0xf")
        e(f"v_swap_b32 v{ACC+1}, v{ACC+2}")
        e("s_mov_b32 exec_lo, 0x00ff00ff")
        e("s_mov_b32 exec_hi, 0x00ff00ff")
        e(f"ds_write_b64 v14, v[{ACC}:{ACC+1}] offset:{L_RED+m*2048}")
        e(f"ds_write_b64 v14, v[{ACC+2}:{ACC+3}] offset:{L_RED+m*2048+256}")
        e("s_mov_b64 exec, -1")
    def load_k(t):
        e(f"s_mov_b32 s{T2}, {t*TSTR}")
        for u in range(2):
            for j in range(4):
                a = 32*t + 16*u + 4*j
                vm.issue(f"k{t}", f"buffer_load_dwordx4 a[{a}:{a+3}], v{6+u}, {srd(SK)}, s{T2} offen offset:{j*64} {NT}")
    def load_v(t):
        e(f"s_mov_b32 s{T2}, {t*TSTR}")
        for i in range(8):
            r = 128 + 32*(t & 3) + 4*i
            vm.issue(f"v{t}", f"buffer_load_dwordx4 v[{r}:{r+3}], v{8+(i>>2)}, {srd(SV)}, s{T2} offen offset:{(i&3)*1024} {NT}")
    WINV = [WIN]
    def pace(next_n):
        vm.wait_leave(max(WINV[0] - next_n, 0))
    if CLRPOS == "ln": clears()
    load_k(0)
    vm.wait("wq")
    stamp()
    gemv(128, 0)
    if CLRPOS == "q": clears()
    load_k(1)
    vm.wait("wg")
    gemv(160, 1)
    if CLRPOS == "g": clears()
    LATE = cfg.get("late", True)
    if not LATE: load_wd()
    vm.wait("wu")
    stamp()
    gemv(192, 2)
    e("s_waitcnt lgkmcnt(0)")
    e("s_barrier")
    e(f"""
    s_cmp_lg_u32 s3, 0
    s_cbranch_scc1 L_nopub
    v_lshrrev_b32 v11, 5, v1
    v_lshlrev_b32 v11, 11, v11          ; m*2048
    v_bfe_u32 v12, v1, 4, 1
    v_lshlrev_b32 v13, 8, v12           ; b*256
    v_add_u32 v11, v11, v13
    v_and_b32 v14, 15, v1
    v_lshlrev_b32 v15, 4, v14           ; c4*16
    v_add_u32 v11, v11, v15
    v_and_b32 v58, 0x7ff, v11
    """)
    for w in range(4):
        e(f"ds_read_b128 v[{96+4*w}:{99+4*w}], v11 offset:{L_RED+w*512}")
    for w in range(4):
        e(f"ds_read_b128 v[{64+4*w}:{67+4*w}], v58 offset:{L_RED+4096+w*512}")
    e(f"""
    v_lshlrev_b32 v59, 14, v12
    v_add_u32 v59, v59, v15
    s_lshl_b32 s{T}, s8, 15
    s_lshl_b32 s{T2}, s{S_CB}, 8
    s_add_u32 s{T}, s{T}, s{T2}
    v_add_u32 v59, s{T}, v59
    v_lshrrev_b32 v60, 2, v14
    v_lshlrev_b32 v60, 10, v60
    v_lshlrev_b32 v61, 6, v12
    v_add_u32 v60, v60, v61
    v_and_b32 v61, 3, v14
    v_lshlrev_b32 v61, 4, v61
    v_add_u32 v60, v60, v61
    s_lshl_b32 s{T}, s{S_CB}, 12
    s_lshl_b32 s{T2}, s8, 8
    s_add_u32 s{T}, s{T}, s{T2}
    s_add_u32 s{T}, s{T}, {GU}
    s_xor_b32 s{T}, s{T}, {XG << 12}
    v_add_u32 v60, s{T}, v60
    v_cmp_gt_u32 vcc, 32, v1
    v_cndmask_b32 v59, v60, v59, vcc
    v_xor_b32 v60, {(XG ^ XU) << 12}, v60
    v_add_u32 v60, 128, v60             ; u address
    s_waitcnt lgkmcnt(4)
    v_pk_add_f32 v[96:97], v[96:97], v[100:101]
    v_pk_add_f32 v[98:99], v[98:99], v[102:103]
    v_pk_add_f32 v[104:105], v[104:105], v[108:109]
    v_pk_add_f32 v[106:107], v[106:107], v[110:111]
    v_pk_add_f32 v[96:97], v[96:97], v[104:105]
    v_pk_add_f32 v[98:99], v[98:99], v[106:107]
    """)
    vm.issue("pub", f"buffer_store_dwordx4 v[96:99], v59, {srd(SWS)}, 0 offen sc1", definite=False)
    e(f"""
    s_waitcnt lgkmcnt(0)
    v_pk_add_f32 v[64:65], v[64:65], v[68:69]
    v_pk_add_f32 v[66:67], v[66:67], v[70:71]
    v_pk_add_f32 v[72:73], v[72:73], v[76:77]
    v_pk_add_f32 v[74:75], v[74:75], v[78:79]
    v_pk_add_f32 v[64:65], v[64:65], v[72:73]
    v_pk_add_f32 v[66:67], v[66:67], v[74:75]
    s_mov_b32 exec_hi, 0
    """)
    vm.issue("pub", f"buffer_store_dwordx4 v[64:67], v60, {srd(SWS)}, 0 offen sc1", definite=False)
    e("s_mov_b64 exec, -1")
    e("L_nopub:")
    load_k(2)
    stamp()
    vm.wait_leave(8)
    assert all(t in ("k2",) for t, d in vm.ops), vm.ops
    e("s_barrier")
    e("s_cmp_lg_u32 s3, 0")
    e("s_cbranch_scc1 L_nosig")
    e(f"""
    v_mov_b32 v11, 1
    s_and_b32 s{T}, s2, 3
    s_lshl_b32 s{T}, s{T}, 6
    v_mov_b32 v12, s{T}
    s_mov_b64 exec, 1
    """)
    vm.issue("sig", f"buffer_atomic_add v11, v12, {srd(SDBG)}, 0 offen sc1", definite=False)
    e("s_mov_b64 exec, -1")
    e("L_nosig:")
    load_k(3)
    POLLK = cfg.get("pollk", 6)
    for t in range(4, POLLK):
        pace(8); load_k(t)
    e(f"""
    s_cmp_lg_u32 s3, 0
    s_cbranch_scc1 L_nopoll1
    v_and_b32 v40, 3, v1
    v_lshlrev_b32 v40, 6, v40
    """)
    vm.issue("poll", f"buffer_load_dword v41, v40, {srd(SDBG)}, 0 offen sc1", definite=False)
    e("L_nopoll1:")
    pace(8); load_k(POLLK)
    e("s_cmp_lg_u32 s3, 0")
    e("s_cbranch_scc1 L_qok")
    e(f"s_waitcnt vmcnt({vm.count_after('poll')})")
    e(f"""
    s_mov_b32 s{S_SPIN}, 0
L_qspin:
    v_cmp_eq_u32 vcc, 64, v41
    s_nop 1
    s_cmp_eq_u64 vcc, -1
    s_cbranch_scc1 L_qok
    s_add_u32 s{S_SPIN}, s{S_SPIN}, 1
    s_cmp_gt_u32 s{S_SPIN}, {SPIN}
    s_cbranch_scc1 L_end
    buffer_load_dword v41, v40, {srd(SDBG)}, 0 offen sc1
    s_waitcnt vmcnt(0)
    s_branch L_qspin
L_qok:
    s_barrier
    v_lshlrev_b32 v40, 4, v0
    s_lshl_b32 s{T}, s{S_B}, 14
    s_lshl_b32 s{T2}, s{S_HKV}, 12
    s_add_u32 s{T}, s{T}, s{T2}
    """)
    for rq in range(4):
        vm.issue("q", f"buffer_load_dwordx4 v[{16+4*rq}:{19+4*rq}], v40, {srd(SWS)}, s{T} offen sc1")
        if rq < 3: e(f"s_add_u32 s{T}, s{T}, 32768")
    e(f"""
    v_lshlrev_b32 v41, 4, v1
    s_lshl_b32 s{T}, s0, 10
    s_add_u32 s{T}, s{T}, {GU}
    """)
    vm.issue("q", f"buffer_load_dwordx4 v[32:35], v41, {srd(SWS)}, s{T} offen sc1")
    for t in range(POLLK+1, 8):
        load_k(t)
    e(f"""
    v_lshrrev_b32 v42, 5, v0
    v_lshlrev_b32 v42, 4, v42           ; (t>>5)*16
    v_lshlrev_b32 v43, 3, v0
    v_add_u32 v42, v42, v43
    v_and_b32 v43, 7, v1
    v_mul_u32_u24 v43, 272, v43
    v_lshrrev_b32 v44, 4, v1
    v_lshlrev_b32 v44, 4, v44
    v_add_u32 v43, v43, v44
    v_and_b32 v44, 3, v1
    v_lshlrev_b32 v44, 5, v44
    v_lshrrev_b32 v45, 4, v1
    v_lshlrev_b32 v45, 3, v45
    v_add_u32 v44, v44, v45
    v_bfe_u32 v45, v1, 2, 1
    v_lshlrev_b32 v45, 2, v45
    v_add_u32 v44, v44, v45
    """)
    vm.wait("q")
    stamp()
    e(f"""
    v_pk_add_f32 v[16:17], v[16:17], v[20:21]
    v_pk_add_f32 v[18:19], v[18:19], v[22:23]
    v_pk_add_f32 v[24:25], v[24:25], v[28:29]
    v_pk_add_f32 v[26:27], v[26:27], v[30:31]
    v_pk_add_f32 v[16:17], v[16:17], v[24:25]
    v_pk_add_f32 v[18:19], v[18:19], v[26:27]
    v_cvt_pk_bf16_f32 v16, v16, v17
    v_cvt_pk_bf16_f32 v17, v18, v19
    ds_write_b64 v42, v[16:17] offset:{L_QS}
    v_permlane32_swap_b32 v32, v34
    v_permlane32_swap_b32 v33, v35
    v_pk_add_f32 v[32:33], v[32:33], v[34:35]
    v_permlane16_swap_b32 v32, v33
    v_add_f32 v96, v32, v33
    """)
    rbf(96, 96)
    e(f"""
    v_mov_b32_dpp v100, v96 row_ror:8 row_mask:0xf bank_mask:0xf     ; u
    v_mul_f32 v98, 0xbfb8aa3b, v96      ; -g*log2e
    v_exp_f32 v98, v98
    v_add_f32 v98, 1.0, v98
    v_rcp_f32 v99, v98
    v_mul_f32 v101, v96, v99
    v_fma_f32 v102, -v101, v98, v96
    v_fma_f32 v102, v102, v99, v101
    v_cmp_eq_f32 vcc, 0x7f800000, v98
    v_cndmask_b32 v101, v102, v101, vcc
    """)
    rbf(101, 101)
    e("v_mul_f32 v101, v101, v100")
    rbf(101, 101)
    e("s_mov_b32 exec_lo, 0x00ff00ff")
    e("s_mov_b32 exec_hi, 0x00ff00ff")
    e(f"ds_write_b32 v44, v101 offset:{L_HB}")
    e("s_mov_b64 exec, -1")
    e("v_mov_b32 v11, 0")
    e("s_waitcnt lgkmcnt(0)")
    e("s_barrier")
    for j in range(4):
        e(f"ds_read_b128 v[{16+4*j}:{19+4*j}], v43 offset:{L_QS+64*j}")
    if not LATE:
        for k in range(8):
            e(f"ds_read_b128 v[{64+4*k}:{67+4*k}], v11 offset:{L_HB+16*k}")
    load_v(0)
    if not LATE: vm.wait("wd")
    e("s_waitcnt lgkmcnt(0)")
    F0, F1 = 2, 12
    def rowfma(wreg_pairs, opair, first):
        for b, F in ((0, F0), (1, F1)):
            for hlf in range(2):
                wp = wreg_pairs[hlf]; a = F + 2*hlf
                if first:
                    e(f"v_pk_mul_f32 v[{a}:{a+1}], v[{wp}:{wp+1}], v[{opair}:{opair+1}] op_sel:[0,{b}] op_sel_hi:[1,{b}]")
                else:
                    e(f"v_pk_fma_f32 v[{a}:{a+1}], v[{wp}:{wp+1}], v[{opair}:{opair+1}], v[{a}:{a+1}] op_sel:[0,{b},0] op_sel_hi:[1,{b},1]")
    def ffn_down(wdr, tb):
        for i in range(16):
            t = tb + 4*(i & 1)
            for d in range(2):
                e(f"v_lshlrev_b32 v{t+2*d}, 16, v{wdr+2*i+d}")
                e(f"v_and_b32 v{t+2*d+1}, s{S_MASK}, v{wdr+2*i+d}")
            rowfma((t, t+2), 64+2*i, i == 0)
    if not LATE: ffn_down(WDR, 96)
    pace(8); load_v(1)
    SCALE = 0x3db504f3
    e(f"s_mov_b32 s10, {hex(SCALE)}")
    e(f"s_mov_b32 s11, {hex(SCALE)}")
    def qk(t):
        for j in range(4):
            for u in range(2):
                a = 32*t + 16*u + 4*j; s = 64 + 8*t + 4*u
                c = "0" if j == 0 else f"v[{s}:{s+3}]"
                e(f"v_mfma_f32_16x16x32_bf16 v[{s}:{s+3}], a[{a}:{a+3}], v[{16+4*j}:{19+4*j}], {c}")
    def rnd(t):
        for z in range(4):
            r = 64 + 8*t + 2*z; tmp = 40 + (z & 1)
            if MIMIC:
                e(f"v_cvt_pk_bf16_f32 v{tmp}, v{r}, v{r+1}")
                e(f"v_lshlrev_b32 v{r}, 16, v{tmp}")
                e(f"v_and_b32 v{r+1}, s{S_MASK}, v{tmp}")
                e(f"v_pk_mul_f32 v[{r}:{r+1}], v[{r}:{r+1}], s[10:11]")
                e(f"v_cvt_pk_bf16_f32 v{tmp}, v{r}, v{r+1}")
                e(f"v_lshlrev_b32 v{r}, 16, v{tmp}")
                e(f"v_and_b32 v{r+1}, s{S_MASK}, v{tmp}")
            else:
                e(f"v_pk_mul_f32 v[{r}:{r+1}], v[{r}:{r+1}], s[10:11]")
    vm.wait("k7")
    qk(0); qk(1); rnd(0); qk(2); rnd(1); qk(3); rnd(2)
    load_v(2)
    qk(4); rnd(3); qk(5); rnd(4); qk(6); rnd(5); qk(7); rnd(6)
    load_v(3)
    rnd(7)
    stamp()
    e("v_max3_f32 v40, v64, v65, v66")
    e("v_max3_f32 v41, v67, v68, v69")
    k = 70
    while k + 3 < 128:
        e(f"v_max3_f32 v40, v40, v{k}, v{k+1}")
        e(f"v_max3_f32 v41, v41, v{k+2}, v{k+3}")
        k += 4
    e(f"v_max3_f32 v40, v40, v{k}, v{k+1}")
    e("v_max_f32 v40, v40, v41")
    for sw in ("v_permlane16_swap_b32", "v_permlane32_swap_b32"):
        e("v_mov_b32 v41, v40")
        e(f"{sw} v40, v41")
        e("v_max_f32 v40, v40, v41")
    e(f"""
    v_and_b32 v42, 15, v1
    v_lshlrev_b32 v42, 2, v42           ; n*4
    v_lshlrev_b32 v43, 6, v10
    v_add_u32 v43, v43, v42             ; w*64+n*4
    ds_write_b32 v43, v40 offset:{L_MX}
    s_waitcnt lgkmcnt(0)
    s_barrier
    ds_read_b32 v44, v42 offset:{L_MX}
    ds_read_b32 v45, v42 offset:{L_MX+64}
    ds_read_b32 v46, v42 offset:{L_MX+128}
    ds_read_b32 v47, v42 offset:{L_MX+192}
    s_mov_b32 s10, 0x3fb8aa3b
    s_waitcnt lgkmcnt(0)
    v_max3_f32 v44, v44, v45, v46
    v_max_f32 v44, v44, v47
    v_mul_f32 v45, s10, v44             ; M*log2e
    """)
    for r in range(64, 128):
        e(f"v_fma_f32 v{r}, v{r}, s10, -v45")
    for r in range(64, 128):
        e(f"v_exp_f32 v{r}, v{r}")
    e("v_add_f32 v46, v64, v65")
    e("v_add_f32 v47, v66, v67")
    for r in range(68, 128, 2):
        e(f"v_add_f32 v46, v46, v{r}")
        e(f"v_add_f32 v47, v47, v{r+1}")
    e("v_add_f32 v46, v46, v47")
    for z in range(32):
        e(f"v_cvt_pk_bf16_f32 v{64+z}, v{64+2*z}, v{65+2*z}")
    for sw in ("v_permlane16_swap_b32", "v_permlane32_swap_b32"):
        e("v_mov_b32 v47, v46")
        e(f"{sw} v46, v47")
        e("v_add_f32 v46, v46, v47")
    e(f"ds_write_b32 v43, v46 offset:{L_LS}")
    e(f"""
    s_waitcnt lgkmcnt(0)
    s_barrier
    s_cmp_lg_u32 s3, 0
    s_cbranch_scc1 L_noml
    ds_read_b32 v46, v42 offset:{L_LS}
    ds_read_b32 v47, v42 offset:{L_LS+64}
    ds_read_b32 v48, v42 offset:{L_LS+128}
    ds_read_b32 v49, v42 offset:{L_LS+192}
    v_lshlrev_b32 v50, 7, v42           ; n*512
    s_lshl_b32 s{T}, s{S_HKV}, 12       ; hkv*8*512
    s_lshl_b32 s{T2}, s{S_B}, 8
    s_add_u32 s{T}, s{T}, s{T2}
    s_lshl_b32 s{T2}, s{S_S}, 3
    s_add_u32 s{T}, s{T}, s{T2}
    s_add_u32 s{T}, s{T}, {ML}
    s_waitcnt lgkmcnt(0)
    v_add_f32 v46, v46, v47
    v_add_f32 v48, v48, v49
    v_add_f32 v45, v46, v48
    s_mov_b64 exec, 0xff
    """)
    vm.issue("mlst", f"buffer_store_dwordx2 v[44:45], v50, {srd(SWS)}, s{T} offen sc1", definite=False)
    e("s_mov_b64 exec, -1")
    e("L_noml:")
    stamp()
    def pv(t):
        slot = 128 + 32*(t & 3)
        for j in range(8):
            q, p = j >> 1, j & 1
            T4 = 16 + 4*(j & 3)
            for z in range(4):
                e(f"v_perm_b32 v{T4+z}, v{slot+4*(2*z+1)+q}, v{slot+4*(2*z)+q}, s{S_SEL1 if p else S_SEL0}")
            c = "0" if t == 0 else f"v[{32+4*j}:{35+4*j}]"
            e(f"v_mfma_f32_16x16x32_bf16 v[{32+4*j}:{35+4*j}], v[{T4}:{T4+3}], v[{64+4*t}:{67+4*t}], {c}")
    WOR = 96
    e("v_lshlrev_b32 v11, 3, v0")
    WINV[0] = cfg.get("winv", WIN)
    vm.wait("v0"); pv(0)
    pace(8); load_v(4)
    def load_wo(WOR, voff=11):
        for i in range(16):
            off = (8*(i & 3) + (i >> 2))*2048
            e(f"s_mov_b32 s{T2}, {off}")
            vm.issue("wo", f"buffer_load_dwordx2 v[{WOR+2*i}:{WOR+2*i+1}], v{voff}, {srd(SWO)}, s{T2} offen {NT}")
    if not LATE:
        pace(8)
        load_wo(WOR)
    vm.wait("v1"); pv(1)
    pace(8); load_v(5)
    vm.wait("v2"); pv(2)
    e(f"""
    v_lshrrev_b32 v6, 1, v1
    s_and_b32 s8, s2, 31
    v_xor_b32 v6, s8, v6
    v_lshlrev_b32 v6, 3, v6
    v_lshrrev_b32 v7, 1, v10
    v_lshlrev_b32 v7, 8, v7
    v_add_u32 v6, v6, v7
    s_lshr_b32 s8, s2, 3
    s_lshl_b32 s8, s8, 9
    s_add_u32 s8, s8, {ML}
    """)
    pace(8)
    vm.issue("ml", f"buffer_load_dwordx2 a[0:1], v6, {srd(SWS)}, s8 offen sc1")
    load_v(6)
    vm.wait("v3"); pv(3)
    pace(8); load_v(7)
    vm.wait("v4"); pv(4)
    def unpack_wo(i0, src=WOR, dst=128):
        for i in range(i0, i0+8):
            for d in range(2):
                e(f"v_lshlrev_b32 v{dst+4*i+2*d}, 16, v{src+2*i+d}")
                e(f"v_and_b32 v{dst+4*i+2*d+1}, s{S_MASK}, v{src+2*i+d}")
    LP = cfg.get("latepos", [4, 5])
    def late_loads(pos):
        if not LATE: return
        if pos in LP: e("v_lshlrev_b32 v120, 3, v0")
        if LP[0] == pos: load_wd(128, 120)
        if LP[1] == pos: load_wo(160, 120)
    if LATE:
        late_loads(4)
        vm.wait("v5"); pv(5)
        late_loads(5)
        WOU = 192
    else:
        vm.wait("wo")
        unpack_wo(0)
        vm.wait("v5"); pv(5)
        unpack_wo(8)
        WOU = 128
    vm.wait("ml")
    e(f"""
    v_accvgpr_read_b32 v96, a0
    v_accvgpr_read_b32 v97, a1
    s_mov_b32 s{S_SPIN}, 0
L_mlspin:
    v_max_u32 v98, v96, v97
    v_cmp_eq_u32 vcc, -1, v98
    s_nop 1
    s_cmp_eq_u64 vcc, 0
    s_cbranch_scc1 L_mlok
    s_add_u32 s{S_SPIN}, s{S_SPIN}, 1
    s_cmp_gt_u32 s{S_SPIN}, {SPIN}
    s_cbranch_scc1 L_end
    buffer_load_dwordx2 v[96:97], v6, {srd(SWS)}, s8 offen sc1
    s_waitcnt vmcnt(0)
    s_branch L_mlspin
L_mlok:
    v_mov_b32 v98, v96
    """)
    wave_red([98], op="max", tmp=104, shifts=(8, 4, 2))
    e("v_sub_f32 v98, v96, v98")
    e("v_mul_f32 v98, 0x3fb8aa3b, v98")
    e("v_exp_f32 v98, v98")
    e("v_mul_f32 v99, v98, v97")
    wave_red([99], op="add", tmp=104, shifts=(8, 4, 2))
    e("""
    v_rcp_f32 v100, v99
    v_mul_f32 v101, v98, v100
    v_fma_f32 v102, -v101, v99, v98
    v_fma_f32 v100, v102, v100, v101    ; f = e_s / L
    """)
    e(f"""
    v_and_b32 v96, 15, v1
    v_mul_u32_u24 v96, 528, v96
    v_lshrrev_b32 v97, 4, v1
    v_lshlrev_b32 v97, 7, v97
    v_add_u32 v96, v96, v97
    v_mul_u32_u24 v97, {OBW}, v10
    v_add_u32 v96, v96, v97
    v_lshrrev_b32 v98, 5, v0
    v_mul_u32_u24 v97, 528, v98
    v_and_b32 v99, 31, v0
    v_lshlrev_b32 v101, 4, v99
    v_add_u32 v97, v97, v101
    v_lshlrev_b32 v98, 15, v98
    v_lshrrev_b32 v101, 2, v99
    v_lshlrev_b32 v101, 12, v101
    v_add_u32 v98, v98, v101
    v_and_b32 v101, 3, v99
    v_lshlrev_b32 v101, 4, v101
    v_add_u32 v98, v98, v101
    v_bfe_u32 v101, v0, 2, 5
    v_xor_b32 v101, s{S_S}, v101
    v_lshlrev_b32 v101, 6, v101
    v_add_u32 v98, v98, v101
    s_lshl_b32 s10, s{S_HKV}, 18
    s_lshl_b32 s{T}, s{S_B}, 11
    s_add_u32 s10, s10, s{T}
    s_add_u32 s10, s10, {PO}
    v_lshrrev_b32 v99, 1, v10
    v_lshlrev_b32 v99, 11, v99
    v_lshrrev_b32 v101, 1, v1
    v_lshlrev_b32 v101, 6, v101
    v_add_u32 v99, v99, v101
    v_and_b32 v101, 1, v10
    v_lshlrev_b32 v101, 5, v101
    v_add_u32 v99, v99, v101
    v_and_b32 v101, 1, v1
    v_lshlrev_b32 v101, 4, v101
    v_add_u32 v99, v99, v101
    s_lshl_b32 s11, s2, 12
    s_add_u32 s11, s11, {PO}
    v_and_b32 v101, 1, v10
    v_lshlrev_b32 v101, 6, v101
    v_and_b32 v102, 1, v1
    v_lshlrev_b32 v102, 5, v102
    v_add_u32 v101, v101, v102
    v_lshrrev_b32 v102, 4, v1
    v_lshlrev_b32 v102, 3, v102
    v_add_u32 v101, v101, v102
    v_lshrrev_b32 v102, 1, v10
    v_lshlrev_b32 v102, 2, v102
    v_add_u32 v101, v101, v102
    v_mov_b32 v102, 0
    v_lshrrev_b32 v103, 1, v0
    v_xor_b32 v11, s2, v103
    v_lshlrev_b32 v103, 13, v103
    v_and_b32 v104, 1, v0
    v_lshlrev_b32 v104, 4, v104
    v_add_u32 v103, v103, v104
    v_xor_b32 v109, 0x80, v11
    v_lshlrev_b32 v109, 5, v109
    v_add_u32 v109, v109, v103
    v_lshlrev_b32 v11, 5, v11
    v_add_u32 v103, v103, v11
    s_mov_b32 s96, {PF}
    s_mov_b32 s97, {PF+0x100000}
    v_lshlrev_b32 v104, 5, v0
    s_lshl_b32 s98, s2, 13
    s_add_u32 s98, s98, {PF}
    v_lshlrev_b32 v105, 5, v10
    v_lshrrev_b32 v106, 4, v1
    v_lshlrev_b32 v106, 3, v106
    v_add_u32 v105, v105, v106
    v_lshlrev_b32 v106, 3, v1
    v_lshlrev_b32 v107, 2, v1
    v_and_b32 v107, 12, v107
    """)
    vm.issue("res", f"buffer_load_dword v108, v107, {srd(SX)}, s9 offen")
    vm.wait("v6"); pv(6)
    late_loads(6)
    vm.wait("v7")
    if not LATE: vm.wait("res")
    stamp()
    pv(7)
    if not LATE:
        e("v_lshlrev_b32 v110, 16, v108")
        e(f"v_and_b32 v111, s{S_MASK}, v108")
    e("s_mov_b32 exec_lo, 0x00ff00ff")
    e("s_mov_b32 exec_hi, 0x00ff00ff")
    for j in range(8):
        e(f"ds_write_b128 v96, v[{32+4*j}:{35+4*j}] offset:{L_OB+16*j}")
    e("s_mov_b64 exec, -1")
    e("s_waitcnt lgkmcnt(0)")
    e("s_barrier")
    for w in range(4):
        e(f"ds_read_b128 v[{16+4*w}:{19+4*w}], v97 offset:{L_OB+w*OBW}")
    e("s_waitcnt lgkmcnt(2)")
    e("v_pk_add_f32 v[16:17], v[16:17], v[20:21]")
    e("v_pk_add_f32 v[18:19], v[18:19], v[22:23]")
    e("s_waitcnt lgkmcnt(0)")
    e("v_pk_add_f32 v[24:25], v[24:25], v[28:29]")
    e("v_pk_add_f32 v[26:27], v[26:27], v[30:31]")
    e("v_pk_add_f32 v[16:17], v[16:17], v[24:25]")
    e("v_pk_add_f32 v[18:19], v[18:19], v[26:27]")
    vm.issue("post", f"buffer_store_dwordx4 v[16:19], v98, {srd(SWS)}, s10 offen sc1")
    late_loads(7)
    if cfg.get("tstamps"): stamp()
    if LATE:
        e("v_mov_b32 v16, 0")
        for k in range(8):
            e(f"ds_read_b128 v[{64+4*k}:{67+4*k}], v16 offset:{L_HB+16*k}")
        vm.wait("wd")
        e("s_waitcnt lgkmcnt(0)")
        ffn_down(128, 112)
        vm.issue("poll1", f"buffer_load_dwordx4 v[20:23], v99, {srd(SWS)}, s11 offen sc1")
        wo_idx = [i for i, (t, d) in enumerate(vm.ops) if t == "wo"]
        after = sum(1 for t, d in vm.ops[wo_idx[-1]+1:] if d)
        e(f"s_waitcnt vmcnt({after + 8})")
        unpack_wo(0, 160, 192)
        vm.wait("wo")
        unpack_wo(8, 160, 192)
        vm.wait("res")
        e("v_lshlrev_b32 v110, 16, v108")
        e(f"v_and_b32 v111, s{S_MASK}, v108")
        vm.wait("poll1")
        e(f"""
    s_mov_b32 s{S_SPIN}, 0
    v_max3_u32 v24, v20, v21, v22
    v_max_u32 v24, v24, v23
    v_cmp_eq_u32 vcc, -1, v24
    s_nop 1
    s_cmp_eq_u64 vcc, 0
    s_cbranch_scc1 L_podone
    """)
    if cfg.get("drainA", True): e("s_waitcnt vmcnt(0)")
    MASKP = cfg.get("maskpoll", True)
    tailchk = """
    s_and_b64 exec, exec, vcc
    s_cbranch_execnz {L}
    s_mov_b64 exec, -1
    """ if MASKP else """
    s_nop 1
    s_cmp_eq_u64 vcc, 0
    s_cbranch_scc0 {L}
    """
    e(f"s_mov_b32 s{S_SPIN}, 0")
    if cfg.get("preA"):
        e(f"""
    {exmask(cfg['preA'])}
L_popre:
    buffer_load_dword v20, v99, {srd(SWS)}, s11 offen sc1
    s_add_u32 s{S_SPIN}, s{S_SPIN}, 1
    s_cmp_gt_u32 s{S_SPIN}, {SPIN}
    s_cbranch_scc1 L_end
    s_waitcnt vmcnt(0)
    v_cmp_eq_u32 vcc, -1, v20
    s_and_b64 exec, exec, vcc
    s_cbranch_execnz L_popre
    s_mov_b64 exec, -1
    """)
    e(f"""
L_pospin:
    buffer_load_dwordx4 v[20:23], v99, {srd(SWS)}, s11 offen sc1
    s_add_u32 s{S_SPIN}, s{S_SPIN}, 1
    s_cmp_gt_u32 s{S_SPIN}, {SPIN}
    s_cbranch_scc1 L_end
    s_waitcnt vmcnt(0)
    v_max3_u32 v24, v20, v21, v22
    v_max_u32 v24, v24, v23
    v_cmp_eq_u32 vcc, -1, v24
    """)
    e(tailchk.format(L="L_pospin"))
    e("L_podone:")
    vm.ops = []
    if STAMPS: e(f"s_mov_b32 s24, s{S_SPIN}")
    stamp()
    e("v_pk_mul_f32 v[20:21], v[20:21], v[100:101] op_sel:[0,0] op_sel_hi:[1,0]")
    e("v_pk_mul_f32 v[22:23], v[22:23], v[100:101] op_sel:[0,0] op_sel_hi:[1,0]")
    e("v_permlane32_swap_b32 v20, v22")
    e("v_permlane32_swap_b32 v21, v23")
    e("v_add_f32 v20, v20, v22")
    e("v_add_f32 v21, v21, v23")
    e("v_permlane16_swap_b32 v20, v21")
    e("v_add_f32 v20, v20, v21")
    for sh in (2, 4, 8):
        e(f"v_add_f32_dpp v20, v20, v20 row_ror:{sh} row_mask:0xf bank_mask:0xf")
    rbf(20, 20)
    e("s_mov_b32 exec_lo, 0x00030003")
    e("s_mov_b32 exec_hi, 0x00030003")
    e(f"ds_write_b32 v101, v20 offset:{L_OBC}")
    e("s_mov_b64 exec, -1")
    e("s_waitcnt lgkmcnt(0)")
    e("s_barrier")
    for k in range(8):
        e(f"ds_read_b128 v[{16+4*k}:{19+4*k}], v102 offset:{L_OBC+16*k}")
    for i in range(16):
        if i % 2 == 0: e(f"s_waitcnt lgkmcnt({7 - i//2})")
        rowfma((WOU+4*i, WOU+2+4*i), 16+2*i, False)
    vm.issue("pfst", f"buffer_store_dwordx4 v[{F0}:{F0+3}], v103, {srd(SWS)}, s96 offen sc1")
    vm.issue("pfst", f"buffer_store_dwordx4 v[{F1}:{F1+3}], v109, {srd(SWS)}, s97 offen sc1")
    if cfg.get("tstamps"): stamp()
    if cfg.get("sleepB"): e(f"s_sleep {cfg['sleepB']}")
    if cfg.get("drainB", True): e("s_waitcnt vmcnt(0)")
    e(f"s_mov_b32 s{S_SPIN}, 0")
    if cfg.get("preB"):
        e(f"""
    {exmask(cfg['preB'])}
L_pfpre:
    buffer_load_dword v20, v104, {srd(SWS)}, s98 offen offset:16 sc1
    s_add_u32 s{S_SPIN}, s{S_SPIN}, 1
    s_cmp_gt_u32 s{S_SPIN}, {SPIN}
    s_cbranch_scc1 L_end
    s_waitcnt vmcnt(0)
    v_cmp_eq_u32 vcc, -1, v20
    s_and_b64 exec, exec, vcc
    s_cbranch_execnz L_pfpre
    s_mov_b64 exec, -1
    """)
    e(f"""
L_pfspin:
    buffer_load_dwordx4 v[20:23], v104, {srd(SWS)}, s98 offen sc1
    buffer_load_dwordx4 v[24:27], v104, {srd(SWS)}, s98 offen offset:16 sc1
    s_add_u32 s{S_SPIN}, s{S_SPIN}, 1
    s_cmp_gt_u32 s{S_SPIN}, {SPIN}
    s_cbranch_scc1 L_end
    s_waitcnt vmcnt(0)
    v_max3_u32 v28, v20, v21, v22
    v_max3_u32 v29, v23, v24, v25
    v_max3_u32 v28, v28, v26, v27
    v_max_u32 v28, v28, v29
    v_cmp_eq_u32 vcc, -1, v28
    """)
    e(tailchk.format(L="L_pfspin"))
    vm.ops = []
    if STAMPS: e(f"s_mov_b32 s25, s{S_SPIN}")
    stamp()
    for c in range(4): e(f"v_permlane32_swap_b32 v{20+c}, v{24+c}")
    e("v_pk_add_f32 v[20:21], v[20:21], v[24:25]")
    e("v_pk_add_f32 v[22:23], v[22:23], v[26:27]")
    for c in range(2): e(f"v_permlane16_swap_b32 v{20+c}, v{22+c}")
    e("v_pk_add_f32 v[20:21], v[20:21], v[22:23]")
    for sh in (1, 2, 4, 8):
        for k in range(2): e(f"v_add_f32_dpp v{20+k}, v{20+k}, v{20+k} row_ror:{sh} row_mask:0xf bank_mask:0xf")
    e("s_mov_b32 exec_lo, 0x00010001")
    e("s_mov_b32 exec_hi, 0x00010001")
    e(f"ds_write_b64 v105, v[20:21] offset:{L_FIN}")
    e("s_mov_b64 exec, -1")
    e("s_waitcnt lgkmcnt(0)")
    e("s_barrier")
    e("s_cmp_lg_u32 s3, 0")
    e("s_cbranch_scc1 L_end")
    e("s_mov_b64 exec, 15")
    for w in range(4):
        e(f"ds_read_b64 v[{20+2*w}:{21+2*w}], v106 offset:{L_FIN+32*w}")
    e("s_waitcnt lgkmcnt(0)")
    e("v_pk_add_f32 v[20:21], v[20:21], v[22:23]")
    e("v_pk_add_f32 v[24:25], v[24:25], v[26:27]")
    e("v_pk_add_f32 v[20:21], v[20:21], v[24:25]")
    e("v_pk_add_f32 v[20:21], v[20:21], v[110:111]")
    e("v_cvt_pk_bf16_f32 v20, v20, v21")
    e(f"buffer_store_dword v20, v107, {srd(SOUT)}, s9 offen {cfg.get('osc','')}")
    if STAMPS:
        stamp()
        e("s_mov_b64 exec, 1")
        e(f"s_add_u32 s{SX}, s26, {240<<20}")
        e(f"s_addc_u32 s{SX+1}, s27, 0")
        e(f"s_and_b32 s{SX+1}, s{SX+1}, 0xffff")
        e(f"s_mov_b32 s{SX+2}, 0x10000")
        e(f"s_lshl_b32 s{T}, s2, 7")
        e("v_mov_b32 v2, 0")
        for k in range(stamp_n[0]):
            r = stamp_regs[k]
            e(f"v_mov_b32 v4, s{r}")
            e(f"v_mov_b32 v5, s{r+1}")
            e(f"buffer_store_dwordx2 v[4:5], v2, {srd(SX)}, s{T} offen offset:{8*k}")
            e("s_nop 2")
        e("v_mov_b32 v4, s24")
        e("v_mov_b32 v5, s25")
        e(f"buffer_store_dwordx2 v[4:5], v2, {srd(SX)}, s{T} offen offset:{8*15}")
    e("L_end:")
    e("s_endpgm")
    e(kernel_desc(NAME, 512, 102, 256))
    body, n = hazard.fix(e.text())
    hdr = HEADER_COMMENTS + f"; @launch grid=(256,1,1) block=(256,1,1) lds={LDS}\n" + '.amdgcn_target "amdgcn-amd-amdhsa--gfx950"\n.text\n'
    return hdr + body, n, LDS

if __name__ == "__main__":
    import json
    cfg = json.loads(sys.argv[2]) if len(sys.argv) > 2 else {}
    out = sys.argv[1]
    txt, n, lds = gen(cfg)
    open(out, "w").write(txt)
    print("nops inserted", n, "lines", txt.count("\n"), "lds", lds)
```

```python
import sys
from common import *
import hazard

NAME = "parallel_sum__gqa_block_cached__swiglu_ffn__decode_kernel"

class VM:
    def __init__(self, e): self.e = e; self.ops = []
    def issue(self, tag, line, definite=True):
        self.e(line); self.ops.append((tag, definite))
    def wait(self, tag):
        idx = [i for i, (t, d) in enumerate(self.ops) if t == tag]
        if not idx: return
        idx = max(idx)
        n = sum(1 for t, d in self.ops[idx+1:] if d)
        assert n <= 63, (tag, n)
        self.e(f"s_waitcnt vmcnt({n})")
        self.ops = self.ops[idx+1:]
        return n
    def count_after(self, tag):
        idx = max(i for i, (t, d) in enumerate(self.ops) if t == tag)
        return sum(1 for t, d in self.ops[idx+1:] if d)
    def wait_leave(self, n):
        if sum(1 for t, d in self.ops if d) <= n and all(d for t, d in self.ops): return
        self.e(f"s_waitcnt vmcnt({n})")
        while self.ops and sum(1 for t, d in self.ops[1:] if d) >= n: self.ops.pop(0)
    def drain(self):
        self.e("s_waitcnt vmcnt(0)"); self.ops = []

def gen(cfg):
    MIMIC = cfg.get("mimic", True)
    STAMPS = cfg.get("stamps", False)
    WIN = cfg.get("win", 16)
    NT = cfg.get("nt", "nt")
    NTW = cfg.get("ntw", "nt")
    SPIN = cfg.get("spin", 200000)
    e = E(); vm = VM(e)
    stamp_regs = [76+2*k for k in range(10)] + [12, 14, 16, 18, 20, 22]
    stamp_n = [0]
    def exmask(m):
        if isinstance(m, list): return f"s_mov_b32 exec_lo, {m[0]}\n    s_mov_b32 exec_hi, {m[1]}"
        return f"s_mov_b64 exec, {m}"
    def stamp():
        if not STAMPS: return
        if cfg.get("xst2") and stamp_n[0] >= 10: return
        k = stamp_n[0]; stamp_n[0] += 1
        r = stamp_regs[k]
        e(f"s_memrealtime s[{r}:{r+1}]")
        e("s_waitcnt lgkmcnt(0)")
    SX, SWQ, SWG, SWU, SK, SV, SWD, SWO, SWS, SOUT, SDBG = 28, 32, 36, 40, 44, 48, 52, 56, 60, 64, 68
    srd = lambda b: f"s[{b}:{b+3}]"
    S_MASK = 72
    S_T = 73; S_T2 = 74; S_SPIN = 75
    S_SEL0, S_SEL1 = 100, 101
    S_B, S_HKV, S_S, S_CB = 4, 5, 6, 7
    QP, GU, ML, PO, PF = 0, 0x20000, 0x60000, 0x100000, 0x200000
    L_HB = 1536
    L_MX = 1664
    L_LS = 1920
    L_OBC = 2176
    L_FIN = 2304
    L_OB = 2560
    OBW = 8*528
    LDS = L_OB + 4*OBW
    L_RED = L_OB
    L_XN = L_OB + 6144
    L_QS = L_OB + 8192
    T, T2 = S_T, S_T2

    if cfg.get("oddlight", False):
        RROLE = "s_and_b32 s{d}, s2, 1\n    s_lshl_b32 s{d}, s{d}, 7\n    s_lshr_b32 s98, s2, 1\n    s_add_u32 s{d}, s{d}, s98"
    elif cfg.get("ol2"):
        RROLE = ("s_and_b32 s{d}, s2, 1\n    s_lshl_b32 s{d}, s{d}, 5\n    s_sub_u32 s98, s2, 192\n    s_lshr_b32 s98, s98, 1\n"
                 "    s_add_u32 s{d}, s{d}, s98\n    s_add_u32 s{d}, s{d}, 192\n    s_cmp_lt_u32 s2, 192\n    s_cselect_b32 s{d}, s2, s{d}")
    else:
        RROLE = "s_mov_b32 s{d}, s2"
    KLINE = cfg.get("kline", True)
    KHI = "v_bfe_u32 v{t}, v1, 3, 1\n    v_lshlrev_b32 v{t}, 6, v{t}\n    v_add_u32 v{a}, v{a}, v{t}" if KLINE else ""
    e(kernel_head(NAME))
    if cfg.get("xst3"): stamp()
    e(f"""
    s_cmp_ge_u32 s2, 256
    s_cbranch_scc1 L_end
    {('s_xor_b32 s2, s2, %d' % cfg['jx']) if cfg.get('jx') else ''}
    {('s_branch L_pad' + chr(10) + ('    s_nop 0' + chr(10)) * (cfg['pad']//4 - 1) + 'L_pad:') if cfg.get('pad') else ''}
    s_load_dwordx16 s[4:19], s[0:1], 0
    s_load_dwordx8 s[20:27], s[0:1], 64
    v_and_b32 v1, 63, v0
    v_lshrrev_b32 v10, 6, v0
    v_readfirstlane_b32 s3, v10
    s_mov_b32 s{S_MASK}, 0xffff0000
    s_mov_b32 s{S_SEL0}, 0x05040100
    s_mov_b32 s{S_SEL1}, 0x07060302
    """)
    e(f"""
    {RROLE.format(d=97)}
    s_and_b32 s96, s97, 3              ; rq
    s_lshr_b32 s97, s97, 2             ; cg
    s_lshl_b32 s98, s96, 8             ; rq*256
    v_lshrrev_b32 v11, 3, v1
    v_lshlrev_b32 v12, 6, v10
    v_add_u32 v11, v11, v12
    v_add_u32 v11, s98, v11            ; row0
    v_and_b32 v12, 7, v1
    v_lshlrev_b32 v12, 4, v12          ; cc*16
    v_lshlrev_b32 v2, 13, v11
    v_add_u32 v2, v2, v12
    s_movk_i32 s{T}, 7168
    v_mul_lo_u32 v3, v11, s{T}
    v_add_u32 v3, v3, v12
    v_lshlrev_b32 v4, 5, v1
    v_lshlrev_b32 v5, 6, v10
    v_add_u32 v5, v5, v1
    v_add_u32 v5, s98, v5
    v_lshlrev_b32 v5, 1, v5
    v_lshlrev_b32 v57, 3, v0
    v_and_b32 v11, 3, v1
    v_lshlrev_b32 v11, 2, v11
    v_bfe_u32 v12, v1, 2, {1 if KLINE else 2}
    v_add_u32 v11, v11, v12
    v_lshlrev_b32 v11, 8, v11
    v_lshrrev_b32 v12, 4, v1
    v_lshlrev_b32 v12, 4, v12
    v_add_u32 v11, v11, v12
    {KHI.format(a=11, t=12)}
    v_lshlrev_b32 v12, {13 if cfg.get("ilv") else 16}, v10
    v_add_u32 v6, v11, v12
    v_add_u32 v7, 4096, v6
    v_lshlrev_b32 v11, 4, v1
    v_add_u32 v8, v11, v12
    v_add_u32 v9, 4096, v8
    s_waitcnt lgkmcnt(0)
    s_lshl_b32 s0, s97, 2
    s_add_u32 s0, s0, s96              ; r
    """)
    stamp()
    def mk_srd(dst, plo, off_sgpr, size):
        if off_sgpr is None:
            e(f"s_mov_b32 s{dst}, s{plo}")
            e(f"s_and_b32 s{dst+1}, s{plo+1}, 0xffff")
        else:
            e(f"s_add_u32 s{dst}, s{plo}, s{off_sgpr}")
            e(f"s_addc_u32 s{dst+1}, s{plo+1}, 0")
            e(f"s_and_b32 s{dst+1}, s{dst+1}, 0xffff")
        e(f"s_mov_b32 s{dst+2}, {size}")
        e(f"s_mov_b32 s{dst+3}, 0x20000")
    mk_srd(SX, 4, None, 4096)
    for b in range(2):
        for hlf in range(2):
            vm.issue("x", f"buffer_load_dwordx4 v[{16+8*b+4*hlf}:{19+8*b+4*hlf}], v4, {srd(SX)}, 0 offen offset:{b*2048+hlf*16}")
    for b in range(2):
        vm.issue("x", f"buffer_load_ushort v{32+b}, v5, {srd(SX)}, 0 offen offset:{b*2048}")
    if cfg.get("xq"): e(f"s_xor_b32 s97, s97, {cfg['xq']}")
    e(f"s_lshl_b32 s{T}, s97, 7")
    if cfg.get("xq"): e(f"s_xor_b32 s97, s97, {cfg['xq']}")
    if cfg.get("xst2"): stamp()
    mk_srd(SWQ, 10, T, 0)
    e(f"s_sub_u32 s{SWQ+2}, 0x800000, s{T}")
    e(f"s_mov_b32 s{T2}, 0")
    for i in range(8):
        vm.issue("wq", f"buffer_load_dwordx4 v[{128+4*i}:{131+4*i}], v2, {srd(SWQ)}, s{T2} offen {NTW}")
        if i < 7: e(f"s_add_u32 s{T2}, s{T2}, {8*8192}")
    if cfg.get("xg"): e(f"s_xor_b32 s97, s97, {cfg['xg']}")
    e(f"s_lshl_b32 s{T}, s97, 7")
    if cfg.get("xg"): e(f"s_xor_b32 s97, s97, {cfg['xg']}")
    MM = cfg.get("mm", True)
    XG, XU = (2, 4) if MM else (0, 0)
    if MM: e(f"s_xor_b32 s{T}, s{T}, {XG << 7}")
    if cfg.get("xst2"): stamp()
    mk_srd(SWG, 16, T, 0)
    e(f"s_sub_u32 s99, {7<<20}, s{T}")
    if MM: e(f"s_xor_b32 s{T}, s{T}, {(XG ^ XU) << 7}")
    mk_srd(SWU, 18, T, 0)
    e(f"""
    s_sub_u32 s{T2}, {7<<20}, s{T}
    s_cmp_lt_u32 s0, 224
    s_cselect_b32 s{SWG+2}, s99, 0
    s_cselect_b32 s{SWU+2}, s{T2}, 0
    s_mov_b32 s{T2}, 0
    """)
    for i in range(8):
        vm.issue("wg", f"buffer_load_dwordx4 v[{160+4*i}:{163+4*i}], v3, {srd(SWG)}, s{T2} offen {NTW}")
        if i < 7: e(f"s_add_u32 s{T2}, s{T2}, {8*7168}")
    e(f"s_mov_b32 s{T2}, 0")
    for i in range(8):
        vm.issue("wu", f"buffer_load_dwordx4 v[{192+4*i}:{195+4*i}], v3, {srd(SWU)}, s{T2} offen {NTW}")
        if i < 7: e(f"s_add_u32 s{T2}, s{T2}, {8*7168}")
    if cfg.get("xst2"): stamp()
    mk_srd(SWS, 26, None, 0x400000)
    NOCLR = cfg.get("noclr", False)
    CLRPOS = cfg.get("clrpos", "early")
    def clears():
        e(f"""
        v_mov_b32 v112, -1
        v_mov_b32 v113, -1
        v_mov_b32 v114, -1
        v_mov_b32 v115, -1
        v_lshlrev_b32 v11, 4, v0           ; tid*16
        s_lshl_b32 s{T}, s2, 12
        s_add_u32 s{T}, s{T}, {PO}
        """)
        if not NOCLR: vm.issue("clr", f"buffer_store_dwordx4 v[112:115], v11, {srd(SWS)}, s{T} offen sc1")
        e(f"""
        s_lshl_b32 s{T}, s2, 13
        s_add_u32 s{T}, s{T}, {PF}
        """)
        if not NOCLR: vm.issue("clr", f"buffer_store_dwordx4 v[112:115], v11, {srd(SWS)}, s{T} offen sc1")
        e(f"s_add_u32 s{T}, s{T}, 4096")
        if not NOCLR: vm.issue("clr", f"buffer_store_dwordx4 v[112:115], v11, {srd(SWS)}, s{T} offen sc1")
        e(f"""
        v_lshlrev_b32 v12, 4, v10          ; w*16
        s_lshl_b32 s{T}, s2, 6
        s_add_u32 s{T}, s{T}, {ML}
        s_mov_b64 exec, 1
        """)
        if not NOCLR: vm.issue("clr", f"buffer_store_dwordx4 v[112:115], v12, {srd(SWS)}, s{T} offen sc1")
        e("s_mov_b64 exec, -1")

    if CLRPOS == "early": clears()
    e(f"s_lshl_b32 s{T}, s0, 15")
    if cfg.get("xst2"): stamp()
    mk_srd(SWD, 20, T, 0)
    e(f"""
    s_cmp_lt_u32 s0, 224
    s_cselect_b32 s{SWD+2}, 0x8000, 0
    """)
    WDR = 224
    def load_wd(WDR=WDR, voff=57):
        e(f"s_mov_b32 s{T2}, 0")
        for i in range(16):
            vm.issue("wd", f"buffer_load_dwordx2 v[{WDR+2*i}:{WDR+2*i+1}], v{voff}, {srd(SWD)}, s{T2} offen {NT}")
            if i < 15: e(f"s_add_u32 s{T2}, s{T2}, 2048")
    if cfg.get("xmap", False):
        e(f"""
    s_and_b32 s99, s2, 7
    s_lshl_b32 s99, s99, 5
    s_lshr_b32 s{T}, s2, 3
    s_add_u32 s99, s99, s{T}
    """)
    else:
        e("s_mov_b32 s99, s2")
    ILV = cfg.get("ilv", False)
    TSTR = (1 << 20) if ILV else 8192
    if ILV:
        e(f"s_lshr_b32 s{T}, s99, 5")
        e(f"s_lshl_b32 s{T}, s{T}, 23")
        e(f"s_and_b32 s{T2}, s99, 31")
        e(f"s_lshl_b32 s{T2}, s{T2}, 15")
        e(f"s_add_u32 s{T}, s{T}, s{T2}")
    else:
        e(f"s_lshl_b32 s{T}, s99, 18")
    kvsz = 0 if cfg.get("nokv") else (0x708000 if ILV else 0x40000)
    mk_srd(SK, 6, T, kvsz)
    mk_srd(SV, 8, T, kvsz)
    e(f"""
    s_lshr_b32 s{T}, s2, 3
    s_lshl_b32 s{T}, s{T}, 7
    s_bfe_u32 s{T2}, s2, 0x20001       ; (dq>>1)
    s_lshl_b32 s{T2}, s{T2}, 5
    s_add_u32 s{T}, s{T}, s{T2}
    s_and_b32 s{T2}, s2, 1
    s_lshl_b32 s{T2}, s{T2}, 2
    s_add_u32 s{T}, s{T}, s{T2}
    s_lshl_b32 s{T}, s{T}, 11
    """)
    mk_srd(SWO, 12, T, 28*2048)
    mk_srd(SOUT, 22, None, 4096)
    mk_srd(SDBG, 24, None, 256)
    PF_LIST = cfg.get("tlbpf", "")
    if PF_LIST:
        e("v_mov_b32 v116, 0")
        e("s_mov_b64 exec, 1")
        for ch in PF_LIST:
            reg, sr = {"k": (6, SK), "v": (8, SV), "o": (116, SWO), "d": (116, SWD), "y": (116, SOUT), "g": (116, SDBG)}[ch]
            vm.issue("pf", f"buffer_load_dword v117, v{reg}, {srd(sr)}, 0 offen")
        e("s_mov_b64 exec, -1")
    e(f"""
    s_lshr_b32 s{S_B}, s99, 7
    s_bfe_u32 s{S_HKV}, s99, 0x20005
    s_and_b32 s{S_S}, s99, 31
    s_mov_b32 s{S_CB}, s97           ; cg
    s_mov_b32 s8, s96                 ; rq
    s_and_b32 s{T}, s2, 127
    s_lshl_b32 s{T}, s{T}, 4
    s_lshr_b32 s{T2}, s2, 7
    s_lshl_b32 s{T2}, s{T2}, 11
    s_add_u32 s9, s{T}, s{T2}
    """)
    if cfg.get("xst"): stamp()
    vm.wait("x")
    if cfg.get("xst"): stamp()
    XS = 64
    for b in range(2):
        for q in range(8):
            e(f"v_lshlrev_b32 v{XS+16*b+2*q}, 16, v{16+8*b+q}")
            e(f"v_and_b32 v{XS+16*b+2*q+1}, s{S_MASK}, v{16+8*b+q}")
    def wave_red(regs, op="add", tmp=104, shifts=(8, 4, 2, 1)):
        o = {"add": "v_add_f32", "max": "v_max_f32"}[op]
        for sh in shifts:
            for r in regs: e(f"{o}_dpp v{r}, v{r}, v{r} row_ror:{sh} row_mask:0xf bank_mask:0xf")
        for sw in ("v_permlane16_swap_b32", "v_permlane32_swap_b32"):
            for k, r in enumerate(regs): e(f"v_mov_b32 v{tmp+k}, v{r}")
            for k, r in enumerate(regs): e(f"{sw} v{r}, v{tmp+k}")
            for k, r in enumerate(regs): e(f"{o} v{r}, v{r}, v{tmp+k}")
    for b in range(2):
        e(f"v_add_f32 v{96+b}, v{XS+16*b}, v{XS+16*b+1}")
    for q in range(2, 16):
        for b in range(2):
            e(f"v_add_f32 v{96+b}, v{96+b}, v{XS+16*b+q}")
    wave_red([96, 97])
    def rbf(dst, src):
        e(f"v_cvt_pk_bf16_f32 v{dst}, v{src}, v{src}")
        e(f"v_and_b32 v{dst}, s{S_MASK}, v{dst}")
    for b in range(2): e(f"v_mul_f32 v{96+b}, 0x3a800000, v{96+b}")
    for q in range(16):
        for b in range(2):
            e(f"v_sub_f32 v{XS+16*b+q}, v{XS+16*b+q}, v{96+b}")
    for b in range(2): e(f"v_mul_f32 v{98+b}, v{XS+16*b}, v{XS+16*b}")
    for q in range(1, 16):
        for b in range(2):
            e(f"v_fmac_f32 v{98+b}, v{XS+16*b+q}, v{XS+16*b+q}")
    wave_red([98, 99])
    for b in range(2):
        e(f"v_mul_f32 v{98+b}, 0x3a800000, v{98+b}")
        rbf(98+b, 98+b)
        e(f"v_add_f32 v{98+b}, 0x3727c5ac, v{98+b}")
        rbf(98+b, 98+b)
        e(f"v_sqrt_f32 v{98+b}, v{98+b}")
        rbf(98+b, 98+b)
        rbf(96+b, 96+b)
        e(f"v_rcp_f32 v{100+b}, v{98+b}")
    for b in range(2):
        e(f"v_lshlrev_b32 v{64+b}, 16, v{32+b}")
    for b in range(2):
        e(f"v_sub_f32 v{64+b}, v{64+b}, v{96+b}")
    for b in range(2): rbf(64+b, 64+b)
    for b in range(2):
        e(f"v_mul_f32 v102, v{64+b}, v{100+b}")
        e(f"v_fma_f32 v103, -v102, v{98+b}, v{64+b}")
        e(f"v_fma_f32 v{64+b}, v103, v{100+b}, v102")
    for b in range(2): rbf(64+b, 64+b)
    e(f"""
    v_lshlrev_b32 v11, 9, v10
    v_lshlrev_b32 v12, 3, v1
    v_add_u32 v12, v12, v11             ; w*512 + l*8
    ds_write_b64 v12, v[64:65] offset:{L_XN}
    v_lshrrev_b32 v12, 3, v1
    v_lshlrev_b32 v12, 3, v12
    v_add_u32 v12, v12, v11             ; w*512 + (l>>3)*8
    s_waitcnt lgkmcnt(0)
    """)
    for i in range(8):
        e(f"ds_read_b64 v[{40+2*i}:{41+2*i}], v12 offset:{L_XN+64*i}")
    e(f"""
    v_and_b32 v14, 7, v1
    v_lshlrev_b32 v14, 5, v14
    v_lshrrev_b32 v12, 4, v1
    v_lshlrev_b32 v12, 3, v12
    v_add_u32 v14, v14, v12
    v_add_u32 v14, v14, v11
    s_waitcnt lgkmcnt(0)
    """)
    stamp()
    ACC = 96
    def gemv(wbase, m):
        for i in range(8):
            for q in range(4):
                t = 112 + 2*((i*4+q) & 1)
                w = wbase + 4*i + q
                e(f"v_lshlrev_b32 v{t}, 16, v{w}")
                e(f"v_and_b32 v{t+1}, s{S_MASK}, v{w}")
                for p in range(2):
                    a = ACC + 2*(2*q+p)
                    sel = "op_sel:[0,0,0] op_sel_hi:[0,1,1]" if p == 0 else "op_sel:[1,0,0] op_sel_hi:[1,1,1]"
                    if i == 0:
                        sel2 = "op_sel:[0,0] op_sel_hi:[0,1]" if p == 0 else "op_sel:[1,0] op_sel_hi:[1,1]"
                        e(f"v_pk_mul_f32 v[{a}:{a+1}], v[{t}:{t+1}], v[40:41] {sel2}")
                    else:
                        e(f"v_pk_fma_f32 v[{a}:{a+1}], v[{t}:{t+1}], v[{40+2*i}:{41+2*i}], v[{a}:{a+1}] {sel}")
        A = lambda c, b: ACC + 2*c + b
        for c in range(4):
            for b in range(2): e(f"v_permlane32_swap_b32 v{A(c,b)}, v{A(c+4,b)}")
        for c in range(4):
            e(f"v_pk_add_f32 v[{A(c,0)}:{A(c,1)}], v[{A(c,0)}:{A(c,1)}], v[{A(c+4,0)}:{A(c+4,1)}]")
        for c in range(2):
            for b in range(2): e(f"v_permlane16_swap_b32 v{A(c,b)}, v{A(c+2,b)}")
        for c in range(2):
            e(f"v_pk_add_f32 v[{A(c,0)}:{A(c,1)}], v[{A(c,0)}:{A(c,1)}], v[{A(c+2,0)}:{A(c+2,1)}]")
        for k in range(4): e(f"v_add_f32_dpp v{ACC+k}, v{ACC+k}, v{ACC+k} row_ror:8 row_mask:0xf bank_mask:0xf")
        e(f"v_swap_b32 v{ACC+1}, v{ACC+2}")
        e("s_mov_b32 exec_lo, 0x00ff00ff")
        e("s_mov_b32 exec_hi, 0x00ff00ff")
        e(f"ds_write_b64 v14, v[{ACC}:{ACC+1}] offset:{L_RED+m*2048}")
        e(f"ds_write_b64 v14, v[{ACC+2}:{ACC+3}] offset:{L_RED+m*2048+256}")
        e("s_mov_b64 exec, -1")
    def load_k(t):
        e(f"s_mov_b32 s{T2}, {t*TSTR}")
        for u in range(2):
            for j in range(4):
                a = 32*t + 16*u + 4*j
                vm.issue(f"k{t}", f"buffer_load_dwordx4 a[{a}:{a+3}], v{(8 if cfg.get('kfull') else 6)+u}, {srd(SK)}, s{T2} offen offset:{j*1024 if cfg.get('kfull') else ((j>>1)*512 + (j&1)*128 if KLINE else j*64)} {NT}")
    def load_v(t):
        e(f"s_mov_b32 s{T2}, {t*TSTR}")
        for i in range(8):
            r = 128 + 32*(t & 3) + 4*i
            vm.issue(f"v{t}", f"buffer_load_dwordx4 v[{r}:{r+3}], v{8+(i>>2)}, {srd(SV)}, s{T2} offen offset:{(i&3)*1024} {NT}")
    WINV = [WIN]
    def pace(next_n):
        vm.wait_leave(max(WINV[0] - next_n, 0))
    if CLRPOS == "ln": clears()
    load_k(0)
    vm.wait("wq")
    stamp()
    gemv(128, 0)
    if CLRPOS == "q": clears()
    load_k(1)
    vm.wait("wg")
    gemv(160, 1)
    if CLRPOS == "g": clears()
    LATE = cfg.get("late", True)
    if not LATE: load_wd()
    vm.wait("wu")
    stamp()
    gemv(192, 2)
    e("s_waitcnt lgkmcnt(0)")
    e("s_barrier")
    e(f"""
    s_cmp_lg_u32 s3, 0
    s_cbranch_scc1 L_nopub
    v_lshrrev_b32 v11, 5, v1
    v_lshlrev_b32 v11, 11, v11          ; m*2048
    v_bfe_u32 v12, v1, 4, 1
    v_lshlrev_b32 v13, 8, v12           ; b*256
    v_add_u32 v11, v11, v13
    v_and_b32 v14, 15, v1
    v_lshlrev_b32 v15, 4, v14           ; c4*16
    v_add_u32 v11, v11, v15
    v_and_b32 v58, 0x7ff, v11
    """)
    for w in range(4):
        e(f"ds_read_b128 v[{96+4*w}:{99+4*w}], v11 offset:{L_RED+w*512}")
    for w in range(4):
        e(f"ds_read_b128 v[{64+4*w}:{67+4*w}], v58 offset:{L_RED+4096+w*512}")
    e(f"""
    v_lshlrev_b32 v59, 14, v12
    v_add_u32 v59, v59, v15
    s_lshl_b32 s{T}, s8, 15
    s_lshl_b32 s{T2}, s{S_CB}, 8
    s_add_u32 s{T}, s{T}, s{T2}
    v_add_u32 v59, s{T}, v59
    v_lshrrev_b32 v60, 2, v14
    v_lshlrev_b32 v60, 10, v60
    v_lshlrev_b32 v61, 6, v12
    v_add_u32 v60, v60, v61
    v_and_b32 v61, 3, v14
    v_lshlrev_b32 v61, 4, v61
    v_add_u32 v60, v60, v61
    s_lshl_b32 s{T}, s{S_CB}, 12
    s_lshl_b32 s{T2}, s8, 8
    s_add_u32 s{T}, s{T}, s{T2}
    s_add_u32 s{T}, s{T}, {GU}
    s_xor_b32 s{T}, s{T}, {XG << 12}
    v_add_u32 v60, s{T}, v60
    v_cmp_gt_u32 vcc, 32, v1
    v_cndmask_b32 v59, v60, v59, vcc
    v_xor_b32 v60, {(XG ^ XU) << 12}, v60
    v_add_u32 v60, 128, v60             ; u address
    s_waitcnt lgkmcnt(4)
    v_pk_add_f32 v[96:97], v[96:97], v[100:101]
    v_pk_add_f32 v[98:99], v[98:99], v[102:103]
    v_pk_add_f32 v[104:105], v[104:105], v[108:109]
    v_pk_add_f32 v[106:107], v[106:107], v[110:111]
    v_pk_add_f32 v[96:97], v[96:97], v[104:105]
    v_pk_add_f32 v[98:99], v[98:99], v[106:107]
    """)
    vm.issue("pub", f"buffer_store_dwordx4 v[96:99], v59, {srd(SWS)}, 0 offen sc1", definite=False)
    e(f"""
    s_waitcnt lgkmcnt(0)
    v_pk_add_f32 v[64:65], v[64:65], v[68:69]
    v_pk_add_f32 v[66:67], v[66:67], v[70:71]
    v_pk_add_f32 v[72:73], v[72:73], v[76:77]
    v_pk_add_f32 v[74:75], v[74:75], v[78:79]
    v_pk_add_f32 v[64:65], v[64:65], v[72:73]
    v_pk_add_f32 v[66:67], v[66:67], v[74:75]
    s_mov_b32 exec_hi, 0
    """)
    vm.issue("pub", f"buffer_store_dwordx4 v[64:67], v60, {srd(SWS)}, 0 offen sc1", definite=False)
    e("s_mov_b64 exec, -1")
    e("L_nopub:")
    load_k(2)
    stamp()
    vm.wait_leave(8)
    assert all(t in ("k2",) for t, d in vm.ops), vm.ops
    e("s_barrier")
    e("s_cmp_lg_u32 s3, 0")
    e("s_cbranch_scc1 L_nosig")
    e(f"""
    v_mov_b32 v11, 1
    s_and_b32 s{T}, s2, 3
    s_lshl_b32 s{T}, s{T}, 6
    v_mov_b32 v12, s{T}
    s_mov_b64 exec, 1
    """)
    vm.issue("sig", f"buffer_atomic_add v11, v12, {srd(SDBG)}, 0 offen sc1", definite=False)
    e("s_mov_b64 exec, -1")
    e("L_nosig:")
    load_k(3)
    POLLK = cfg.get("pollk", 6)
    for t in range(4, POLLK):
        pace(8); load_k(t)
    e(f"""
    s_cmp_lg_u32 s3, 0
    s_cbranch_scc1 L_nopoll1
    v_and_b32 v40, 3, v1
    v_lshlrev_b32 v40, 6, v40
    """)
    vm.issue("poll", f"buffer_load_dword v41, v40, {srd(SDBG)}, 0 offen sc1", definite=False)
    e("L_nopoll1:")
    pace(8); load_k(POLLK)
    e("s_cmp_lg_u32 s3, 0")
    e("s_cbranch_scc1 L_qok")
    e(f"s_waitcnt vmcnt({vm.count_after('poll')})")
    e(f"""
    s_mov_b32 s{S_SPIN}, 0
L_qspin:
    v_cmp_eq_u32 vcc, 64, v41
    s_nop 1
    s_cmp_eq_u64 vcc, -1
    s_cbranch_scc1 L_qok
    s_add_u32 s{S_SPIN}, s{S_SPIN}, 1
    s_cmp_gt_u32 s{S_SPIN}, {SPIN}
    s_cbranch_scc1 L_end
    buffer_load_dword v41, v40, {srd(SDBG)}, 0 offen sc1
    s_waitcnt vmcnt(0)
    s_branch L_qspin
L_qok:
    s_barrier
    v_lshlrev_b32 v40, 4, v0
    s_lshl_b32 s{T}, s{S_B}, 14
    s_lshl_b32 s{T2}, s{S_HKV}, 12
    s_add_u32 s{T}, s{T}, s{T2}
    """)
    for rq in range(4):
        vm.issue("q", f"buffer_load_dwordx4 v[{16+4*rq}:{19+4*rq}], v40, {srd(SWS)}, s{T} offen sc1")
        if rq < 3: e(f"s_add_u32 s{T}, s{T}, 32768")
    e(f"""
    v_lshlrev_b32 v41, 4, v1
    s_lshl_b32 s{T}, s0, 10
    s_add_u32 s{T}, s{T}, {GU}
    """)
    vm.issue("q", f"buffer_load_dwordx4 v[32:35], v41, {srd(SWS)}, s{T} offen sc1")
    for t in range(POLLK+1, 8):
        load_k(t)
    e(f"""
    v_lshrrev_b32 v42, 5, v0
    v_lshlrev_b32 v42, 4, v42           ; (t>>5)*16
    v_lshlrev_b32 v43, 3, v0
    v_add_u32 v42, v42, v43
    v_and_b32 v43, 7, v1
    v_mul_u32_u24 v43, 272, v43
    v_lshrrev_b32 v44, 4, v1
    v_lshlrev_b32 v44, 4, v44
    v_add_u32 v43, v43, v44
    {KHI.format(a=43, t=44)}
    v_and_b32 v44, 3, v1
    v_lshlrev_b32 v44, 5, v44
    v_lshrrev_b32 v45, 4, v1
    v_lshlrev_b32 v45, 3, v45
    v_add_u32 v44, v44, v45
    v_bfe_u32 v45, v1, 2, 1
    v_lshlrev_b32 v45, 2, v45
    v_add_u32 v44, v44, v45
    """)
    vm.wait("q")
    stamp()
    e(f"""
    v_pk_add_f32 v[16:17], v[16:17], v[20:21]
    v_pk_add_f32 v[18:19], v[18:19], v[22:23]
    v_pk_add_f32 v[24:25], v[24:25], v[28:29]
    v_pk_add_f32 v[26:27], v[26:27], v[30:31]
    v_pk_add_f32 v[16:17], v[16:17], v[24:25]
    v_pk_add_f32 v[18:19], v[18:19], v[26:27]
    v_cvt_pk_bf16_f32 v16, v16, v17
    v_cvt_pk_bf16_f32 v17, v18, v19
    ds_write_b64 v42, v[16:17] offset:{L_QS}
    v_permlane32_swap_b32 v32, v34
    v_permlane32_swap_b32 v33, v35
    v_pk_add_f32 v[32:33], v[32:33], v[34:35]
    v_permlane16_swap_b32 v32, v33
    v_add_f32 v96, v32, v33
    """)
    rbf(96, 96)
    e(f"""
    v_mov_b32_dpp v100, v96 row_ror:8 row_mask:0xf bank_mask:0xf     ; u
    v_mul_f32 v98, 0xbfb8aa3b, v96      ; -g*log2e
    v_exp_f32 v98, v98
    v_add_f32 v98, 1.0, v98
    v_rcp_f32 v99, v98
    v_mul_f32 v101, v96, v99
    v_fma_f32 v102, -v101, v98, v96
    v_fma_f32 v102, v102, v99, v101
    v_cmp_eq_f32 vcc, 0x7f800000, v98
    v_cndmask_b32 v101, v102, v101, vcc
    """)
    rbf(101, 101)
    e("v_mul_f32 v101, v101, v100")
    rbf(101, 101)
    e("s_mov_b32 exec_lo, 0x00ff00ff")
    e("s_mov_b32 exec_hi, 0x00ff00ff")
    e(f"ds_write_b32 v44, v101 offset:{L_HB}")
    e("s_mov_b64 exec, -1")
    e("v_mov_b32 v11, 0")
    e("s_waitcnt lgkmcnt(0)")
    e("s_barrier")
    for j in range(2 if KLINE else 4):
        e(f"ds_read_b128 v[{16+4*j}:{19+4*j}], v43 offset:{L_QS+(128 if KLINE else 64)*j}")
    if not LATE:
        for k in range(8):
            e(f"ds_read_b128 v[{64+4*k}:{67+4*k}], v11 offset:{L_HB+16*k}")
    load_v(0)
    if not LATE: vm.wait("wd")
    e("s_waitcnt lgkmcnt(0)")
    F0, F1 = 2, 12
    def rowfma(wreg_pairs, opair, first):
        for b, F in ((0, F0), (1, F1)):
            for hlf in range(2):
                wp = wreg_pairs[hlf]; a = F + 2*hlf
                if first:
                    e(f"v_pk_mul_f32 v[{a}:{a+1}], v[{wp}:{wp+1}], v[{opair}:{opair+1}] op_sel:[0,{b}] op_sel_hi:[1,{b}]")
                else:
                    e(f"v_pk_fma_f32 v[{a}:{a+1}], v[{wp}:{wp+1}], v[{opair}:{opair+1}], v[{a}:{a+1}] op_sel:[0,{b},0] op_sel_hi:[1,{b},1]")
    def ffn_down(wdr, tb):
        for i in range(16):
            t = tb + 4*(i & 1)
            for d in range(2):
                e(f"v_lshlrev_b32 v{t+2*d}, 16, v{wdr+2*i+d}")
                e(f"v_and_b32 v{t+2*d+1}, s{S_MASK}, v{wdr+2*i+d}")
            rowfma((t, t+2), 64+2*i, i == 0)
    if not LATE: ffn_down(WDR, 96)
    pace(8); load_v(1)
    SCALE = 0x3db504f3
    e(f"s_mov_b32 s10, {hex(SCALE)}")
    e(f"s_mov_b32 s11, {hex(SCALE)}")
    def qk(t):
        if KLINE:
            for ln in range(2):
                for u in range(2):
                    for h in range(2):
                        a = 32*t + 16*u + 4*(2*h + ln)
                        s = (24 + 8*(t & 1) + 4*u) if h else (64 + 8*t + 4*u)
                        c = "0" if ln == 0 else f"v[{s}:{s+3}]"
                        e(f"v_mfma_f32_16x16x32_bf16 v[{s}:{s+3}], a[{a}:{a+3}], v[{16+4*ln}:{19+4*ln}], {c}")
            return
        for j in range(4):
            for u in range(2):
                a = 32*t + 16*u + 4*j; s = 64 + 8*t + 4*u
                c = "0" if j == 0 else f"v[{s}:{s+3}]"
                e(f"v_mfma_f32_16x16x32_bf16 v[{s}:{s+3}], a[{a}:{a+3}], v[{16+4*j}:{19+4*j}], {c}")
    def rnd(t):
        if KLINE:
            for r in range(8): e(f"v_permlane32_swap_b32 v{64+8*t+r}, v{24+8*(t&1)+r}")
            for r in range(8): e(f"v_add_f32_dpp v{64+8*t+r}, v{24+8*(t&1)+r}, v{64+8*t+r} row_ror:8 row_mask:0xf bank_mask:0xf")
        for z in range(4):
            r = 64 + 8*t + 2*z; tmp = 40 + (z & 1)
            if MIMIC:
                e(f"v_cvt_pk_bf16_f32 v{tmp}, v{r}, v{r+1}")
                e(f"v_lshlrev_b32 v{r}, 16, v{tmp}")
                e(f"v_and_b32 v{r+1}, s{S_MASK}, v{tmp}")
                e(f"v_pk_mul_f32 v[{r}:{r+1}], v[{r}:{r+1}], s[10:11]")
                e(f"v_cvt_pk_bf16_f32 v{tmp}, v{r}, v{r+1}")
                e(f"v_lshlrev_b32 v{r}, 16, v{tmp}")
                e(f"v_and_b32 v{r+1}, s{S_MASK}, v{tmp}")
            else:
                e(f"v_pk_mul_f32 v[{r}:{r+1}], v[{r}:{r+1}], s[10:11]")
    vm.wait("k7")
    qk(0); qk(1); rnd(0); qk(2); rnd(1); qk(3); rnd(2)
    load_v(2)
    qk(4); rnd(3); qk(5); rnd(4); qk(6); rnd(5); qk(7); rnd(6)
    load_v(3)
    rnd(7)
    stamp()
    e("v_max3_f32 v40, v64, v65, v66")
    e("v_max3_f32 v41, v67, v68, v69")
    k = 70
    while k + 3 < 128:
        e(f"v_max3_f32 v40, v40, v{k}, v{k+1}")
        e(f"v_max3_f32 v41, v41, v{k+2}, v{k+3}")
        k += 4
    e(f"v_max3_f32 v40, v40, v{k}, v{k+1}")
    e("v_max_f32 v40, v40, v41")
    for sw in ("v_permlane16_swap_b32", "v_permlane32_swap_b32"):
        e("v_mov_b32 v41, v40")
        e(f"{sw} v40, v41")
        e("v_max_f32 v40, v40, v41")
    e(f"""
    v_and_b32 v42, 15, v1
    v_lshlrev_b32 v42, 2, v42           ; n*4
    v_lshlrev_b32 v43, 6, v10
    v_add_u32 v43, v43, v42             ; w*64+n*4
    ds_write_b32 v43, v40 offset:{L_MX}
    s_waitcnt lgkmcnt(0)
    s_barrier
    ds_read_b32 v44, v42 offset:{L_MX}
    ds_read_b32 v45, v42 offset:{L_MX+64}
    ds_read_b32 v46, v42 offset:{L_MX+128}
    ds_read_b32 v47, v42 offset:{L_MX+192}
    s_mov_b32 s10, 0x3fb8aa3b
    s_waitcnt lgkmcnt(0)
    v_max3_f32 v44, v44, v45, v46
    v_max_f32 v44, v44, v47
    v_mul_f32 v45, s10, v44             ; M*log2e
    """)
    for r in range(64, 128):
        e(f"v_fma_f32 v{r}, v{r}, s10, -v45")
    for r in range(64, 128):
        e(f"v_exp_f32 v{r}, v{r}")
    e("v_add_f32 v46, v64, v65")
    e("v_add_f32 v47, v66, v67")
    for r in range(68, 128, 2):
        e(f"v_add_f32 v46, v46, v{r}")
        e(f"v_add_f32 v47, v47, v{r+1}")
    e("v_add_f32 v46, v46, v47")
    for z in range(32):
        e(f"v_cvt_pk_bf16_f32 v{64+z}, v{64+2*z}, v{65+2*z}")
    for sw in ("v_permlane16_swap_b32", "v_permlane32_swap_b32"):
        e("v_mov_b32 v47, v46")
        e(f"{sw} v46, v47")
        e("v_add_f32 v46, v46, v47")
    e(f"ds_write_b32 v43, v46 offset:{L_LS}")
    e(f"""
    s_waitcnt lgkmcnt(0)
    s_barrier
    s_cmp_lg_u32 s3, 0
    s_cbranch_scc1 L_noml
    ds_read_b32 v46, v42 offset:{L_LS}
    ds_read_b32 v47, v42 offset:{L_LS+64}
    ds_read_b32 v48, v42 offset:{L_LS+128}
    ds_read_b32 v49, v42 offset:{L_LS+192}
    v_lshlrev_b32 v50, 7, v42           ; n*512
    s_lshl_b32 s{T}, s{S_HKV}, 12       ; hkv*8*512
    s_lshl_b32 s{T2}, s{S_B}, 8
    s_add_u32 s{T}, s{T}, s{T2}
    s_lshl_b32 s{T2}, s{S_S}, 3
    s_add_u32 s{T}, s{T}, s{T2}
    s_add_u32 s{T}, s{T}, {ML}
    s_waitcnt lgkmcnt(0)
    v_add_f32 v46, v46, v47
    v_add_f32 v48, v48, v49
    v_add_f32 v45, v46, v48
    s_mov_b64 exec, 0xff
    """)
    vm.issue("mlst", f"buffer_store_dwordx2 v[44:45], v50, {srd(SWS)}, s{T} offen sc1", definite=False)
    e("s_mov_b64 exec, -1")
    e("L_noml:")
    stamp()
    def pv(t):
        slot = 128 + 32*(t & 3)
        for j in range(8):
            q, p = j >> 1, j & 1
            T4 = 16 + 4*(j & 3)
            for z in range(4):
                e(f"v_perm_b32 v{T4+z}, v{slot+4*(2*z+1)+q}, v{slot+4*(2*z)+q}, s{S_SEL1 if p else S_SEL0}")
            c = "0" if t == 0 else f"v[{32+4*j}:{35+4*j}]"
            e(f"v_mfma_f32_16x16x32_bf16 v[{32+4*j}:{35+4*j}], v[{T4}:{T4+3}], v[{64+4*t}:{67+4*t}], {c}")
    WOR = 96
    e("v_lshlrev_b32 v11, 3, v0")
    WINV[0] = cfg.get("winv", WIN)
    vm.wait("v0"); pv(0)
    pace(8); load_v(4)
    def load_wo(WOR, voff=11):
        for i in range(16):
            off = (8*(i & 3) + (i >> 2))*2048
            e(f"s_mov_b32 s{T2}, {off}")
            vm.issue("wo", f"buffer_load_dwordx2 v[{WOR+2*i}:{WOR+2*i+1}], v{voff}, {srd(SWO)}, s{T2} offen {NT}")
    if not LATE:
        pace(8)
        load_wo(WOR)
    vm.wait("v1"); pv(1)
    pace(8); load_v(5)
    vm.wait("v2"); pv(2)
    e(f"""
    v_lshrrev_b32 v6, 1, v1
    s_and_b32 s8, s2, 31
    v_xor_b32 v6, s8, v6
    v_lshlrev_b32 v6, 3, v6
    v_lshrrev_b32 v7, 1, v10
    v_lshlrev_b32 v7, 8, v7
    v_add_u32 v6, v6, v7
    s_lshr_b32 s8, s2, 3
    s_lshl_b32 s8, s8, 9
    s_add_u32 s8, s8, {ML}
    """)
    pace(8)
    vm.issue("ml", f"buffer_load_dwordx2 a[0:1], v6, {srd(SWS)}, s8 offen sc1")
    load_v(6)
    vm.wait("v3"); pv(3)
    pace(8); load_v(7)
    vm.wait("v4"); pv(4)
    def unpack_wo(i0, src=WOR, dst=128):
        for i in range(i0, i0+8):
            for d in range(2):
                e(f"v_lshlrev_b32 v{dst+4*i+2*d}, 16, v{src+2*i+d}")
                e(f"v_and_b32 v{dst+4*i+2*d+1}, s{S_MASK}, v{src+2*i+d}")
    LP = cfg.get("latepos", [4, 5])
    def late_loads(pos):
        if not LATE: return
        if pos in LP: e("v_lshlrev_b32 v120, 3, v0")
        if LP[0] == pos: load_wd(128, 120)
        if LP[1] == pos: load_wo(160, 120)
    if LATE:
        late_loads(4)
        vm.wait("v5"); pv(5)
        late_loads(5)
        WOU = 192
    else:
        vm.wait("wo")
        unpack_wo(0)
        vm.wait("v5"); pv(5)
        unpack_wo(8)
        WOU = 128
    vm.wait("ml")
    e(f"""
    v_accvgpr_read_b32 v96, a0
    v_accvgpr_read_b32 v97, a1
    s_mov_b32 s{S_SPIN}, 0
L_mlspin:
    v_max_u32 v98, v96, v97
    v_cmp_eq_u32 vcc, -1, v98
    s_nop 1
    s_cmp_eq_u64 vcc, 0
    s_cbranch_scc1 L_mlok
    s_add_u32 s{S_SPIN}, s{S_SPIN}, 1
    s_cmp_gt_u32 s{S_SPIN}, {SPIN}
    s_cbranch_scc1 L_end
    buffer_load_dwordx2 v[96:97], v6, {srd(SWS)}, s8 offen sc1
    s_waitcnt vmcnt(0)
    s_branch L_mlspin
L_mlok:
    v_mov_b32 v98, v96
    """)
    wave_red([98], op="max", tmp=104, shifts=(8, 4, 2))
    e("v_sub_f32 v98, v96, v98")
    e("v_mul_f32 v98, 0x3fb8aa3b, v98")
    e("v_exp_f32 v98, v98")
    e("v_mul_f32 v99, v98, v97")
    wave_red([99], op="add", tmp=104, shifts=(8, 4, 2))
    e("""
    v_rcp_f32 v100, v99
    v_mul_f32 v101, v98, v100
    v_fma_f32 v102, -v101, v99, v98
    v_fma_f32 v100, v102, v100, v101    ; f = e_s / L
    """)
    e(f"""
    v_and_b32 v96, 15, v1
    v_mul_u32_u24 v96, 528, v96
    v_lshrrev_b32 v97, 4, v1
    v_lshlrev_b32 v97, 7, v97
    v_add_u32 v96, v96, v97
    v_mul_u32_u24 v97, {OBW}, v10
    v_add_u32 v96, v96, v97
    v_lshrrev_b32 v98, 5, v0
    v_mul_u32_u24 v97, 528, v98
    v_and_b32 v99, 31, v0
    v_lshlrev_b32 v101, 4, v99
    v_add_u32 v97, v97, v101
    v_lshlrev_b32 v98, 15, v98
    v_lshrrev_b32 v101, 2, v99
    v_lshlrev_b32 v101, 12, v101
    v_add_u32 v98, v98, v101
    v_and_b32 v101, 3, v99
    v_lshlrev_b32 v101, 4, v101
    v_add_u32 v98, v98, v101
    v_bfe_u32 v101, v0, 2, 5
    v_xor_b32 v101, s{S_S}, v101
    v_lshlrev_b32 v101, 6, v101
    v_add_u32 v98, v98, v101
    s_lshl_b32 s10, s{S_HKV}, 18
    s_lshl_b32 s{T}, s{S_B}, 11
    s_add_u32 s10, s10, s{T}
    s_add_u32 s10, s10, {PO}
    v_lshrrev_b32 v99, 1, v10
    v_lshlrev_b32 v99, 11, v99
    v_lshrrev_b32 v101, 1, v1
    v_lshlrev_b32 v101, 6, v101
    v_add_u32 v99, v99, v101
    v_and_b32 v101, 1, v10
    v_lshlrev_b32 v101, 5, v101
    v_add_u32 v99, v99, v101
    v_and_b32 v101, 1, v1
    v_lshlrev_b32 v101, 4, v101
    v_add_u32 v99, v99, v101
    s_lshl_b32 s11, s2, 12
    s_add_u32 s11, s11, {PO}
    v_and_b32 v101, 1, v10
    v_lshlrev_b32 v101, 6, v101
    v_and_b32 v102, 1, v1
    v_lshlrev_b32 v102, 5, v102
    v_add_u32 v101, v101, v102
    v_lshrrev_b32 v102, 4, v1
    v_lshlrev_b32 v102, 3, v102
    v_add_u32 v101, v101, v102
    v_lshrrev_b32 v102, 1, v10
    v_lshlrev_b32 v102, 2, v102
    v_add_u32 v101, v101, v102
    v_mov_b32 v102, 0
    v_lshrrev_b32 v103, 1, v0
    v_xor_b32 v11, s2, v103
    v_lshlrev_b32 v103, 13, v103
    v_and_b32 v104, 1, v0
    v_lshlrev_b32 v104, 4, v104
    v_add_u32 v103, v103, v104
    v_xor_b32 v109, 0x80, v11
    v_lshlrev_b32 v109, 5, v109
    v_add_u32 v109, v109, v103
    v_lshlrev_b32 v11, 5, v11
    v_add_u32 v103, v103, v11
    s_mov_b32 s96, {PF}
    s_mov_b32 s97, {PF+0x100000}
    v_lshlrev_b32 v104, 5, v0
    s_lshl_b32 s98, s2, 13
    s_add_u32 s98, s98, {PF}
    v_lshlrev_b32 v105, 5, v10
    v_lshrrev_b32 v106, 4, v1
    v_lshlrev_b32 v106, 3, v106
    v_add_u32 v105, v105, v106
    v_lshlrev_b32 v106, 3, v1
    v_lshlrev_b32 v107, 2, v1
    v_and_b32 v107, 12, v107
    """)
    vm.issue("res", f"buffer_load_dword v108, v107, {srd(SX)}, s9 offen")
    vm.wait("v6"); pv(6)
    late_loads(6)
    vm.wait("v7")
    if not LATE: vm.wait("res")
    stamp()
    pv(7)
    if not LATE:
        e("v_lshlrev_b32 v110, 16, v108")
        e(f"v_and_b32 v111, s{S_MASK}, v108")
    e("s_mov_b32 exec_lo, 0x00ff00ff")
    e("s_mov_b32 exec_hi, 0x00ff00ff")
    for j in range(8):
        e(f"ds_write_b128 v96, v[{32+4*j}:{35+4*j}] offset:{L_OB+16*j}")
    e("s_mov_b64 exec, -1")
    e("s_waitcnt lgkmcnt(0)")
    e("s_barrier")
    for w in range(4):
        e(f"ds_read_b128 v[{16+4*w}:{19+4*w}], v97 offset:{L_OB+w*OBW}")
    e("s_waitcnt lgkmcnt(2)")
    e("v_pk_add_f32 v[16:17], v[16:17], v[20:21]")
    e("v_pk_add_f32 v[18:19], v[18:19], v[22:23]")
    e("s_waitcnt lgkmcnt(0)")
    e("v_pk_add_f32 v[24:25], v[24:25], v[28:29]")
    e("v_pk_add_f32 v[26:27], v[26:27], v[30:31]")
    e("v_pk_add_f32 v[16:17], v[16:17], v[24:25]")
    e("v_pk_add_f32 v[18:19], v[18:19], v[26:27]")
    vm.issue("post", f"buffer_store_dwordx4 v[16:19], v98, {srd(SWS)}, s10 offen sc1")
    late_loads(7)
    if cfg.get("tstamps"): stamp()
    if LATE:
        e("v_mov_b32 v16, 0")
        for k in range(8):
            e(f"ds_read_b128 v[{64+4*k}:{67+4*k}], v16 offset:{L_HB+16*k}")
        vm.wait("wd")
        e("s_waitcnt lgkmcnt(0)")
        ffn_down(128, 112)
        vm.issue("poll1", f"buffer_load_dwordx4 v[20:23], v99, {srd(SWS)}, s11 offen sc1")
        wo_idx = [i for i, (t, d) in enumerate(vm.ops) if t == "wo"]
        after = sum(1 for t, d in vm.ops[wo_idx[-1]+1:] if d)
        e(f"s_waitcnt vmcnt({after + 8})")
        unpack_wo(0, 160, 192)
        vm.wait("wo")
        unpack_wo(8, 160, 192)
        vm.wait("res")
        e("v_lshlrev_b32 v110, 16, v108")
        e(f"v_and_b32 v111, s{S_MASK}, v108")
        vm.wait("poll1")
        e(f"""
    s_mov_b32 s{S_SPIN}, 0
    v_max3_u32 v24, v20, v21, v22
    v_max_u32 v24, v24, v23
    v_cmp_eq_u32 vcc, -1, v24
    s_nop 1
    s_cmp_eq_u64 vcc, 0
    s_cbranch_scc1 L_podone
    """)
    if cfg.get("drainA", True): e("s_waitcnt vmcnt(0)")
    MASKP = cfg.get("maskpoll", True)
    tailchk = """
    s_and_b64 exec, exec, vcc
    s_cbranch_execnz {L}
    s_mov_b64 exec, -1
    """ if MASKP else """
    s_nop 1
    s_cmp_eq_u64 vcc, 0
    s_cbranch_scc0 {L}
    """
    e(f"s_mov_b32 s{S_SPIN}, 0")
    if cfg.get("preA"):
        e(f"""
    {exmask(cfg['preA'])}
L_popre:
    buffer_load_dword v20, v99, {srd(SWS)}, s11 offen sc1
    s_add_u32 s{S_SPIN}, s{S_SPIN}, 1
    s_cmp_gt_u32 s{S_SPIN}, {SPIN}
    s_cbranch_scc1 L_end
    s_waitcnt vmcnt(0)
    v_cmp_eq_u32 vcc, -1, v20
    s_and_b64 exec, exec, vcc
    s_cbranch_execnz L_popre
    s_mov_b64 exec, -1
    """)
    e(f"""
L_pospin:
    buffer_load_dwordx4 v[20:23], v99, {srd(SWS)}, s11 offen sc1
    s_add_u32 s{S_SPIN}, s{S_SPIN}, 1
    s_cmp_gt_u32 s{S_SPIN}, {SPIN}
    s_cbranch_scc1 L_end
    s_waitcnt vmcnt(0)
    v_max3_u32 v24, v20, v21, v22
    v_max_u32 v24, v24, v23
    v_cmp_eq_u32 vcc, -1, v24
    """)
    e(tailchk.format(L="L_pospin"))
    e("L_podone:")
    vm.ops = []
    if STAMPS: e(f"s_mov_b32 s24, s{S_SPIN}")
    stamp()
    e("v_pk_mul_f32 v[20:21], v[20:21], v[100:101] op_sel:[0,0] op_sel_hi:[1,0]")
    e("v_pk_mul_f32 v[22:23], v[22:23], v[100:101] op_sel:[0,0] op_sel_hi:[1,0]")
    e("v_permlane32_swap_b32 v20, v22")
    e("v_permlane32_swap_b32 v21, v23")
    e("v_add_f32 v20, v20, v22")
    e("v_add_f32 v21, v21, v23")
    e("v_permlane16_swap_b32 v20, v21")
    e("v_add_f32 v20, v20, v21")
    for sh in (2, 4, 8):
        e(f"v_add_f32_dpp v20, v20, v20 row_ror:{sh} row_mask:0xf bank_mask:0xf")
    rbf(20, 20)
    e("s_mov_b32 exec_lo, 0x00030003")
    e("s_mov_b32 exec_hi, 0x00030003")
    e(f"ds_write_b32 v101, v20 offset:{L_OBC}")
    e("s_mov_b64 exec, -1")
    e("s_waitcnt lgkmcnt(0)")
    e("s_barrier")
    for k in range(8):
        e(f"ds_read_b128 v[{16+4*k}:{19+4*k}], v102 offset:{L_OBC+16*k}")
    for i in range(16):
        if i % 2 == 0: e(f"s_waitcnt lgkmcnt({7 - i//2})")
        rowfma((WOU+4*i, WOU+2+4*i), 16+2*i, False)
    vm.issue("pfst", f"buffer_store_dwordx4 v[{F0}:{F0+3}], v103, {srd(SWS)}, s96 offen sc1")
    vm.issue("pfst", f"buffer_store_dwordx4 v[{F1}:{F1+3}], v109, {srd(SWS)}, s97 offen sc1")
    if cfg.get("tstamps"): stamp()
    if cfg.get("sleepB"): e(f"s_sleep {cfg['sleepB']}")
    if cfg.get("drainB", True): e("s_waitcnt vmcnt(0)")
    e(f"s_mov_b32 s{S_SPIN}, 0")
    if cfg.get("preB"):
        e(f"""
    {exmask(cfg['preB'])}
L_pfpre:
    buffer_load_dword v20, v104, {srd(SWS)}, s98 offen offset:16 sc1
    s_add_u32 s{S_SPIN}, s{S_SPIN}, 1
    s_cmp_gt_u32 s{S_SPIN}, {SPIN}
    s_cbranch_scc1 L_end
    s_waitcnt vmcnt(0)
    v_cmp_eq_u32 vcc, -1, v20
    s_and_b64 exec, exec, vcc
    s_cbranch_execnz L_pfpre
    s_mov_b64 exec, -1
    """)
    e(f"""
L_pfspin:
    buffer_load_dwordx4 v[20:23], v104, {srd(SWS)}, s98 offen sc1
    buffer_load_dwordx4 v[24:27], v104, {srd(SWS)}, s98 offen offset:16 sc1
    s_add_u32 s{S_SPIN}, s{S_SPIN}, 1
    s_cmp_gt_u32 s{S_SPIN}, {SPIN}
    s_cbranch_scc1 L_end
    s_waitcnt vmcnt(0)
    v_max3_u32 v28, v20, v21, v22
    v_max3_u32 v29, v23, v24, v25
    v_max3_u32 v28, v28, v26, v27
    v_max_u32 v28, v28, v29
    v_cmp_eq_u32 vcc, -1, v28
    """)
    e(tailchk.format(L="L_pfspin"))
    vm.ops = []
    if STAMPS: e(f"s_mov_b32 s25, s{S_SPIN}")
    stamp()
    for c in range(4): e(f"v_permlane32_swap_b32 v{20+c}, v{24+c}")
    e("v_pk_add_f32 v[20:21], v[20:21], v[24:25]")
    e("v_pk_add_f32 v[22:23], v[22:23], v[26:27]")
    for c in range(2): e(f"v_permlane16_swap_b32 v{20+c}, v{22+c}")
    e("v_pk_add_f32 v[20:21], v[20:21], v[22:23]")
    for sh in (1, 2, 4, 8):
        for k in range(2): e(f"v_add_f32_dpp v{20+k}, v{20+k}, v{20+k} row_ror:{sh} row_mask:0xf bank_mask:0xf")
    e("s_mov_b32 exec_lo, 0x00010001")
    e("s_mov_b32 exec_hi, 0x00010001")
    e(f"ds_write_b64 v105, v[20:21] offset:{L_FIN}")
    e("s_mov_b64 exec, -1")
    e("s_waitcnt lgkmcnt(0)")
    e("s_barrier")
    e("s_cmp_lg_u32 s3, 0")
    e("s_cbranch_scc1 L_end")
    e("s_mov_b64 exec, 15")
    for w in range(4):
        e(f"ds_read_b64 v[{20+2*w}:{21+2*w}], v106 offset:{L_FIN+32*w}")
    e("s_waitcnt lgkmcnt(0)")
    e("v_pk_add_f32 v[20:21], v[20:21], v[22:23]")
    e("v_pk_add_f32 v[24:25], v[24:25], v[26:27]")
    e("v_pk_add_f32 v[20:21], v[20:21], v[24:25]")
    e("v_pk_add_f32 v[20:21], v[20:21], v[110:111]")
    e("v_cvt_pk_bf16_f32 v20, v20, v21")
    e(f"buffer_store_dword v20, v107, {srd(SOUT)}, s9 offen {cfg.get('osc','')}")
    if STAMPS:
        stamp()
        e("s_mov_b64 exec, 1")
        e(f"s_add_u32 s{SX}, s26, {240<<20}")
        e(f"s_addc_u32 s{SX+1}, s27, 0")
        e(f"s_and_b32 s{SX+1}, s{SX+1}, 0xffff")
        e(f"s_mov_b32 s{SX+2}, 0x10000")
        e(f"s_lshl_b32 s{T}, s2, 7")
        e("v_mov_b32 v2, 0")
        for k in range(stamp_n[0]):
            r = stamp_regs[k]
            e(f"v_mov_b32 v4, s{r}")
            e(f"v_mov_b32 v5, s{r+1}")
            e(f"buffer_store_dwordx2 v[4:5], v2, {srd(SX)}, s{T} offen offset:{8*k}")
            e("s_nop 2")
        e("v_mov_b32 v4, s24")
        e("v_mov_b32 v5, s25")
        e(f"buffer_store_dwordx2 v[4:5], v2, {srd(SX)}, s{T} offen offset:{8*15}")
    e("L_end:")
    e("s_endpgm")
    e(kernel_desc(NAME, 512, 102, 256))
    body, n = hazard.fix(e.text())
    hdr = HEADER_COMMENTS + f"; @launch grid=(256,1,1) block=(256,1,1) lds={LDS}\n" + '.amdgcn_target "amdgcn-amd-amdhsa--gfx950"\n.text\n'
    return hdr + body, n, LDS

if __name__ == "__main__":
    import json
    cfg = json.loads(sys.argv[2]) if len(sys.argv) > 2 else {}
    out = sys.argv[1]
    txt, n, lds = gen(cfg)
    open(out, "w").write(txt)
    print("nops inserted", n, "lines", txt.count("\n"), "lds", lds)
```

```python
import sys
from common import *
import hazard

NAME = "parallel_sum__gqa_block_cached__swiglu_ffn__decode_kernel"

class VM:
    def __init__(self, e): self.e = e; self.ops = []
    def issue(self, tag, line, definite=True):
        self.e(line); self.ops.append((tag, definite))
    def wait(self, tag):
        idx = [i for i, (t, d) in enumerate(self.ops) if t == tag]
        if not idx: return
        idx = max(idx)
        n = sum(1 for t, d in self.ops[idx+1:] if d)
        assert n <= 63, (tag, n)
        self.e(f"s_waitcnt vmcnt({n})")
        self.ops = self.ops[idx+1:]
        return n
    def count_after(self, tag):
        idx = max(i for i, (t, d) in enumerate(self.ops) if t == tag)
        return sum(1 for t, d in self.ops[idx+1:] if d)
    def wait_leave(self, n):
        if sum(1 for t, d in self.ops if d) <= n and all(d for t, d in self.ops): return
        self.e(f"s_waitcnt vmcnt({n})")
        while self.ops and sum(1 for t, d in self.ops[1:] if d) >= n: self.ops.pop(0)
    def drain(self):
        self.e("s_waitcnt vmcnt(0)"); self.ops = []

def gen(cfg):
    MIMIC = cfg.get("mimic", True)
    STAMPS = cfg.get("stamps", False)
    WIN = cfg.get("win", 16)
    NT = cfg.get("nt", "nt")
    NTW = cfg.get("ntw", "nt")
    SPIN = cfg.get("spin", 200000)
    e = E(); vm = VM(e)
    stamp_regs = [76+2*k for k in range(10)] + [12, 14, 16, 18, 20, 22]
    stamp_n = [0]
    def exmask(m):
        if isinstance(m, list): return f"s_mov_b32 exec_lo, {m[0]}\n    s_mov_b32 exec_hi, {m[1]}"
        return f"s_mov_b64 exec, {m}"
    def stamp():
        if not STAMPS: return
        if cfg.get("xst2") and stamp_n[0] >= 10: return
        k = stamp_n[0]; stamp_n[0] += 1
        r = stamp_regs[k]
        e(f"s_memrealtime s[{r}:{r+1}]")
        e("s_waitcnt lgkmcnt(0)")
    SX, SWQ, SWG, SWU, SK, SV, SWD, SWO, SWS, SOUT, SDBG = 28, 32, 36, 40, 44, 48, 52, 56, 60, 64, 68
    srd = lambda b: f"s[{b}:{b+3}]"
    S_MASK = 72
    S_T = 73; S_T2 = 74; S_SPIN = 75
    S_SEL0, S_SEL1 = 100, 101
    S_B, S_HKV, S_S, S_CB = 4, 5, 6, 7
    QP, GU, ML, PO, PF = 0, 0x20000, 0x60000, 0x100000, 0x200000
    L_HB = 1536
    L_MX = 1664
    L_LS = 1920
    L_OBC = 2176
    L_FIN = 2304
    L_OB = 2560
    OBW = 8*528
    LDS = L_OB + 4*OBW
    L_RED = L_OB
    L_XN = L_OB + 6144
    L_QS = L_OB + 8192
    T, T2 = S_T, S_T2

    if cfg.get("oddlight", False):
        RROLE = "s_and_b32 s{d}, s2, 1\n    s_lshl_b32 s{d}, s{d}, 7\n    s_lshr_b32 s98, s2, 1\n    s_add_u32 s{d}, s{d}, s98"
    elif cfg.get("ol2"):
        RROLE = ("s_and_b32 s{d}, s2, 1\n    s_lshl_b32 s{d}, s{d}, 5\n    s_sub_u32 s98, s2, 192\n    s_lshr_b32 s98, s98, 1\n"
                 "    s_add_u32 s{d}, s{d}, s98\n    s_add_u32 s{d}, s{d}, 192\n    s_cmp_lt_u32 s2, 192\n    s_cselect_b32 s{d}, s2, s{d}")
    else:
        RROLE = "s_mov_b32 s{d}, s2"
    KLINE = cfg.get("kline", True)
    KHI = "v_bfe_u32 v{t}, v1, 3, 1\n    v_lshlrev_b32 v{t}, 6, v{t}\n    v_add_u32 v{a}, v{a}, v{t}" if KLINE else ""
    e(kernel_head(NAME))
    if cfg.get("xst3"): stamp()
    e(f"""
    s_cmp_ge_u32 s2, 256
    s_cbranch_scc1 L_end
    {('s_xor_b32 s2, s2, %d' % cfg['jx']) if cfg.get('jx') else ''}
    {('s_branch L_pad' + chr(10) + ('    s_nop 0' + chr(10)) * (cfg['pad']//4 - 1) + 'L_pad:') if cfg.get('pad') else ''}
    s_load_dwordx16 s[4:19], s[0:1], 0
    s_load_dwordx8 s[20:27], s[0:1], 64
    v_and_b32 v1, 63, v0
    v_lshrrev_b32 v10, 6, v0
    v_readfirstlane_b32 s3, v10
    s_mov_b32 s{S_MASK}, 0xffff0000
    s_mov_b32 s{S_SEL0}, 0x05040100
    s_mov_b32 s{S_SEL1}, 0x07060302
    """)
    e(f"""
    {RROLE.format(d=97)}
    s_and_b32 s96, s97, 3              ; rq
    s_lshr_b32 s97, s97, 2             ; cg
    s_lshl_b32 s98, s96, 8             ; rq*256
    v_lshrrev_b32 v11, 3, v1
    v_lshlrev_b32 v12, 6, v10
    v_add_u32 v11, v11, v12
    v_add_u32 v11, s98, v11            ; row0
    v_and_b32 v12, 7, v1
    v_lshlrev_b32 v12, 4, v12          ; cc*16
    v_lshlrev_b32 v2, 13, v11
    v_add_u32 v2, v2, v12
    s_movk_i32 s{T}, 7168
    v_mul_lo_u32 v3, v11, s{T}
    v_add_u32 v3, v3, v12
    v_lshlrev_b32 v4, 5, v1
    v_lshlrev_b32 v5, 6, v10
    v_add_u32 v5, v5, v1
    v_add_u32 v5, s98, v5
    v_lshlrev_b32 v5, 1, v5
    v_lshlrev_b32 v57, 3, v0
    v_and_b32 v11, 3, v1
    v_lshlrev_b32 v11, 2, v11
    v_bfe_u32 v12, v1, 2, {1 if KLINE else 2}
    v_add_u32 v11, v11, v12
    v_lshlrev_b32 v11, 8, v11
    v_lshrrev_b32 v12, 4, v1
    v_lshlrev_b32 v12, 4, v12
    v_add_u32 v11, v11, v12
    {KHI.format(a=11, t=12)}
    v_lshlrev_b32 v12, {13 if cfg.get("ilv") else 16}, v10
    v_add_u32 v6, v11, v12
    v_add_u32 v7, 4096, v6
    v_lshlrev_b32 v11, 4, v1
    v_add_u32 v8, v11, v12
    v_add_u32 v9, 4096, v8
    s_waitcnt lgkmcnt(0)
    s_lshl_b32 s0, s97, 2
    s_add_u32 s0, s0, s96              ; r
    """)
    stamp()
    def mk_srd(dst, plo, off_sgpr, size):
        if off_sgpr is None:
            e(f"s_mov_b32 s{dst}, s{plo}")
            e(f"s_and_b32 s{dst+1}, s{plo+1}, 0xffff")
        else:
            e(f"s_add_u32 s{dst}, s{plo}, s{off_sgpr}")
            e(f"s_addc_u32 s{dst+1}, s{plo+1}, 0")
            e(f"s_and_b32 s{dst+1}, s{dst+1}, 0xffff")
        e(f"s_mov_b32 s{dst+2}, {size}")
        e(f"s_mov_b32 s{dst+3}, 0x20000")
    mk_srd(SX, 4, None, 4096)
    for b in range(2):
        for hlf in range(2):
            vm.issue("x", f"buffer_load_dwordx4 v[{16+8*b+4*hlf}:{19+8*b+4*hlf}], v4, {srd(SX)}, 0 offen offset:{b*2048+hlf*16}")
    for b in range(2):
        vm.issue("x", f"buffer_load_ushort v{32+b}, v5, {srd(SX)}, 0 offen offset:{b*2048}")
    if cfg.get("xq"): e(f"s_xor_b32 s97, s97, {cfg['xq']}")
    e(f"s_lshl_b32 s{T}, s97, 7")
    if cfg.get("xq"): e(f"s_xor_b32 s97, s97, {cfg['xq']}")
    if cfg.get("xst2"): stamp()
    mk_srd(SWQ, 10, T, 0)
    e(f"s_sub_u32 s{SWQ+2}, 0x800000, s{T}")
    e(f"s_mov_b32 s{T2}, 0")
    for i in range(8):
        vm.issue("wq", f"buffer_load_dwordx4 v[{128+4*i}:{131+4*i}], v2, {srd(SWQ)}, s{T2} offen {NTW}")
        if i < 7: e(f"s_add_u32 s{T2}, s{T2}, {8*8192}")
    if cfg.get("xg"): e(f"s_xor_b32 s97, s97, {cfg['xg']}")
    e(f"s_lshl_b32 s{T}, s97, 7")
    if cfg.get("xg"): e(f"s_xor_b32 s97, s97, {cfg['xg']}")
    MM = cfg.get("mm", True)
    XG, XU = (2, 4) if MM else (0, 0)
    if MM: e(f"s_xor_b32 s{T}, s{T}, {XG << 7}")
    if cfg.get("xst2"): stamp()
    mk_srd(SWG, 16, T, 0)
    e(f"s_sub_u32 s99, {7<<20}, s{T}")
    if MM: e(f"s_xor_b32 s{T}, s{T}, {(XG ^ XU) << 7}")
    mk_srd(SWU, 18, T, 0)
    e(f"""
    s_sub_u32 s{T2}, {7<<20}, s{T}
    s_cmp_lt_u32 s0, 224
    s_cselect_b32 s{SWG+2}, s99, 0
    s_cselect_b32 s{SWU+2}, s{T2}, 0
    s_mov_b32 s{T2}, 0
    """)
    for i in range(8):
        vm.issue("wg", f"buffer_load_dwordx4 v[{160+4*i}:{163+4*i}], v3, {srd(SWG)}, s{T2} offen {NTW}")
        if i < 7: e(f"s_add_u32 s{T2}, s{T2}, {8*7168}")
    e(f"s_mov_b32 s{T2}, 0")
    for i in range(8):
        vm.issue("wu", f"buffer_load_dwordx4 v[{192+4*i}:{195+4*i}], v3, {srd(SWU)}, s{T2} offen {NTW}")
        if i < 7: e(f"s_add_u32 s{T2}, s{T2}, {8*7168}")
    if cfg.get("xst2"): stamp()
    mk_srd(SWS, 26, None, 0x400000)
    NOCLR = cfg.get("noclr", False)
    CLRPOS = cfg.get("clrpos", "early")
    def clears():
        e(f"""
        v_mov_b32 v112, -1
        v_mov_b32 v113, -1
        v_mov_b32 v114, -1
        v_mov_b32 v115, -1
        v_lshlrev_b32 v11, 4, v0           ; tid*16
        s_lshl_b32 s{T}, s2, 12
        s_add_u32 s{T}, s{T}, {PO}
        """)
        if not NOCLR: vm.issue("clr", f"buffer_store_dwordx4 v[112:115], v11, {srd(SWS)}, s{T} offen sc1")
        e(f"""
        s_lshl_b32 s{T}, s2, 13
        s_add_u32 s{T}, s{T}, {PF}
        """)
        if not NOCLR: vm.issue("clr", f"buffer_store_dwordx4 v[112:115], v11, {srd(SWS)}, s{T} offen sc1")
        e(f"s_add_u32 s{T}, s{T}, 4096")
        if not NOCLR: vm.issue("clr", f"buffer_store_dwordx4 v[112:115], v11, {srd(SWS)}, s{T} offen sc1")
        e(f"""
        v_lshlrev_b32 v12, 4, v10          ; w*16
        s_lshl_b32 s{T}, s2, 6
        s_add_u32 s{T}, s{T}, {ML}
        s_mov_b64 exec, 1
        """)
        if not NOCLR: vm.issue("clr", f"buffer_store_dwordx4 v[112:115], v12, {srd(SWS)}, s{T} offen sc1")
        e("s_mov_b64 exec, -1")

    if CLRPOS == "early": clears()
    e(f"s_lshl_b32 s{T}, s0, 15")
    if cfg.get("xst2"): stamp()
    mk_srd(SWD, 20, T, 0)
    e(f"""
    s_cmp_lt_u32 s0, 224
    s_cselect_b32 s{SWD+2}, 0x8000, 0
    """)
    WDR = 224
    def load_wd(WDR=WDR, voff=57):
        e(f"s_mov_b32 s{T2}, 0")
        for i in range(16):
            vm.issue("wd", f"buffer_load_dwordx2 v[{WDR+2*i}:{WDR+2*i+1}], v{voff}, {srd(SWD)}, s{T2} offen {NT}")
            if i < 15: e(f"s_add_u32 s{T2}, s{T2}, 2048")
    if cfg.get("xmap", False):
        e(f"""
    s_and_b32 s99, s2, 7
    s_lshl_b32 s99, s99, 5
    s_lshr_b32 s{T}, s2, 3
    s_add_u32 s99, s99, s{T}
    """)
    else:
        e("s_mov_b32 s99, s2")
    ILV = cfg.get("ilv", False)
    TSTR = (1 << 20) if ILV else 8192
    if ILV:
        e(f"s_lshr_b32 s{T}, s99, 5")
        e(f"s_lshl_b32 s{T}, s{T}, 23")
        e(f"s_and_b32 s{T2}, s99, 31")
        e(f"s_lshl_b32 s{T2}, s{T2}, 15")
        e(f"s_add_u32 s{T}, s{T}, s{T2}")
    else:
        e(f"s_lshl_b32 s{T}, s99, 18")
    kvsz = 0 if cfg.get("nokv") else (0x708000 if ILV else 0x40000)
    mk_srd(SK, 6, T, kvsz)
    mk_srd(SV, 8, T, kvsz)
    e(f"""
    s_lshr_b32 s{T}, s2, 3
    s_lshl_b32 s{T}, s{T}, 7
    s_bfe_u32 s{T2}, s2, 0x20001       ; (dq>>1)
    s_lshl_b32 s{T2}, s{T2}, 5
    s_add_u32 s{T}, s{T}, s{T2}
    s_and_b32 s{T2}, s2, 1
    s_lshl_b32 s{T2}, s{T2}, 2
    s_add_u32 s{T}, s{T}, s{T2}
    s_lshl_b32 s{T}, s{T}, 11
    """)
    mk_srd(SWO, 12, T, 28*2048)
    mk_srd(SOUT, 22, None, 4096)
    mk_srd(SDBG, 24, None, 256)
    PF_LIST = cfg.get("tlbpf", "")
    if PF_LIST:
        e("v_mov_b32 v116, 0")
        e("s_mov_b64 exec, 1")
        for ch in PF_LIST:
            reg, sr = {"k": (6, SK), "v": (8, SV), "o": (116, SWO), "d": (116, SWD), "y": (116, SOUT), "g": (116, SDBG)}[ch]
            vm.issue("pf", f"buffer_load_dword v117, v{reg}, {srd(sr)}, 0 offen")
        e("s_mov_b64 exec, -1")
    e(f"""
    s_lshr_b32 s{S_B}, s99, 7
    s_bfe_u32 s{S_HKV}, s99, 0x20005
    s_and_b32 s{S_S}, s99, 31
    s_mov_b32 s{S_CB}, s97           ; cg
    s_mov_b32 s8, s96                 ; rq
    s_and_b32 s{T}, s2, 127
    s_lshl_b32 s{T}, s{T}, 4
    s_lshr_b32 s{T2}, s2, 7
    s_lshl_b32 s{T2}, s{T2}, 11
    s_add_u32 s9, s{T}, s{T2}
    """)
    if cfg.get("xst"): stamp()
    vm.wait("x")
    if cfg.get("xst"): stamp()
    XS = 64
    for b in range(2):
        for q in range(8):
            e(f"v_lshlrev_b32 v{XS+16*b+2*q}, 16, v{16+8*b+q}")
            e(f"v_and_b32 v{XS+16*b+2*q+1}, s{S_MASK}, v{16+8*b+q}")
    def wave_red(regs, op="add", tmp=104, shifts=(8, 4, 2, 1)):
        o = {"add": "v_add_f32", "max": "v_max_f32"}[op]
        for sh in shifts:
            for r in regs: e(f"{o}_dpp v{r}, v{r}, v{r} row_ror:{sh} row_mask:0xf bank_mask:0xf")
        for sw in ("v_permlane16_swap_b32", "v_permlane32_swap_b32"):
            for k, r in enumerate(regs): e(f"v_mov_b32 v{tmp+k}, v{r}")
            for k, r in enumerate(regs): e(f"{sw} v{r}, v{tmp+k}")
            for k, r in enumerate(regs): e(f"{o} v{r}, v{r}, v{tmp+k}")
    for b in range(2):
        e(f"v_add_f32 v{96+b}, v{XS+16*b}, v{XS+16*b+1}")
    for q in range(2, 16):
        for b in range(2):
            e(f"v_add_f32 v{96+b}, v{96+b}, v{XS+16*b+q}")
    wave_red([96, 97])
    def rbf(dst, src):
        e(f"v_cvt_pk_bf16_f32 v{dst}, v{src}, v{src}")
        e(f"v_and_b32 v{dst}, s{S_MASK}, v{dst}")
    for b in range(2): e(f"v_mul_f32 v{96+b}, 0x3a800000, v{96+b}")
    for q in range(16):
        for b in range(2):
            e(f"v_sub_f32 v{XS+16*b+q}, v{XS+16*b+q}, v{96+b}")
    for b in range(2): e(f"v_mul_f32 v{98+b}, v{XS+16*b}, v{XS+16*b}")
    for q in range(1, 16):
        for b in range(2):
            e(f"v_fmac_f32 v{98+b}, v{XS+16*b+q}, v{XS+16*b+q}")
    wave_red([98, 99])
    for b in range(2):
        e(f"v_mul_f32 v{98+b}, 0x3a800000, v{98+b}")
        rbf(98+b, 98+b)
        e(f"v_add_f32 v{98+b}, 0x3727c5ac, v{98+b}")
        rbf(98+b, 98+b)
        e(f"v_sqrt_f32 v{98+b}, v{98+b}")
        rbf(98+b, 98+b)
        rbf(96+b, 96+b)
        e(f"v_rcp_f32 v{100+b}, v{98+b}")
    for b in range(2):
        e(f"v_lshlrev_b32 v{64+b}, 16, v{32+b}")
    for b in range(2):
        e(f"v_sub_f32 v{64+b}, v{64+b}, v{96+b}")
    for b in range(2): rbf(64+b, 64+b)
    for b in range(2):
        e(f"v_mul_f32 v102, v{64+b}, v{100+b}")
        e(f"v_fma_f32 v103, -v102, v{98+b}, v{64+b}")
        e(f"v_fma_f32 v{64+b}, v103, v{100+b}, v102")
    for b in range(2): rbf(64+b, 64+b)
    e(f"""
    v_lshlrev_b32 v11, 9, v10
    v_lshlrev_b32 v12, 3, v1
    v_add_u32 v12, v12, v11             ; w*512 + l*8
    ds_write_b64 v12, v[64:65] offset:{L_XN}
    v_lshrrev_b32 v12, 3, v1
    v_lshlrev_b32 v12, 3, v12
    v_add_u32 v12, v12, v11             ; w*512 + (l>>3)*8
    s_waitcnt lgkmcnt(0)
    """)
    for i in range(8):
        e(f"ds_read_b64 v[{40+2*i}:{41+2*i}], v12 offset:{L_XN+64*i}")
    e(f"""
    v_and_b32 v14, 7, v1
    v_lshlrev_b32 v14, 5, v14
    v_lshrrev_b32 v12, 4, v1
    v_lshlrev_b32 v12, 3, v12
    v_add_u32 v14, v14, v12
    v_add_u32 v14, v14, v11
    s_waitcnt lgkmcnt(0)
    """)
    stamp()
    ACC = 96
    def gemv(wbase, m):
        for i in range(8):
            for q in range(4):
                t = 112 + 2*((i*4+q) & 1)
                w = wbase + 4*i + q
                e(f"v_lshlrev_b32 v{t}, 16, v{w}")
                e(f"v_and_b32 v{t+1}, s{S_MASK}, v{w}")
                for p in range(2):
                    a = ACC + 2*(2*q+p)
                    sel = "op_sel:[0,0,0] op_sel_hi:[0,1,1]" if p == 0 else "op_sel:[1,0,0] op_sel_hi:[1,1,1]"
                    if i == 0:
                        sel2 = "op_sel:[0,0] op_sel_hi:[0,1]" if p == 0 else "op_sel:[1,0] op_sel_hi:[1,1]"
                        e(f"v_pk_mul_f32 v[{a}:{a+1}], v[{t}:{t+1}], v[40:41] {sel2}")
                    else:
                        e(f"v_pk_fma_f32 v[{a}:{a+1}], v[{t}:{t+1}], v[{40+2*i}:{41+2*i}], v[{a}:{a+1}] {sel}")
        A = lambda c, b: ACC + 2*c + b
        for c in range(4):
            for b in range(2): e(f"v_permlane32_swap_b32 v{A(c,b)}, v{A(c+4,b)}")
        for c in range(4):
            e(f"v_pk_add_f32 v[{A(c,0)}:{A(c,1)}], v[{A(c,0)}:{A(c,1)}], v[{A(c+4,0)}:{A(c+4,1)}]")
        for c in range(2):
            for b in range(2): e(f"v_permlane16_swap_b32 v{A(c,b)}, v{A(c+2,b)}")
        for c in range(2):
            e(f"v_pk_add_f32 v[{A(c,0)}:{A(c,1)}], v[{A(c,0)}:{A(c,1)}], v[{A(c+2,0)}:{A(c+2,1)}]")
        for k in range(4): e(f"v_add_f32_dpp v{ACC+k}, v{ACC+k}, v{ACC+k} row_ror:8 row_mask:0xf bank_mask:0xf")
        e(f"v_swap_b32 v{ACC+1}, v{ACC+2}")
        e("s_mov_b32 exec_lo, 0x00ff00ff")
        e("s_mov_b32 exec_hi, 0x00ff00ff")
        e(f"ds_write_b64 v14, v[{ACC}:{ACC+1}] offset:{L_RED+m*2048}")
        e(f"ds_write_b64 v14, v[{ACC+2}:{ACC+3}] offset:{L_RED+m*2048+256}")
        e("s_mov_b64 exec, -1")
    def load_k(t):
        e(f"s_mov_b32 s{T2}, {t*TSTR}")
        for u in range(2):
            for j in range(4):
                a = 32*t + 16*u + 4*j
                vm.issue(f"k{t}", f"buffer_load_dwordx4 a[{a}:{a+3}], v{(8 if cfg.get('kfull') else 6)+u}, {srd(SK)}, s{T2} offen offset:{j*1024 if cfg.get('kfull') else ((j>>1)*512 + (j&1)*128 if KLINE else j*64)} {NT}")
    def load_v(t):
        e(f"s_mov_b32 s{T2}, {t*TSTR}")
        for i in range(8):
            r = 128 + 32*(t & 3) + 4*i
            vm.issue(f"v{t}", f"buffer_load_dwordx4 v[{r}:{r+3}], v{8+(i>>2)}, {srd(SV)}, s{T2} offen offset:{(i&3)*1024} {NT}")
    WINV = [WIN]
    def pace(next_n):
        vm.wait_leave(max(WINV[0] - next_n, 0))
    if CLRPOS == "ln": clears()
    load_k(0)
    vm.wait("wq")
    stamp()
    gemv(128, 0)
    if CLRPOS == "q": clears()
    load_k(1)
    vm.wait("wg")
    gemv(160, 1)
    if CLRPOS == "g": clears()
    LATE = cfg.get("late", True)
    if not LATE: load_wd()
    vm.wait("wu")
    stamp()
    gemv(192, 2)
    e("s_waitcnt lgkmcnt(0)")
    e("s_barrier")
    e(f"""
    s_cmp_lg_u32 s3, 0
    s_cbranch_scc1 L_nopub
    v_lshrrev_b32 v11, 5, v1
    v_lshlrev_b32 v11, 11, v11          ; m*2048
    v_bfe_u32 v12, v1, 4, 1
    v_lshlrev_b32 v13, 8, v12           ; b*256
    v_add_u32 v11, v11, v13
    v_and_b32 v14, 15, v1
    v_lshlrev_b32 v15, 4, v14           ; c4*16
    v_add_u32 v11, v11, v15
    v_and_b32 v58, 0x7ff, v11
    """)
    for w in range(4):
        e(f"ds_read_b128 v[{96+4*w}:{99+4*w}], v11 offset:{L_RED+w*512}")
    for w in range(4):
        e(f"ds_read_b128 v[{64+4*w}:{67+4*w}], v58 offset:{L_RED+4096+w*512}")
    e(f"""
    v_lshlrev_b32 v59, 14, v12
    v_add_u32 v59, v59, v15
    s_lshl_b32 s{T}, s8, 15
    s_lshl_b32 s{T2}, s{S_CB}, 8
    s_add_u32 s{T}, s{T}, s{T2}
    v_add_u32 v59, s{T}, v59
    v_lshrrev_b32 v60, 2, v14
    v_lshlrev_b32 v60, 10, v60
    v_lshlrev_b32 v61, 6, v12
    v_add_u32 v60, v60, v61
    v_and_b32 v61, 3, v14
    v_lshlrev_b32 v61, 4, v61
    v_add_u32 v60, v60, v61
    s_lshl_b32 s{T}, s{S_CB}, 12
    s_lshl_b32 s{T2}, s8, 8
    s_add_u32 s{T}, s{T}, s{T2}
    s_add_u32 s{T}, s{T}, {GU}
    s_xor_b32 s{T}, s{T}, {XG << 12}
    v_add_u32 v60, s{T}, v60
    v_cmp_gt_u32 vcc, 32, v1
    v_cndmask_b32 v59, v60, v59, vcc
    v_xor_b32 v60, {(XG ^ XU) << 12}, v60
    v_add_u32 v60, 128, v60             ; u address
    s_waitcnt lgkmcnt(4)
    v_pk_add_f32 v[96:97], v[96:97], v[100:101]
    v_pk_add_f32 v[98:99], v[98:99], v[102:103]
    v_pk_add_f32 v[104:105], v[104:105], v[108:109]
    v_pk_add_f32 v[106:107], v[106:107], v[110:111]
    v_pk_add_f32 v[96:97], v[96:97], v[104:105]
    v_pk_add_f32 v[98:99], v[98:99], v[106:107]
    """)
    vm.issue("pub", f"buffer_store_dwordx4 v[96:99], v59, {srd(SWS)}, 0 offen sc1", definite=False)
    e(f"""
    s_waitcnt lgkmcnt(0)
    v_pk_add_f32 v[64:65], v[64:65], v[68:69]
    v_pk_add_f32 v[66:67], v[66:67], v[70:71]
    v_pk_add_f32 v[72:73], v[72:73], v[76:77]
    v_pk_add_f32 v[74:75], v[74:75], v[78:79]
    v_pk_add_f32 v[64:65], v[64:65], v[72:73]
    v_pk_add_f32 v[66:67], v[66:67], v[74:75]
    s_mov_b32 exec_hi, 0
    """)
    vm.issue("pub", f"buffer_store_dwordx4 v[64:67], v60, {srd(SWS)}, 0 offen sc1", definite=False)
    e("s_mov_b64 exec, -1")
    e("L_nopub:")
    load_k(2)
    stamp()
    vm.wait_leave(8)
    assert all(t in ("k2",) for t, d in vm.ops), vm.ops
    e("s_barrier")
    e("s_cmp_lg_u32 s3, 0")
    e("s_cbranch_scc1 L_nosig")
    e(f"""
    v_mov_b32 v11, 1
    s_and_b32 s{T}, s2, 3
    s_lshl_b32 s{T}, s{T}, 6
    v_mov_b32 v12, s{T}
    s_mov_b64 exec, 1
    """)
    vm.issue("sig", f"buffer_atomic_add v11, v12, {srd(SDBG)}, 0 offen sc1", definite=False)
    e("s_mov_b64 exec, -1")
    e("L_nosig:")
    load_k(3)
    POLLK = cfg.get("pollk", 6)
    for t in range(4, POLLK):
        pace(8); load_k(t)
    e(f"""
    s_cmp_lg_u32 s3, 0
    s_cbranch_scc1 L_nopoll1
    v_and_b32 v40, 3, v1
    v_lshlrev_b32 v40, 6, v40
    """)
    vm.issue("poll", f"buffer_load_dword v41, v40, {srd(SDBG)}, 0 offen sc1", definite=False)
    e("L_nopoll1:")
    pace(8); load_k(POLLK)
    e("s_cmp_lg_u32 s3, 0")
    e("s_cbranch_scc1 L_qok")
    e(f"s_waitcnt vmcnt({vm.count_after('poll')})")
    e(f"""
    s_mov_b32 s{S_SPIN}, 0
L_qspin:
    v_cmp_eq_u32 vcc, 64, v41
    s_nop 1
    s_cmp_eq_u64 vcc, -1
    s_cbranch_scc1 L_qok
    s_add_u32 s{S_SPIN}, s{S_SPIN}, 1
    s_cmp_gt_u32 s{S_SPIN}, {SPIN}
    s_cbranch_scc1 L_end
    buffer_load_dword v41, v40, {srd(SDBG)}, 0 offen sc1
    s_waitcnt vmcnt(0)
    s_branch L_qspin
L_qok:
    s_barrier
    v_lshlrev_b32 v40, 4, v0
    s_lshl_b32 s{T}, s{S_B}, 14
    s_lshl_b32 s{T2}, s{S_HKV}, 12
    s_add_u32 s{T}, s{T}, s{T2}
    """)
    for rq in range(4):
        vm.issue("q", f"buffer_load_dwordx4 v[{16+4*rq}:{19+4*rq}], v40, {srd(SWS)}, s{T} offen sc1")
        if rq < 3: e(f"s_add_u32 s{T}, s{T}, 32768")
    e(f"""
    v_lshlrev_b32 v41, 4, v1
    s_lshl_b32 s{T}, s0, 10
    s_add_u32 s{T}, s{T}, {GU}
    """)
    vm.issue("q", f"buffer_load_dwordx4 v[32:35], v41, {srd(SWS)}, s{T} offen sc1")
    for t in range(POLLK+1, 8):
        load_k(t)
    VEARLY = cfg.get("vearly", 0) if cfg.get("late", True) else 0
    for t in range(VEARLY):
        pace(8); load_v(t)
    e(f"""
    v_lshrrev_b32 v42, 5, v0
    v_lshlrev_b32 v42, 4, v42           ; (t>>5)*16
    v_lshlrev_b32 v43, 3, v0
    v_add_u32 v42, v42, v43
    v_and_b32 v43, 7, v1
    v_mul_u32_u24 v43, 272, v43
    v_lshrrev_b32 v44, 4, v1
    v_lshlrev_b32 v44, 4, v44
    v_add_u32 v43, v43, v44
    {KHI.format(a=43, t=44)}
    v_and_b32 v44, 3, v1
    v_lshlrev_b32 v44, 5, v44
    v_lshrrev_b32 v45, 4, v1
    v_lshlrev_b32 v45, 3, v45
    v_add_u32 v44, v44, v45
    v_bfe_u32 v45, v1, 2, 1
    v_lshlrev_b32 v45, 2, v45
    v_add_u32 v44, v44, v45
    """)
    vm.wait("q")
    stamp()
    e(f"""
    v_pk_add_f32 v[16:17], v[16:17], v[20:21]
    v_pk_add_f32 v[18:19], v[18:19], v[22:23]
    v_pk_add_f32 v[24:25], v[24:25], v[28:29]
    v_pk_add_f32 v[26:27], v[26:27], v[30:31]
    v_pk_add_f32 v[16:17], v[16:17], v[24:25]
    v_pk_add_f32 v[18:19], v[18:19], v[26:27]
    v_cvt_pk_bf16_f32 v16, v16, v17
    v_cvt_pk_bf16_f32 v17, v18, v19
    ds_write_b64 v42, v[16:17] offset:{L_QS}
    v_permlane32_swap_b32 v32, v34
    v_permlane32_swap_b32 v33, v35
    v_pk_add_f32 v[32:33], v[32:33], v[34:35]
    v_permlane16_swap_b32 v32, v33
    v_add_f32 v96, v32, v33
    """)
    rbf(96, 96)
    e(f"""
    v_mov_b32_dpp v100, v96 row_ror:8 row_mask:0xf bank_mask:0xf     ; u
    v_mul_f32 v98, 0xbfb8aa3b, v96      ; -g*log2e
    v_exp_f32 v98, v98
    v_add_f32 v98, 1.0, v98
    v_rcp_f32 v99, v98
    v_mul_f32 v101, v96, v99
    v_fma_f32 v102, -v101, v98, v96
    v_fma_f32 v102, v102, v99, v101
    v_cmp_eq_f32 vcc, 0x7f800000, v98
    v_cndmask_b32 v101, v102, v101, vcc
    """)
    rbf(101, 101)
    e("v_mul_f32 v101, v101, v100")
    rbf(101, 101)
    e("s_mov_b32 exec_lo, 0x00ff00ff")
    e("s_mov_b32 exec_hi, 0x00ff00ff")
    e(f"ds_write_b32 v44, v101 offset:{L_HB}")
    e("s_mov_b64 exec, -1")
    e("v_mov_b32 v11, 0")
    e("s_waitcnt lgkmcnt(0)")
    e("s_barrier")
    for j in range(2 if KLINE else 4):
        e(f"ds_read_b128 v[{16+4*j}:{19+4*j}], v43 offset:{L_QS+(128 if KLINE else 64)*j}")
    if not LATE:
        for k in range(8):
            e(f"ds_read_b128 v[{64+4*k}:{67+4*k}], v11 offset:{L_HB+16*k}")
    vnext = [VEARLY]
    def next_v(p):
        if vnext[0] < 4:
            if p: pace(8)
            load_v(vnext[0]); vnext[0] += 1
    next_v(VEARLY > 0)
    if not LATE: vm.wait("wd")
    e("s_waitcnt lgkmcnt(0)")
    F0, F1 = 2, 12
    def rowfma(wreg_pairs, opair, first):
        for b, F in ((0, F0), (1, F1)):
            for hlf in range(2):
                wp = wreg_pairs[hlf]; a = F + 2*hlf
                if first:
                    e(f"v_pk_mul_f32 v[{a}:{a+1}], v[{wp}:{wp+1}], v[{opair}:{opair+1}] op_sel:[0,{b}] op_sel_hi:[1,{b}]")
                else:
                    e(f"v_pk_fma_f32 v[{a}:{a+1}], v[{wp}:{wp+1}], v[{opair}:{opair+1}], v[{a}:{a+1}] op_sel:[0,{b},0] op_sel_hi:[1,{b},1]")
    def ffn_down(wdr, tb):
        for i in range(16):
            t = tb + 4*(i & 1)
            for d in range(2):
                e(f"v_lshlrev_b32 v{t+2*d}, 16, v{wdr+2*i+d}")
                e(f"v_and_b32 v{t+2*d+1}, s{S_MASK}, v{wdr+2*i+d}")
            rowfma((t, t+2), 64+2*i, i == 0)
    if not LATE: ffn_down(WDR, 96)
    if VEARLY == 0: next_v(True)
    SCALE = 0x3db504f3
    e(f"s_mov_b32 s10, {hex(SCALE)}")
    e(f"s_mov_b32 s11, {hex(SCALE)}")
    def qk(t):
        if KLINE:
            for ln in range(2):
                for u in range(2):
                    for h in range(2):
                        a = 32*t + 16*u + 4*(2*h + ln)
                        s = (24 + 8*(t & 1) + 4*u) if h else (64 + 8*t + 4*u)
                        c = "0" if ln == 0 else f"v[{s}:{s+3}]"
                        e(f"v_mfma_f32_16x16x32_bf16 v[{s}:{s+3}], a[{a}:{a+3}], v[{16+4*ln}:{19+4*ln}], {c}")
            return
        for j in range(4):
            for u in range(2):
                a = 32*t + 16*u + 4*j; s = 64 + 8*t + 4*u
                c = "0" if j == 0 else f"v[{s}:{s+3}]"
                e(f"v_mfma_f32_16x16x32_bf16 v[{s}:{s+3}], a[{a}:{a+3}], v[{16+4*j}:{19+4*j}], {c}")
    def rnd(t):
        if KLINE:
            for r in range(8): e(f"v_permlane32_swap_b32 v{64+8*t+r}, v{24+8*(t&1)+r}")
            for r in range(8): e(f"v_add_f32_dpp v{64+8*t+r}, v{24+8*(t&1)+r}, v{64+8*t+r} row_ror:8 row_mask:0xf bank_mask:0xf")
        for z in range(4):
            r = 64 + 8*t + 2*z; tmp = 40 + (z & 1)
            if MIMIC:
                e(f"v_cvt_pk_bf16_f32 v{tmp}, v{r}, v{r+1}")
                e(f"v_lshlrev_b32 v{r}, 16, v{tmp}")
                e(f"v_and_b32 v{r+1}, s{S_MASK}, v{tmp}")
                e(f"v_pk_mul_f32 v[{r}:{r+1}], v[{r}:{r+1}], s[10:11]")
                e(f"v_cvt_pk_bf16_f32 v{tmp}, v{r}, v{r+1}")
                e(f"v_lshlrev_b32 v{r}, 16, v{tmp}")
                e(f"v_and_b32 v{r+1}, s{S_MASK}, v{tmp}")
            else:
                e(f"v_pk_mul_f32 v[{r}:{r+1}], v[{r}:{r+1}], s[10:11]")
    vm.wait("k7")
    qk(0); qk(1); rnd(0); qk(2); rnd(1); qk(3); rnd(2)
    next_v(VEARLY > 0)
    qk(4); rnd(3); qk(5); rnd(4); qk(6); rnd(5); qk(7); rnd(6)
    next_v(VEARLY > 0)
    assert vnext[0] == 4
    rnd(7)
    stamp()
    e("v_max3_f32 v40, v64, v65, v66")
    e("v_max3_f32 v41, v67, v68, v69")
    k = 70
    while k + 3 < 128:
        e(f"v_max3_f32 v40, v40, v{k}, v{k+1}")
        e(f"v_max3_f32 v41, v41, v{k+2}, v{k+3}")
        k += 4
    e(f"v_max3_f32 v40, v40, v{k}, v{k+1}")
    e("v_max_f32 v40, v40, v41")
    for sw in ("v_permlane16_swap_b32", "v_permlane32_swap_b32"):
        e("v_mov_b32 v41, v40")
        e(f"{sw} v40, v41")
        e("v_max_f32 v40, v40, v41")
    e(f"""
    v_and_b32 v42, 15, v1
    v_lshlrev_b32 v42, 2, v42           ; n*4
    v_lshlrev_b32 v43, 6, v10
    v_add_u32 v43, v43, v42             ; w*64+n*4
    ds_write_b32 v43, v40 offset:{L_MX}
    s_waitcnt lgkmcnt(0)
    s_barrier
    ds_read_b32 v44, v42 offset:{L_MX}
    ds_read_b32 v45, v42 offset:{L_MX+64}
    ds_read_b32 v46, v42 offset:{L_MX+128}
    ds_read_b32 v47, v42 offset:{L_MX+192}
    s_mov_b32 s10, 0x3fb8aa3b
    s_waitcnt lgkmcnt(0)
    v_max3_f32 v44, v44, v45, v46
    v_max_f32 v44, v44, v47
    v_mul_f32 v45, s10, v44             ; M*log2e
    """)
    for r in range(64, 128):
        e(f"v_fma_f32 v{r}, v{r}, s10, -v45")
    for r in range(64, 128):
        e(f"v_exp_f32 v{r}, v{r}")
    e("v_add_f32 v46, v64, v65")
    e("v_add_f32 v47, v66, v67")
    for r in range(68, 128, 2):
        e(f"v_add_f32 v46, v46, v{r}")
        e(f"v_add_f32 v47, v47, v{r+1}")
    e("v_add_f32 v46, v46, v47")
    for z in range(32):
        e(f"v_cvt_pk_bf16_f32 v{64+z}, v{64+2*z}, v{65+2*z}")
    for sw in ("v_permlane16_swap_b32", "v_permlane32_swap_b32"):
        e("v_mov_b32 v47, v46")
        e(f"{sw} v46, v47")
        e("v_add_f32 v46, v46, v47")
    e(f"ds_write_b32 v43, v46 offset:{L_LS}")
    e(f"""
    s_waitcnt lgkmcnt(0)
    s_barrier
    s_cmp_lg_u32 s3, 0
    s_cbranch_scc1 L_noml
    ds_read_b32 v46, v42 offset:{L_LS}
    ds_read_b32 v47, v42 offset:{L_LS+64}
    ds_read_b32 v48, v42 offset:{L_LS+128}
    ds_read_b32 v49, v42 offset:{L_LS+192}
    v_lshlrev_b32 v50, 7, v42           ; n*512
    s_lshl_b32 s{T}, s{S_HKV}, 12       ; hkv*8*512
    s_lshl_b32 s{T2}, s{S_B}, 8
    s_add_u32 s{T}, s{T}, s{T2}
    s_lshl_b32 s{T2}, s{S_S}, 3
    s_add_u32 s{T}, s{T}, s{T2}
    s_add_u32 s{T}, s{T}, {ML}
    s_waitcnt lgkmcnt(0)
    v_add_f32 v46, v46, v47
    v_add_f32 v48, v48, v49
    v_add_f32 v45, v46, v48
    s_mov_b64 exec, 0xff
    """)
    vm.issue("mlst", f"buffer_store_dwordx2 v[44:45], v50, {srd(SWS)}, s{T} offen sc1", definite=False)
    e("s_mov_b64 exec, -1")
    e("L_noml:")
    stamp()
    def pv(t):
        slot = 128 + 32*(t & 3)
        for j in range(8):
            q, p = j >> 1, j & 1
            T4 = 16 + 4*(j & 3)
            for z in range(4):
                e(f"v_perm_b32 v{T4+z}, v{slot+4*(2*z+1)+q}, v{slot+4*(2*z)+q}, s{S_SEL1 if p else S_SEL0}")
            c = "0" if t == 0 else f"v[{32+4*j}:{35+4*j}]"
            e(f"v_mfma_f32_16x16x32_bf16 v[{32+4*j}:{35+4*j}], v[{T4}:{T4+3}], v[{64+4*t}:{67+4*t}], {c}")
    WOR = 96
    e("v_lshlrev_b32 v11, 3, v0")
    WINV[0] = cfg.get("winv", WIN)
    vm.wait("v0"); pv(0)
    pace(8); load_v(4)
    def load_wo(WOR, voff=11):
        for i in range(16):
            off = (8*(i & 3) + (i >> 2))*2048
            e(f"s_mov_b32 s{T2}, {off}")
            vm.issue("wo", f"buffer_load_dwordx2 v[{WOR+2*i}:{WOR+2*i+1}], v{voff}, {srd(SWO)}, s{T2} offen {NT}")
    if not LATE:
        pace(8)
        load_wo(WOR)
    vm.wait("v1"); pv(1)
    pace(8); load_v(5)
    vm.wait("v2"); pv(2)
    e(f"""
    v_lshrrev_b32 v6, 1, v1
    s_and_b32 s8, s2, 31
    v_xor_b32 v6, s8, v6
    v_lshlrev_b32 v6, 3, v6
    v_lshrrev_b32 v7, 1, v10
    v_lshlrev_b32 v7, 8, v7
    v_add_u32 v6, v6, v7
    s_lshr_b32 s8, s2, 3
    s_lshl_b32 s8, s8, 9
    s_add_u32 s8, s8, {ML}
    """)
    pace(8)
    vm.issue("ml", f"buffer_load_dwordx2 a[0:1], v6, {srd(SWS)}, s8 offen sc1")
    load_v(6)
    vm.wait("v3"); pv(3)
    pace(8); load_v(7)
    vm.wait("v4"); pv(4)
    def unpack_wo(i0, src=WOR, dst=128):
        for i in range(i0, i0+8):
            for d in range(2):
                e(f"v_lshlrev_b32 v{dst+4*i+2*d}, 16, v{src+2*i+d}")
                e(f"v_and_b32 v{dst+4*i+2*d+1}, s{S_MASK}, v{src+2*i+d}")
    LP = cfg.get("latepos", [4, 5])
    def late_loads(pos):
        if not LATE: return
        if pos in LP: e("v_lshlrev_b32 v120, 3, v0")
        if LP[0] == pos: load_wd(128, 120)
        if LP[1] == pos: load_wo(160, 120)
    if LATE:
        late_loads(4)
        vm.wait("v5"); pv(5)
        late_loads(5)
        WOU = 192
    else:
        vm.wait("wo")
        unpack_wo(0)
        vm.wait("v5"); pv(5)
        unpack_wo(8)
        WOU = 128
    vm.wait("ml")
    e(f"""
    v_accvgpr_read_b32 v96, a0
    v_accvgpr_read_b32 v97, a1
    s_mov_b32 s{S_SPIN}, 0
L_mlspin:
    v_max_u32 v98, v96, v97
    v_cmp_eq_u32 vcc, -1, v98
    s_nop 1
    s_cmp_eq_u64 vcc, 0
    s_cbranch_scc1 L_mlok
    s_add_u32 s{S_SPIN}, s{S_SPIN}, 1
    s_cmp_gt_u32 s{S_SPIN}, {SPIN}
    s_cbranch_scc1 L_end
    buffer_load_dwordx2 v[96:97], v6, {srd(SWS)}, s8 offen sc1
    s_waitcnt vmcnt(0)
    s_branch L_mlspin
L_mlok:
    v_mov_b32 v98, v96
    """)
    wave_red([98], op="max", tmp=104, shifts=(8, 4, 2))
    e("v_sub_f32 v98, v96, v98")
    e("v_mul_f32 v98, 0x3fb8aa3b, v98")
    e("v_exp_f32 v98, v98")
    e("v_mul_f32 v99, v98, v97")
    wave_red([99], op="add", tmp=104, shifts=(8, 4, 2))
    e("""
    v_rcp_f32 v100, v99
    v_mul_f32 v101, v98, v100
    v_fma_f32 v102, -v101, v99, v98
    v_fma_f32 v100, v102, v100, v101    ; f = e_s / L
    """)
    e(f"""
    v_and_b32 v96, 15, v1
    v_mul_u32_u24 v96, 528, v96
    v_lshrrev_b32 v97, 4, v1
    v_lshlrev_b32 v97, 7, v97
    v_add_u32 v96, v96, v97
    v_mul_u32_u24 v97, {OBW}, v10
    v_add_u32 v96, v96, v97
    v_lshrrev_b32 v98, 5, v0
    v_mul_u32_u24 v97, 528, v98
    v_and_b32 v99, 31, v0
    v_lshlrev_b32 v101, 4, v99
    v_add_u32 v97, v97, v101
    v_lshlrev_b32 v98, 15, v98
    v_lshrrev_b32 v101, 2, v99
    v_lshlrev_b32 v101, 12, v101
    v_add_u32 v98, v98, v101
    v_and_b32 v101, 3, v99
    v_lshlrev_b32 v101, 4, v101
    v_add_u32 v98, v98, v101
    v_bfe_u32 v101, v0, 2, 5
    v_xor_b32 v101, s{S_S}, v101
    v_lshlrev_b32 v101, 6, v101
    v_add_u32 v98, v98, v101
    s_lshl_b32 s10, s{S_HKV}, 18
    s_lshl_b32 s{T}, s{S_B}, 11
    s_add_u32 s10, s10, s{T}
    s_add_u32 s10, s10, {PO}
    v_lshrrev_b32 v99, 1, v10
    v_lshlrev_b32 v99, 11, v99
    v_lshrrev_b32 v101, 1, v1
    v_lshlrev_b32 v101, 6, v101
    v_add_u32 v99, v99, v101
    v_and_b32 v101, 1, v10
    v_lshlrev_b32 v101, 5, v101
    v_add_u32 v99, v99, v101
    v_and_b32 v101, 1, v1
    v_lshlrev_b32 v101, 4, v101
    v_add_u32 v99, v99, v101
    s_lshl_b32 s11, s2, 12
    s_add_u32 s11, s11, {PO}
    v_and_b32 v101, 1, v10
    v_lshlrev_b32 v101, 6, v101
    v_and_b32 v102, 1, v1
    v_lshlrev_b32 v102, 5, v102
    v_add_u32 v101, v101, v102
    v_lshrrev_b32 v102, 4, v1
    v_lshlrev_b32 v102, 3, v102
    v_add_u32 v101, v101, v102
    v_lshrrev_b32 v102, 1, v10
    v_lshlrev_b32 v102, 2, v102
    v_add_u32 v101, v101, v102
    v_mov_b32 v102, 0
    v_lshrrev_b32 v103, 1, v0
    v_xor_b32 v11, s2, v103
    v_lshlrev_b32 v103, 13, v103
    v_and_b32 v104, 1, v0
    v_lshlrev_b32 v104, 4, v104
    v_add_u32 v103, v103, v104
    v_xor_b32 v109, 0x80, v11
    v_lshlrev_b32 v109, 5, v109
    v_add_u32 v109, v109, v103
    v_lshlrev_b32 v11, 5, v11
    v_add_u32 v103, v103, v11
    s_mov_b32 s96, {PF}
    s_mov_b32 s97, {PF+0x100000}
    v_lshlrev_b32 v104, 5, v0
    s_lshl_b32 s98, s2, 13
    s_add_u32 s98, s98, {PF}
    v_lshlrev_b32 v105, 5, v10
    v_lshrrev_b32 v106, 4, v1
    v_lshlrev_b32 v106, 3, v106
    v_add_u32 v105, v105, v106
    v_lshlrev_b32 v106, 3, v1
    v_lshlrev_b32 v107, 2, v1
    v_and_b32 v107, 12, v107
    """)
    vm.issue("res", f"buffer_load_dword v108, v107, {srd(SX)}, s9 offen")
    vm.wait("v6"); pv(6)
    late_loads(6)
    vm.wait("v7")
    if not LATE: vm.wait("res")
    stamp()
    pv(7)
    if not LATE:
        e("v_lshlrev_b32 v110, 16, v108")
        e(f"v_and_b32 v111, s{S_MASK}, v108")
    e("s_mov_b32 exec_lo, 0x00ff00ff")
    e("s_mov_b32 exec_hi, 0x00ff00ff")
    for j in range(8):
        e(f"ds_write_b128 v96, v[{32+4*j}:{35+4*j}] offset:{L_OB+16*j}")
    e("s_mov_b64 exec, -1")
    e("s_waitcnt lgkmcnt(0)")
    e("s_barrier")
    for w in range(4):
        e(f"ds_read_b128 v[{16+4*w}:{19+4*w}], v97 offset:{L_OB+w*OBW}")
    e("s_waitcnt lgkmcnt(2)")
    e("v_pk_add_f32 v[16:17], v[16:17], v[20:21]")
    e("v_pk_add_f32 v[18:19], v[18:19], v[22:23]")
    e("s_waitcnt lgkmcnt(0)")
    e("v_pk_add_f32 v[24:25], v[24:25], v[28:29]")
    e("v_pk_add_f32 v[26:27], v[26:27], v[30:31]")
    e("v_pk_add_f32 v[16:17], v[16:17], v[24:25]")
    e("v_pk_add_f32 v[18:19], v[18:19], v[26:27]")
    vm.issue("post", f"buffer_store_dwordx4 v[16:19], v98, {srd(SWS)}, s10 offen sc1")
    late_loads(7)
    if cfg.get("tstamps"): stamp()
    if LATE:
        e("v_mov_b32 v16, 0")
        for k in range(8):
            e(f"ds_read_b128 v[{64+4*k}:{67+4*k}], v16 offset:{L_HB+16*k}")
        vm.wait("wd")
        e("s_waitcnt lgkmcnt(0)")
        ffn_down(128, 112)
        vm.issue("poll1", f"buffer_load_dwordx4 v[20:23], v99, {srd(SWS)}, s11 offen sc1")
        wo_idx = [i for i, (t, d) in enumerate(vm.ops) if t == "wo"]
        after = sum(1 for t, d in vm.ops[wo_idx[-1]+1:] if d)
        e(f"s_waitcnt vmcnt({after + 8})")
        unpack_wo(0, 160, 192)
        vm.wait("wo")
        unpack_wo(8, 160, 192)
        vm.wait("res")
        e("v_lshlrev_b32 v110, 16, v108")
        e(f"v_and_b32 v111, s{S_MASK}, v108")
        vm.wait("poll1")
        e(f"""
    s_mov_b32 s{S_SPIN}, 0
    v_max3_u32 v24, v20, v21, v22
    v_max_u32 v24, v24, v23
    v_cmp_eq_u32 vcc, -1, v24
    s_nop 1
    s_cmp_eq_u64 vcc, 0
    s_cbranch_scc1 L_podone
    """)
    if cfg.get("drainA", True): e("s_waitcnt vmcnt(0)")
    MASKP = cfg.get("maskpoll", True)
    tailchk = """
    s_and_b64 exec, exec, vcc
    s_cbranch_execnz {L}
    s_mov_b64 exec, -1
    """ if MASKP else """
    s_nop 1
    s_cmp_eq_u64 vcc, 0
    s_cbranch_scc0 {L}
    """
    e(f"s_mov_b32 s{S_SPIN}, 0")
    if cfg.get("preA"):
        e(f"""
    {exmask(cfg['preA'])}
L_popre:
    buffer_load_dword v20, v99, {srd(SWS)}, s11 offen sc1
    s_add_u32 s{S_SPIN}, s{S_SPIN}, 1
    s_cmp_gt_u32 s{S_SPIN}, {SPIN}
    s_cbranch_scc1 L_end
    s_waitcnt vmcnt(0)
    v_cmp_eq_u32 vcc, -1, v20
    s_and_b64 exec, exec, vcc
    s_cbranch_execnz L_popre
    s_mov_b64 exec, -1
    """)
    e(f"""
L_pospin:
    buffer_load_dwordx4 v[20:23], v99, {srd(SWS)}, s11 offen sc1
    s_add_u32 s{S_SPIN}, s{S_SPIN}, 1
    s_cmp_gt_u32 s{S_SPIN}, {SPIN}
    s_cbranch_scc1 L_end
    s_waitcnt vmcnt(0)
    v_max3_u32 v24, v20, v21, v22
    v_max_u32 v24, v24, v23
    v_cmp_eq_u32 vcc, -1, v24
    """)
    e(tailchk.format(L="L_pospin"))
    e("L_podone:")
    vm.ops = []
    if STAMPS: e(f"s_mov_b32 s24, s{S_SPIN}")
    stamp()
    e("v_pk_mul_f32 v[20:21], v[20:21], v[100:101] op_sel:[0,0] op_sel_hi:[1,0]")
    e("v_pk_mul_f32 v[22:23], v[22:23], v[100:101] op_sel:[0,0] op_sel_hi:[1,0]")
    e("v_permlane32_swap_b32 v20, v22")
    e("v_permlane32_swap_b32 v21, v23")
    e("v_add_f32 v20, v20, v22")
    e("v_add_f32 v21, v21, v23")
    e("v_permlane16_swap_b32 v20, v21")
    e("v_add_f32 v20, v20, v21")
    for sh in (2, 4, 8):
        e(f"v_add_f32_dpp v20, v20, v20 row_ror:{sh} row_mask:0xf bank_mask:0xf")
    rbf(20, 20)
    e("s_mov_b32 exec_lo, 0x00030003")
    e("s_mov_b32 exec_hi, 0x00030003")
    e(f"ds_write_b32 v101, v20 offset:{L_OBC}")
    e("s_mov_b64 exec, -1")
    e("s_waitcnt lgkmcnt(0)")
    e("s_barrier")
    for k in range(8):
        e(f"ds_read_b128 v[{16+4*k}:{19+4*k}], v102 offset:{L_OBC+16*k}")
    for i in range(16):
        if i % 2 == 0: e(f"s_waitcnt lgkmcnt({7 - i//2})")
        rowfma((WOU+4*i, WOU+2+4*i), 16+2*i, False)
    vm.issue("pfst", f"buffer_store_dwordx4 v[{F0}:{F0+3}], v103, {srd(SWS)}, s96 offen sc1")
    vm.issue("pfst", f"buffer_store_dwordx4 v[{F1}:{F1+3}], v109, {srd(SWS)}, s97 offen sc1")
    if cfg.get("tstamps"): stamp()
    if cfg.get("sleepB"): e(f"s_sleep {cfg['sleepB']}")
    if cfg.get("drainB", True): e("s_waitcnt vmcnt(0)")
    e(f"s_mov_b32 s{S_SPIN}, 0")
    if cfg.get("preB"):
        e(f"""
    {exmask(cfg['preB'])}
L_pfpre:
    buffer_load_dword v20, v104, {srd(SWS)}, s98 offen offset:16 sc1
    s_add_u32 s{S_SPIN}, s{S_SPIN}, 1
    s_cmp_gt_u32 s{S_SPIN}, {SPIN}
    s_cbranch_scc1 L_end
    s_waitcnt vmcnt(0)
    v_cmp_eq_u32 vcc, -1, v20
    s_and_b64 exec, exec, vcc
    s_cbranch_execnz L_pfpre
    s_mov_b64 exec, -1
    """)
    e(f"""
L_pfspin:
    buffer_load_dwordx4 v[20:23], v104, {srd(SWS)}, s98 offen sc1
    buffer_load_dwordx4 v[24:27], v104, {srd(SWS)}, s98 offen offset:16 sc1
    s_add_u32 s{S_SPIN}, s{S_SPIN}, 1
    s_cmp_gt_u32 s{S_SPIN}, {SPIN}
    s_cbranch_scc1 L_end
    s_waitcnt vmcnt(0)
    v_max3_u32 v28, v20, v21, v22
    v_max3_u32 v29, v23, v24, v25
    v_max3_u32 v28, v28, v26, v27
    v_max_u32 v28, v28, v29
    v_cmp_eq_u32 vcc, -1, v28
    """)
    e(tailchk.format(L="L_pfspin"))
    vm.ops = []
    if STAMPS: e(f"s_mov_b32 s25, s{S_SPIN}")
    stamp()
    for c in range(4): e(f"v_permlane32_swap_b32 v{20+c}, v{24+c}")
    e("v_pk_add_f32 v[20:21], v[20:21], v[24:25]")
    e("v_pk_add_f32 v[22:23], v[22:23], v[26:27]")
    for c in range(2): e(f"v_permlane16_swap_b32 v{20+c}, v{22+c}")
    e("v_pk_add_f32 v[20:21], v[20:21], v[22:23]")
    for sh in (1, 2, 4, 8):
        for k in range(2): e(f"v_add_f32_dpp v{20+k}, v{20+k}, v{20+k} row_ror:{sh} row_mask:0xf bank_mask:0xf")
    e("s_mov_b32 exec_lo, 0x00010001")
    e("s_mov_b32 exec_hi, 0x00010001")
    e(f"ds_write_b64 v105, v[20:21] offset:{L_FIN}")
    e("s_mov_b64 exec, -1")
    e("s_waitcnt lgkmcnt(0)")
    e("s_barrier")
    e("s_cmp_lg_u32 s3, 0")
    e("s_cbranch_scc1 L_end")
    e("s_mov_b64 exec, 15")
    for w in range(4):
        e(f"ds_read_b64 v[{20+2*w}:{21+2*w}], v106 offset:{L_FIN+32*w}")
    e("s_waitcnt lgkmcnt(0)")
    e("v_pk_add_f32 v[20:21], v[20:21], v[22:23]")
    e("v_pk_add_f32 v[24:25], v[24:25], v[26:27]")
    e("v_pk_add_f32 v[20:21], v[20:21], v[24:25]")
    e("v_pk_add_f32 v[20:21], v[20:21], v[110:111]")
    e("v_cvt_pk_bf16_f32 v20, v20, v21")
    e(f"buffer_store_dword v20, v107, {srd(SOUT)}, s9 offen {cfg.get('osc','')}")
    if STAMPS:
        stamp()
        e("s_mov_b64 exec, 1")
        e(f"s_add_u32 s{SX}, s26, {240<<20}")
        e(f"s_addc_u32 s{SX+1}, s27, 0")
        e(f"s_and_b32 s{SX+1}, s{SX+1}, 0xffff")
        e(f"s_mov_b32 s{SX+2}, 0x10000")
        e(f"s_lshl_b32 s{T}, s2, 7")
        e("v_mov_b32 v2, 0")
        for k in range(stamp_n[0]):
            r = stamp_regs[k]
            e(f"v_mov_b32 v4, s{r}")
            e(f"v_mov_b32 v5, s{r+1}")
            e(f"buffer_store_dwordx2 v[4:5], v2, {srd(SX)}, s{T} offen offset:{8*k}")
            e("s_nop 2")
        e("v_mov_b32 v4, s24")
        e("v_mov_b32 v5, s25")
        e(f"buffer_store_dwordx2 v[4:5], v2, {srd(SX)}, s{T} offen offset:{8*15}")
    e("L_end:")
    e("s_endpgm")
    e(kernel_desc(NAME, 512, 102, 256))
    body, n = hazard.fix(e.text())
    hdr = HEADER_COMMENTS + f"; @launch grid=(256,1,1) block=(256,1,1) lds={LDS}\n" + '.amdgcn_target "amdgcn-amd-amdhsa--gfx950"\n.text\n'
    return hdr + body, n, LDS

if __name__ == "__main__":
    import json
    cfg = json.loads(sys.argv[2]) if len(sys.argv) > 2 else {}
    out = sys.argv[1]
    txt, n, lds = gen(cfg)
    open(out, "w").write(txt)
    print("nops inserted", n, "lines", txt.count("\n"), "lds", lds)
```

```python
import sys, json
from common import *
import fused
cfg = json.loads(sys.argv[2]) if len(sys.argv) > 2 else {}
txt, n, lds = fused.gen(cfg)
open(sys.argv[1] + ".s", "w").write(txt)
build_co(txt, fused.NAME, sys.argv[1])
print("built", sys.argv[1], "lds", lds, "nops", n)
```
